```python
import torch

def _softmax(x, axis=-1):
    return torch.softmax(x, dim=axis)

def _gelu(x):
    return torch.nn.functional.gelu(x, approximate='tanh')

def _silu(x):
    return torch.nn.functional.silu(x)

def _sigmoid(x):
    return torch.sigmoid(x)

def _layernorm(x, axis=-1, eps=1e-05):
    m = x.mean(dim=axis, keepdim=True)
    v = x.var(dim=axis, keepdim=True, unbiased=False)
    return (x - m) / torch.sqrt(v + eps)

def _scatter_add(tgt, idx, src, axis=0):
    return tgt.clone().index_add_(axis, idx, src)

def _segment_sum(src, seg, n):
    out = torch.zeros((n,) + src.shape[1:], dtype=src.dtype)
    return out.index_add_(0, seg, src)

def _pad(x, pw):
    flat = tuple((v for pair in reversed(pw) for v in pair))
    return torch.nn.functional.pad(x, flat)
kernel_name = 'gated_mix__ssm_conv_h3__mixer_gmlp__prompt'

def setup_inputs():

    _w = lambda a: (lambda t: t.to(torch.bfloat16) if t.is_floating_point() else t)(torch.as_tensor(a))

    def _A_setup():
        B, S, D = (1, 2048, 448)
        ks = 4
        return {'q': _w((lambda *s: torch.randn(*s, dtype=torch.bfloat16) * 0.05)(B, S, D)), 'k': _w((lambda *s: torch.randn(*s, dtype=torch.bfloat16) * 1.6)(B, S, D)), 'v': _w((lambda *s: torch.randn(*s, dtype=torch.bfloat16) * 1.6)(B, S, D)), 'shift_k': _w((lambda *s: torch.randn(*s, dtype=torch.bfloat16) * 1.6)(D, ks) * 0.5), 'ssm_k': _w((lambda *s: torch.randn(*s, dtype=torch.bfloat16) * 3.2)(D, S) * (1.0 / S ** 0.5)), 'ssm_D': _w((lambda *s: torch.randn(*s, dtype=torch.bfloat16) * 1.6)(D))}
    _A_in = _A_setup()

    def _B_setup():
        B, S, D, F = (1, 2048, 448, 1792)
        Fh = F // 2
        return {'x': _w((lambda *s: torch.randn(*s, dtype=torch.bfloat16) * 0.05)(B, S, D)), 'w_in': _w((lambda *s: torch.randn(*s, dtype=torch.bfloat16) * 0.8)(D, 2 * Fh)), 'w_sp': _w(0.01 * (lambda *s: torch.randn(*s, dtype=torch.bfloat16) * 0.8)(S, S)), 'b_sp': _w(1.0 + 0.01 * (lambda *s: torch.randn(*s, dtype=torch.bfloat16) * 0.1)(S)), 'w_out': _w((lambda *s: torch.randn(*s, dtype=torch.bfloat16) * 0.1)(Fh, D))}
    _B_in = _B_setup()
    return {'A_q': _A_in['q'], 'A_k': _A_in['k'], 'A_v': _A_in['v'], 'A_shift_k': _A_in['shift_k'], 'A_ssm_k': _A_in['ssm_k'], 'A_ssm_D': _A_in['ssm_D'], 'B_x': _B_in['x'], 'B_w_in': _B_in['w_in'], 'B_w_sp': _B_in['w_sp'], 'B_b_sp': _B_in['b_sp'], 'B_w_out': _B_in['w_out'], 'gate_w': _w((lambda *s: torch.randn(*s, dtype=torch.bfloat16) * 0.05)(448) * 16.0)}

def reference(A_q, A_k, A_v, A_shift_k, A_ssm_k, A_ssm_D, B_x, B_w_in, B_w_sp, B_b_sp, B_w_out, gate_w):

    def _A_ref(q, k, v, shift_k, ssm_k, ssm_D):
        B, S, D = q.shape
        ks = shift_k.shape[-1]
        k_pad = _pad(k, ((0, 0), (ks - 1, 0), (0, 0)))
        k_shift = torch.zeros_like(k)
        for t in range(ks):
            k_shift = k_shift + k_pad[:, t:t + S, :] * shift_k[:, ks - 1 - t][None, None, :]
        kv = k_shift * v
        L = 2 * S
        kv_pad = _pad(kv, ((0, 0), (0, S), (0, 0)))
        kf_pad = _pad(ssm_k, ((0, 0), (0, S)))
        kv_f = (lambda x, axes=(-2, -1): torch.fft.rfft2(x.float(), dim=axes))(kv_pad[:, None, :, :], axes=(1, 2))
        kf_f = (lambda x, axes=(-2, -1): torch.fft.rfft2(x.float(), dim=axes))(kf_pad[:, None, :], axes=(1, 2))
        kf_f = (lambda x, *d: x.permute(*d))(kf_f, 1, 2, 0)
        y_f = kv_f * kf_f[None, :, :, :]
        y = (lambda x, s, axes=(-2, -1): torch.fft.irfft2(x, s=s, dim=axes).to(torch.bfloat16))(y_f, (1, L), axes=(1, 2))[:, 0, :S, :]
        y = y + kv * ssm_D[None, None, :]
        return q * y

    def _B_ref(x, w_in, w_sp, b_sp, w_out):
        B, S, D = x.shape
        F = w_in.shape[-1]
        Fh = F // 2
        z = _gelu(torch.einsum('bsd,df->bsf', x, w_in))
        z1 = z[..., :Fh].clone()
        z2 = _layernorm(z[..., Fh:], axis=-1)
        g = torch.einsum('ts,bsf->btf', w_sp, z2) + b_sp[None, :, None]
        return torch.einsum('bsf,fd->bsd', z1 * g, w_out)
    x = A_q
    g = _sigmoid((x * gate_w).sum(-1, keepdims=True))
    a = _A_ref(x, A_k, A_v, A_shift_k, A_ssm_k, A_ssm_D)
    b = _B_ref(x, B_w_in, B_w_sp, B_b_sp, B_w_out)
    return g * a + (1 - g) * b
```

```python
import re

REG = re.compile(r"(?<![\w.])(-?)(?:abs\()?([vas])(?:(\d+)|\[(\d+):(\d+)\])(?![\w])")
TRANS = ("v_exp_f32", "v_log_f32", "v_rcp_f32", "v_rsq_f32", "v_sqrt_f32", "v_sin_f32", "v_cos_f32")

def regs_of(tok):
    tok = tok.strip()
    out = set()
    if tok in ("vcc", "vcc_lo", "vcc_hi"): return {"vcc"}
    if tok in ("exec", "exec_lo", "exec_hi"): return {"exec"}
    if tok == "m0": return {"m0"}
    for m in REG.finditer(tok):
        k = m.group(2)
        if m.group(3) is not None: out.add(f"{k}{int(m.group(3))}")
        else:
            for r in range(int(m.group(4)), int(m.group(5)) + 1): out.add(f"{k}{r}")
    return out

class Ins:
    def __init__(self, line):
        self.line = line
        s = line.split(";")[0].strip()
        parts = s.split(None, 1)
        self.op = op = parts[0]
        rest = parts[1] if len(parts) > 1 else ""
        xm = " ".join(re.findall(r"\w+:\[[^\]]*\]", rest))
        rest = re.sub(r"\w+:\[[^\]]*\]", "", rest).strip()
        ops = [t.strip() for t in rest.split(",")] if rest else []
        self.mods = ""
        if ops and " " in ops[-1]:
            ops[-1], self.mods = ops[-1].split(None, 1)
        self.mods += " " + xm
        R = [regs_of(t) for t in ops]
        allr = set().union(*R) if R else set()
        self.dst, self.src = set(), set()
        self.srcC = set(); self.srcAB = set(); self.sdata = set()
        self.states = 1
        self.passes = 0
        if op.startswith("v_mfma"):
            self.cls = "mfma"; self.dst = R[0]; self.srcAB = R[1] | R[2]; self.srcC = R[3]; self.src = self.srcAB | self.srcC
            self.passes = 8 if "32x32" in op else 4
        elif op.startswith("v_"):
            self.cls = "valu"
            if op.startswith("v_permlane") and "swap" in op:
                self.dst = R[0] | R[1]; self.src = set(self.dst)
            elif op.startswith(("v_add_co", "v_sub_co", "v_addc_co", "v_subb_co")):
                self.dst = R[0] | R[1]; self.src = set().union(*R[2:])
            elif op == "v_nop": pass
            else:
                self.dst = R[0]; self.src = set().union(*R[1:]) if len(R) > 1 else set()
                if op.startswith(("v_fmac", "v_writelane", "v_dot2c")) or "dpp" in op or "row_" in self.mods or "quad_perm" in self.mods: self.src |= R[0]
        elif op.startswith("ds_"):
            self.cls = "ds"
            if op.startswith(("ds_read", "ds_bpermute", "ds_permute", "ds_swizzle")): self.dst = R[0]; self.src = set().union(*R[1:])
            else: self.src = allr
        elif op.startswith(("buffer_", "global_")):
            self.cls = "vmem"
            lds = " lds" in (" " + self.mods) or "_lds_" in op
            if "load" in op and not lds: self.dst = R[0]; self.src = set().union(*R[1:])
            else:
                self.src = set(allr)
                if lds: self.src.add("m0")
                if "store" in op and ("x4" in op or "x3" in op): self.sdata = R[0] if op.startswith("buffer_") else R[1]
            self.lds = lds
        elif op.startswith("s_"):
            self.cls = "salu"
            if op == "s_nop": self.states = int(ops[0], 0) + 1
            elif op.startswith(("s_cmp", "s_bitcmp", "s_waitcnt", "s_barrier", "s_branch", "s_cbranch", "s_setprio", "s_sleep", "s_endpgm")): self.src = allr
            else:
                self.dst = set(R[0]) if R else set(); self.src = set().union(*R[1:]) if len(R) > 1 else set()
                if "saveexec" in op: self.dst.add("exec")
        else:
            raise ValueError("unknown instruction: " + line)
        self.trans = op.startswith(TRANS)
        self.dpp = "row_" in self.mods or "quad_perm" in self.mods or "dpp" in op

def is_s(r): return r[0] == "s" or r == "vcc"
def is_v(r): return r[0] in "va" and r != "vcc"

def need(p, c):
    n = 0
    if p.cls == "valu":
        vd = {r for r in p.dst if is_v(r)}; sd = {r for r in p.dst if is_s(r)}
        if c.cls == "mfma" and vd & c.src: n = max(n, 2)
        if c.cls == "valu":
            if p.trans and vd & c.src: n = max(n, 1)
            if c.op.startswith(("v_readfirstlane", "v_readlane")) and vd & c.src: n = max(n, 1)
            if (c.dpp or c.op.startswith("v_permlane")) and vd & c.src: n = max(n, 2)
            if sd & c.src: n = max(n, 4 if c.op.startswith(("v_readlane", "v_writelane")) else 2)
            if ("op_sel" in p.mods and not p.op.startswith("v_pk")) or "sdwa" in p.op:
                if vd & (c.src | c.dst): n = max(n, 1)
        if c.cls == "vmem" and sd & c.src: n = max(n, 5)
        if c.cls == "salu" and sd & c.src: n = max(n, 1)
        if "exec" in p.dst: n = max(n, 5)
    if p.cls == "mfma":
        big = {4: 8, 8: 12}[p.passes]
        if c.cls == "mfma":
            if p.dst & c.srcAB: n = max(n, big)
            if p.dst & c.srcC and not (p.dst == c.srcC and p.passes == c.passes): n = max(n, big - 2)
            if p.dst & c.dst and not (p.dst == c.srcC): n = max(n, big)
        elif c.cls in ("valu", "ds", "vmem"):
            if p.dst & (c.src | c.dst): n = max(n, big)
            if c.cls == "valu" and p.srcC & c.dst: n = max(n, p.passes - 1)
    if p.cls == "salu" and "m0" in p.dst and c.cls in ("vmem", "ds") and "m0" in c.src: n = max(n, 1)
    if p.cls == "vmem" and p.sdata & c.dst: n = max(n, 2 if c.cls == "valu" else 1)
    return n

class Asm:
    def __init__(self, check=True):
        self.lines = []; self.nlabel = 0; self.check = check
        self.hist = []
        self.vm = []; self.lg = []
        self.npad = 0; self.maxvm = 0
    def raw(self, s):
        for l in s.split("\n"): self.lines.append(l)
    def __call__(self, s, tag=None):
        for l in s.split("\n"):
            t = l.split(";")[0].strip()
            if not t or t.startswith(".") or t.endswith(":") or not self.check:
                self.lines.append(l); continue
            ins = Ins(t)
            pad, dist = 0, 0
            for p in reversed(self.hist):
                if dist >= 12: break
                pad = max(pad, need(p, ins) - dist)
                dist += p.states
            if pad > 0:
                self.npad += pad
                nop = Ins(f"s_nop {pad-1}")
                self.lines.append("    " + nop.line); self.hist.append(nop)
            self.lines.append("    " + l.strip()); self.hist.append(ins); self.hist = self.hist[-16:]
            if ins.cls == "vmem":
                self.vm.append(tag); self.maxvm = max(self.maxvm, len(self.vm))
                assert len(self.vm) <= 63, "too many VMEM ops outstanding"
            if ins.cls == "ds": self.lg.append(tag)
            if ins.op == "s_waitcnt":
                m = re.search(r"vmcnt\((\d+)\)", t)
                if m: n = int(m.group(1)); self.vm = self.vm[len(self.vm)-n:] if n < len(self.vm) and n > 0 else ([] if n == 0 else self.vm)
                m = re.search(r"lgkmcnt\((\d+)\)", t)
                if m: n = int(m.group(1)); self.lg = self.lg[len(self.lg)-n:] if n < len(self.lg) and n > 0 else ([] if n == 0 else self.lg)
    def _cnt(self, q, tags):
        if not isinstance(tags, (list, tuple, set)): tags = [tags]
        last = -1
        for i, t in enumerate(q):
            if t in tags: last = i
        return None if last < 0 else len(q) - 1 - last
    def wait(self, vm=None, lg=None):
        parts = []
        if vm is not None:
            n = self._cnt(self.vm, vm)
            if n is not None: parts.append(f"vmcnt({n})")
        if lg is not None:
            n = self._cnt(self.lg, lg)
            if n is not None: parts.append(f"lgkmcnt({min(n,15)})")
        if parts: self("s_waitcnt " + " ".join(parts))
    def fence(self, n=12):
        worst, dist = 0, 0
        for p in reversed(self.hist):
            if dist >= 12: break
            w = {"mfma": {4: 8, 8: 12}.get(p.passes, 0), "valu": 5 if any(is_s(r) or r == "exec" for r in p.dst) else 2, "vmem": 2 if p.sdata else 0, "salu": 1 if "m0" in p.dst else 0, "ds": 0}[p.cls]
            worst = max(worst, w - dist); dist += p.states
        if worst > 0: self(f"s_nop {worst-1}")
    def label(self, base="L"):
        self.nlabel += 1
        return f"{base}_{self.nlabel}"
    def text(self):
        return "\n".join(self.lines) + "\n"

def header(launch_lines):
    return "".join(f"; {l}\n" for l in launch_lines) + '.amdgcn_target "amdgcn-amd-amdhsa--gfx950"\n.text\n'

def kstart(name):
    return f".globl {name}\n.p2align 8\n.type {name},@function\n{name}:\n"

def kdesc(name, nvgpr, accum, nsgpr=102, kernarg=120):
    return (f'.section .rodata,"a"\n.p2align 6\n.amdhsa_kernel {name}\n'
            f"  .amdhsa_next_free_vgpr {nvgpr}\n  .amdhsa_next_free_sgpr {nsgpr}\n  .amdhsa_accum_offset {accum}\n"
            f"  .amdhsa_group_segment_fixed_size 0\n  .amdhsa_kernarg_size {kernarg}\n  .amdhsa_user_sgpr_count 2\n"
            f"  .amdhsa_user_sgpr_kernarg_segment_ptr 1\n  .amdhsa_system_sgpr_workgroup_id_x 1\n.end_amdhsa_kernel\n")
```

```python
import sys, struct
from asmlib import *

NAME = "gated_mix__ssm_conv_h3__mixer_gmlp__prompt_kernel"

WS_EPOCH = 0x0
WS_FKV   = 0x1000
WS_FZ2   = 0x2000
WS_FP    = 0x3000
WS_FY    = 0x4000
WS_TS    = 0x8000
WS_STATS = 0x80000
WS_KVT   = 0x100000
WS_YT    = 0x300000
WS_Z2N   = 0x500000
WS_P     = 0x900000
WS_SIZE  = 0x1000000

REGION = 40960
SPIN = 20000

def f2u(x): return struct.unpack("<I", struct.pack("<f", x))[0]

sQ, sK, sV, sSH, sWIN, sWSP, sWOUT, sWS, sOUT, sGW, sBSP, sH, sD = 8, 12, 16, 20, 24, 28, 32, 36, 40, 44, 48, 52, 56
s_i, s_j, s_th, s_dj, s_w, s_wb, s_tag = 60, 61, 62, 63, 64, 65, 66
s_t0, s_t1, s_t2, s_t3, s_cnt, s_so, s_so2 = 67, 68, 69, 70, 71, 72, 73
s_ts = 76
def srd(b): return f"s[{b}:{b+3}]"

class Gen:
    def __init__(self, stamps=False, npre=16, opts=None):
        self.a = Asm()
        self.stamps = stamps
        self.nst = 0
        self.npre = npre
        self.o = opts or {}

    def stamp(self, name):
        if not self.stamps: return
        a = self.a
        a(f"s_memrealtime s[{s_ts}:{s_ts+1}]")
        a("s_waitcnt lgkmcnt(0)")
        a(f"s_mov_b32 s{78+self.nst}, s{s_ts}")
        self.names.append(name)
        self.nst += 1
        assert self.nst <= 24

    def dump_stamps(self):
        if not self.stamps: return
        a = self.a
        a(f"s_lshl_b32 s{s_t0}, s2, 2")
        a(f"s_add_u32 s{s_t0}, s{s_t0}, s{s_w}")
        a(f"s_lshl_b32 s{s_t0}, s{s_t0}, 7")
        a(f"s_add_u32 s{s_t0}, s{s_t0}, {WS_TS}")
        a("v_mov_b32 v2, 0")
        a("s_mov_b64 exec, 1")
        for n in range(self.nst):
            a(f"v_mov_b32 v3, s{78+n}")
            a(f"buffer_store_dword v3, v2, {srd(sWS)}, s{s_t0} offen offset:{4*n}")
        a("s_mov_b64 exec, -1")

    def poll(self, loads, tagregs, vt):
        a = self.a
        L = a.label("L_poll"); Ld = a.label("L_polld")
        a(f"s_mov_b32 s{s_cnt}, {SPIN}")
        a.fence()
        a(f"{L}:")
        for l in loads: a(l)
        a("s_waitcnt vmcnt(0)")
        if len(tagregs) == 1:
            a(f"v_cmp_ne_u32 vcc, s{s_tag}, v{tagregs[0]}")
        else:
            a(f"v_xor_b32 v{vt}, s{s_tag}, v{tagregs[0]}")
            for r in tagregs[1:]:
                a(f"v_bitop3_b32 v{vt}, v{vt}, v{r}, s{s_tag} bitop3:0xf6")
            a(f"v_cmp_ne_u32 vcc, 0, v{vt}")
        a("s_cmp_eq_u64 vcc, 0")
        a(f"s_cbranch_scc1 {Ld}")
        a(f"s_sub_u32 s{s_cnt}, s{s_cnt}, 1")
        a(f"s_cmp_lg_u32 s{s_cnt}, 0")
        a(f"s_cbranch_scc1 {L}")
        a(f"{Ld}:")

    def flag(self, soff_reg, vz, vtag):
        a = self.a
        a("s_mov_b64 exec, 1")
        a(f"buffer_store_dword v{vtag}, v{vz}, {srd(sWS)}, s{soff_reg} offen sc1", tag="flag")
        a("s_mov_b64 exec, -1")

    def mk_srd(self, b, nbytes):
        a = self.a
        a(f"s_mov_b32 s{b+2}, {nbytes}")
        a(f"s_mov_b32 s{b+3}, 0x20000")

    def gelu(self, base, n, vt, vC0, vC1, vONE):
        a = self.a
        for b in range(base, base + n, 8):
            for p in range(4): a(f"v_pk_mul_f32 v[{vt+2*p}:{vt+2*p+1}], v[{b+2*p}:{b+2*p+1}], v[{b+2*p}:{b+2*p+1}]")
            for p in range(4): a(f"v_pk_fma_f32 v[{vt+2*p}:{vt+2*p+1}], v[{vt+2*p}:{vt+2*p+1}], v[{vC1}:{vC1+1}], v[{vC0}:{vC0+1}]")
            for p in range(4): a(f"v_pk_mul_f32 v[{vt+2*p}:{vt+2*p+1}], v[{vt+2*p}:{vt+2*p+1}], v[{b+2*p}:{b+2*p+1}]")
            for p in range(8): a(f"v_exp_f32 v{vt+p}, v{vt+p}")
            for p in range(4): a(f"v_pk_add_f32 v[{vt+2*p}:{vt+2*p+1}], v[{vt+2*p}:{vt+2*p+1}], v[{vONE}:{vONE+1}]")
            for p in range(8): a(f"v_rcp_f32 v{vt+p}, v{vt+p}")
            for p in range(4): a(f"v_pk_mul_f32 v[{b+2*p}:{b+2*p+1}], v[{b+2*p}:{b+2*p+1}], v[{vt+2*p}:{vt+2*p+1}]")

    def prologue(self):
        a = self.a
        a("s_cmp_ge_u32 s2, 256")
        a("s_cbranch_scc1 L_end")
        for b, off in ((sK, 8), (sV, 16), (sSH, 24), (sQ, 0), (sWIN, 56), (sWS, 112), (sWSP, 64), (sBSP, 72), (sWOUT, 80), (sGW, 88), (sOUT, 96), (sH, 32), (sD, 40)):
            a(f"s_load_dwordx2 s[{b}:{b+1}], s[0:1], {off}")
        if self.stamps:
            a(f"s_memrealtime s[{s_ts}:{s_ts+1}]")
        a("v_lshrrev_b32 v2, 6, v0")
        a("v_and_b32 v1, 63, v0")
        a(f"v_readfirstlane_b32 s{s_w}, v2")
        for b, n in ((sK, 1835008), (sV, 1835008), (sSH, 3584), (sQ, 1835008), (sWIN, 1605632), (sWS, WS_SIZE), (sWSP, 8388608),
                     (sBSP, 4096), (sWOUT, 802816), (sGW, 896), (sOUT, 1835008), (sH, 1835008), (sD, 896)):
            self.mk_srd(b, n)
        a(f"s_lshr_b32 s{s_t0}, s2, 3")
        a(f"s_and_b32 s{s_t1}, s2, 7")
        a(f"s_cmp_ge_u32 s{s_t0}, 28")
        a("s_cbranch_scc1 L_helper")

    def get_tag(self, vt, vtag):
        a = self.a
        a(f"v_readfirstlane_b32 s{s_tag}, v{vt}")
        a(f"s_mul_i32 s{s_tag}, s{s_tag}, 0x9E3779B1")
        a(f"s_add_u32 s{s_tag}, s{s_tag}, 0x7F4A7C15")
        a(f"v_mov_b32 v{vtag}, s{s_tag}")

    def gemm_wg(self):
        a = self.a
        self.names = []; self.nst = 0
        vZ, vTAG = 2, 3
        vXD = 4
        vWD = 8
        vTR = 10
        vXR = 14
        vLIN = 16
        vBS = 18
        vC0, vC1, vONE = 20, 22, 24
        vAD = 26
        vT = 248
        ACC2, ACC1, WF, XF, GACC = 32, 64, 96, 128, 240
        acc = lambda base, ft, nt: base + (ft * 2 + nt) * 4
        XSLOT = lambda c: (c % 6) * 4096
        W2OFF, W1OFF, MISC = 24576, 4096, 38912

        a(f"s_mul_i32 s{s_t2}, s{s_t0}, 37")
        a(f"s_lshr_b32 s{s_t2}, s{s_t2}, 8")
        a(f"s_mul_i32 s{s_t3}, s{s_t2}, 7")
        a(f"s_sub_u32 s{s_dj}, s{s_t0}, s{s_t3}")
        a(f"s_and_b32 s{s_th}, s{s_t1}, 1")
        a(f"s_lshr_b32 s{s_t1}, s{s_t1}, 1")
        a(f"s_lshl_b32 s{s_t1}, s{s_t1}, 2")
        a(f"s_add_u32 s{s_i}, s{s_t1}, s{s_t2}")
        a(f"s_mul_i32 s{s_j}, s{s_th}, 7")
        a(f"s_add_u32 s{s_j}, s{s_j}, s{s_dj}")
        a(f"s_mul_i32 s{s_wb}, s{s_w}, {REGION}")
        a(f"v_mov_b32 v{vZ}, 0")
        a(f"v_lshlrev_b32 v{vLIN}, 4, v1")

        KR, VR, SKR = 32, 44, 52
        KU, VU, SU, KVR, KVP = 56, 78, 94, 102, 120
        vKO, vKO2, vSO = vT, vT + 1, vT + 2
        a(f"s_lshl_b32 s{s_t0}, s{s_i}, 1")
        a(f"s_add_u32 s{s_t0}, s{s_t0}, s{s_th}")
        a(f"s_lshl_b32 s{s_t1}, s{s_t0}, 2")
        a(f"s_add_u32 s{s_t1}, s{s_t1}, s{s_w}")
        a(f"s_mul_i32 s{s_t2}, s{s_t1}, {16*896}")
        a(f"s_lshl_b32 s{s_t3}, s{s_dj}, 7")
        a(f"s_add_u32 s{s_t2}, s{s_t2}, s{s_t3}")
        a(f"v_lshrrev_b32 v{vKO}, 5, v1")
        a(f"v_and_b32 v{vSO}, 31, v1")
        a(f"v_mul_u32_u24 v{vKO}, {8*896}, v{vKO}")
        a(f"v_lshl_add_u32 v{vKO}, v{vSO}, 2, v{vKO}")
        a(f"v_add_u32 v{vKO}, s{s_t2}, v{vKO}")
        a(f"v_subrev_u32 v{vKO2}, {3*896}, v{vKO}")
        a(f"s_lshl_b32 s{s_t3}, s{s_dj}, 9")
        a(f"v_lshl_add_u32 v{vSO}, v{vSO}, 4, s{s_t3}")
        a(f"s_mov_b32 s{s_so}, {4*896}")
        a("s_waitcnt lgkmcnt(0)")
        if self.stamps:
            a(f"s_mov_b32 s78, s{s_ts}"); self.names.append("start"); self.nst = 1
        a(f"buffer_load_dword v{vTAG}, v{vZ}, {srd(sWS)}, 0 offen sc1", tag="epoch")
        a(f"buffer_load_dwordx4 v[{SKR}:{SKR+3}], v{vSO}, {srd(sSH)}, 0 offen", tag="kv")
        for r in range(3): a(f"buffer_load_dword v{KR+r}, v{vKO2}, {srd(sK)}, 0 offen offset:{896*r}", tag="kv")
        for r in range(8):
            so = "0" if r < 4 else f"s{s_so}"
            a(f"buffer_load_dword v{KR+3+r}, v{vKO}, {srd(sK)}, {so} offen offset:{896*(r&3)}", tag="kv")
            a(f"buffer_load_dword v{VR+r}, v{vKO}, {srd(sV)}, {so} offen offset:{896*(r&3)}", tag="kv")

        t0, t1, t2 = vT + 3, vT + 4, vT + 5
        a(f"v_lshrrev_b32 v{t0}, 5, v1")
        a(f"v_bfe_u32 v{t1}, v1, 4, 1")
        a(f"v_lshl_or_b32 v{t0}, v{t1}, 1, v{t0}")
        a(f"v_and_b32 v{t1}, 7, v1")
        a(f"v_xor_b32 v{t1}, v{t1}, v{t0}")
        a(f"v_lshlrev_b32 v{t1}, 4, v{t1}")
        a(f"v_lshrrev_b32 v{t2}, 3, v1")
        a(f"s_lshl_b32 s{s_t1}, s{s_i}, 2")
        a(f"s_add_u32 s{s_t1}, s{s_t1}, s{s_w}")
        a(f"s_mul_i32 s{s_t2}, s{s_t1}, {32*896}")
        a(f"v_mul_u32_u24 v{vXD}, 896, v{t2}")
        a(f"v_add3_u32 v{vXD}, v{vXD}, v{t1}, s{s_t2}")
        a(f"v_xor_b32 v{vXD+1}, 64, v{vXD}")
        a(f"v_add_u32 v{vXD+1}, {8*896-1024}, v{vXD+1}")
        a(f"v_add_u32 v{vXD+2}, {16*896-2048}, v{vXD}")
        a(f"v_add_u32 v{vXD+3}, {16*896-2048}, v{vXD+1}")
        t3 = vT + 6
        a(f"v_bfe_u32 v{t3}, v1, 4, 1")
        a(f"s_and_b32 s{s_t2}, s{s_w}, 2")
        a(f"v_or_b32 v{t3}, s{s_t2}, v{t3}")
        a(f"v_lshlrev_b32 v{t3}, 1, v{t3}")
        a(f"v_xor_b32 v{t3}, v{t3}, v1")
        a(f"v_and_b32 v{t3}, 7, v{t3}")
        a(f"v_lshlrev_b32 v{t3}, 4, v{t3}")
        a(f"s_mul_i32 s{s_t2}, s{s_w}, {8*3584}")
        a(f"s_lshl_b32 s{s_t3}, s{s_j}, 7")
        a(f"s_add_u32 s{s_t2}, s{s_t2}, s{s_t3}")
        a(f"v_mul_u32_u24 v{vWD}, 3584, v{t2}")
        a(f"v_add3_u32 v{vWD}, v{vWD}, v{t3}, s{s_t2}")
        a(f"v_add_u32 v{vWD+1}, {32*3584-1024}, v{vWD}")

        def dma_x(c):
            a(f"s_add_u32 m0, s{s_wb}, {XSLOT(c)}")
            a(f"s_mov_b32 s{s_so2}, {c*128}")
            for q in range(4):
                a(f"buffer_load_dwordx4 v{vXD+q}, {srd(sQ)}, s{s_so2} offen offset:{q*1024} lds", tag=f"x{c}")
        def dma_w(c, half):
            off = W2OFF if half else W1OFF
            a(f"s_add_u32 m0, s{s_wb}, {off + c*2048}")
            a(f"s_mov_b32 s{s_so2}, {c*64*3584 + (1792 if half else 0)}")
            for q in range(2):
                a(f"buffer_load_dwordx4 v{vWD+q}, {srd(sWIN)}, s{s_so2} offen offset:{q*1024} lds", tag=f"w{half}_{c}")
        for c in range(6):
            dma_x(c); dma_w(c, 1)
        dma_w(6, 1)

        a(f"s_lshl_b32 s{s_t2}, s{s_t1}, 17")
        a(f"v_lshlrev_b32 v{vAD}, 12, v{t2}")
        a(f"v_add3_u32 v{vAD}, v{vAD}, v{t1}, s{s_t2}")
        a(f"v_xor_b32 v{vAD+1}, 64, v{vAD}")
        a(f"v_add_u32 v{vAD+1}, {8*4096-1024}, v{vAD+1}")
        a(f"v_add_u32 v{vAD+2}, {16*4096-2048}, v{vAD}")
        a(f"v_add_u32 v{vAD+3}, {16*4096-2048}, v{vAD+1}")
        a(f"v_bfe_u32 v{t1}, v1, 1, 1")
        a(f"v_bfe_u32 v{t2}, v1, 2, 1")
        a(f"v_lshl_or_b32 v{t1}, v{t1}, 1, v{t2}")
        a(f"v_bfe_u32 v{t2}, v1, 3, 1")
        a(f"v_lshl_or_b32 v{t1}, v{t2}, 2, v{t1}")
        a(f"v_xor_b32 v{t1}, v{t1}, v{t0}")
        a(f"v_and_b32 v{t2}, 15, v1")
        a(f"v_lshlrev_b32 v{t2}, 7, v{t2}")
        a(f"v_lshl_add_u32 v{t1}, v{t1}, 4, v{t2}")
        a(f"v_add_u32 v{vXR}, s{s_wb}, v{t1}")
        a(f"v_xor_b32 v{vXR+1}, 64, v{vXR}")
        a(f"v_mul_u32_u24 v{t0}, {REGION}, v{t0}")
        a(f"v_bfe_u32 v{t1}, v1, 2, 2")
        a(f"v_lshl_add_u32 v{t0}, v{t1}, 7, v{t0}")
        a(f"v_and_b32 v{t1}, 3, v1")
        a(f"v_lshl_add_u32 v{t0}, v{t1}, 3, v{t0}")
        a(f"v_bfe_u32 v{t1}, v1, 3, 2")
        a(f"v_lshl_add_u32 v{vTR}, v{t1}, 5, v{t0}")
        for ft in range(1, 4): a(f"v_xor_b32 v{vTR+ft}, {32*ft}, v{vTR}")
        c0 = -2.0 * 0.7978845608028654 * 1.4426950408889634
        for r, val in ((vC0, c0), (vC1, c0 * 0.044715), (vONE, 1.0)):
            a(f"v_mov_b32 v{r}, {f2u(val):#x}"); a(f"v_mov_b32 v{r+1}, {f2u(val):#x}")

        a.wait(vm="kv")
        self.stamp("kv_loaded")
        self.get_tag(vTAG, vTAG)
        def unpack(dst, src):
            a(f"v_lshlrev_b32 v{dst}, 16, v{src}"); a(f"v_and_b32 v{dst+1}, 0xffff0000, v{src}")
        for jj in range(4):
            for ch in range(2):
                src = SKR + 2 * ch + (jj >> 1)
                if jj & 1: a(f"v_and_b32 v{SU+2*jj+ch}, 0xffff0000, v{src}")
                else: a(f"v_lshlrev_b32 v{SU+2*jj+ch}, 16, v{src}")
        for r in range(11): unpack(KU + 2 * r, KR + r)
        for r in range(8): unpack(VU + 2 * r, VR + r)
        pr = lambda b: f"v[{b}:{b+1}]"
        for jj in range(4):
            for r in range(8):
                kk = KU + 2 * (r + 3 - jj)
                if jj == 0: a(f"v_pk_mul_f32 {pr(KVR+2*r)}, {pr(kk)}, {pr(SU)}")
                else: a(f"v_pk_fma_f32 {pr(KVR+2*r)}, {pr(kk)}, {pr(SU+2*jj)}, {pr(KVR+2*r)}")
        for r in range(8): a(f"v_pk_mul_f32 {pr(KVR+2*r)}, {pr(KVR+2*r)}, {pr(VU+2*r)}")
        for ch in range(2):
            for d in range(4):
                a(f"v_cvt_pk_bf16_f32 v{KVP+4*ch+d}, v{KVR+2*(7-2*d)+ch}, v{KVR+2*(6-2*d)+ch}")
        a(f"s_lshl_b32 s{s_t1}, s{s_t0}, 2")
        a(f"s_add_u32 s{s_t1}, s{s_t1}, s{s_w}")
        a(f"s_mul_i32 s{s_t2}, s{s_t1}, {2*7168}")
        a(f"s_lshl_b32 s{s_t3}, s{s_dj}, 10")
        a(f"s_add_u32 s{s_t2}, s{s_t2}, s{s_t3}")
        a(f"s_add_u32 s{s_t2}, s{s_t2}, {WS_KVT}")
        a(f"v_lshrrev_b32 v{t0}, 5, v1")
        a(f"v_mul_u32_u24 v{t0}, {7168-512}, v{t0}")
        a(f"v_add_u32 v{t0}, v{t0}, v{vLIN}")
        for ch in range(2):
            a(f"buffer_store_dwordx4 v[{KVP+4*ch}:{KVP+4*ch+3}], v{t0}, {srd(sWS)}, s{s_t2} offen offset:{512*ch} sc1", tag="kvst")
        a(f"s_lshl_b32 s{s_t3}, s{s_dj}, 7")
        a(f"s_add_u32 s{s_t1}, s{s_t1}, s{s_t3}")
        a(f"s_lshl_b32 s{s_t1}, s{s_t1}, 2")
        a(f"s_add_u32 s{s_so}, s{s_t1}, {WS_FKV}")
        self.stamp("kv_done")

        def read_x(c):
            for uu in range(2):
                for nt in range(2):
                    r = XF + ((2 * c + uu) * 2 + nt) * 4
                    a(f"ds_read_b128 v[{r}:{r+3}], v{vXR+uu} offset:{XSLOT(c) + nt*2048}", tag=f"xr{c}")
        def tr_w(u, off, buf):
            out = []
            for ft in range(4):
                for hh in range(2):
                    r = WF + buf * 16 + ft * 4 + hh * 2
                    out.append((f"ds_read_b64_tr_b16 v[{r}:{r+1}], v{vTR+ft} offset:{off + u*1024 + hh*512}", f"wr{u}_{ft}"))
            return out
        def mfma1(base, u, buf, extra):
            extra = list(extra)
            for ft in range(4):
                a.wait(lg=f"wr{u}_{ft}")
                for nt in range(2):
                    d = acc(base, ft, nt); wr = WF + buf * 16 + ft * 4; xr = XF + (u * 2 + nt) * 4
                    cin = "0" if u == 0 else f"v[{d}:{d+3}]"
                    a(f"v_mfma_f32_16x16x32_bf16 v[{d}:{d+3}], v[{wr}:{wr+3}], v[{xr}:{xr+3}], {cin}")
                    if extra:
                        s, t = extra.pop(0); a(s, tag=t)
            for s, t in extra: a(s, tag=t)

        for c in range(7):
            a.wait(vm=[f"x{c}", f"w1_{c}"])
            a("s_barrier")
            read_x(c)
            for s, t in tr_w(2 * c, W2OFF, 0): a(s, tag=t)
            a.wait(lg=f"xr{c}")
            if c == 0: dma_x(6)
            if 1 <= c <= 3: dma_w(2 * c - 2, 0); dma_w(2 * c - 1, 0)
            if c == 4: dma_w(6, 0)
            mfma1(ACC2, 2 * c, 0, tr_w(2 * c + 1, W2OFF, 1))
            mfma1(ACC2, 2 * c + 1, 1, [])
            if c == 6:
                a.wait(vm="kvst")
                self.flag(s_so, vZ, vTAG)
        self.stamp("z2_gemm")

        GWF = 200
        a(f"v_lshrrev_b32 v{t0}, 5, v1")
        a(f"v_bfe_u32 v{t1}, v1, 4, 1")
        a(f"v_lshl_or_b32 v{t0}, v{t1}, 1, v{t0}")
        a(f"v_lshlrev_b32 v{t0}, 4, v{t0}")
        for u in range(14):
            a(f"buffer_load_dwordx4 a[{GWF+4*u}:{GWF+4*u+3}], v{t0}, {srd(sGW)}, 0 offen offset:{64*u}", tag="gw")
        a(f"s_lshl_b32 s{s_t1}, s{s_i}, 2")
        a(f"s_add_u32 s{s_t1}, s{s_t1}, s{s_w}")
        a(f"s_lshl_b32 s{s_t2}, s{s_t1}, 6")
        a(f"v_and_b32 v{t1}, 15, v1")
        a(f"v_lshlrev_b32 v{t1}, 1, v{t1}")
        for nt in range(2):
            a(f"buffer_load_ushort v{vBS+nt}, v{t1}, {srd(sBSP)}, s{s_t2} offen offset:{32*nt}", tag="gw")

        ASLOTS = [20480, 0, 24576, 28672, 32768]
        def areg(c):
            if c < 16: return ("a", 16 * c)
            if c < 23: return ("v", 144 + 16 * (c - 16))
            return ("a", 16 * (c - 23))
        def dma_a(c, slot):
            out = [(f"s_add_u32 m0, s{s_wb}, {slot}", None), (f"s_mov_b32 s{s_so2}, {c*128}", None)]
            for q in range(4):
                out.append((f"buffer_load_dwordx4 v{vAD+q}, {srd(sWSP)}, s{s_so2} offen offset:{q*1024} lds", f"a{c}"))
            return out
        def read_a(c, slot):
            out = []
            k, b = areg(c)
            for uu in range(2):
                for nt in range(2):
                    r = b + (uu * 2 + nt) * 4
                    out.append((f"ds_read_b128 {k}[{r}:{r+3}], v{vXR+uu} offset:{slot + nt*2048}", f"ar{c}"))
            return out
        def emit(lst):
            for s, t in lst: a(s, tag=t)

        a("s_barrier")
        for c in range(5): emit(dma_a(c, ASLOTS[c]))

        self.gelu(ACC2, 32, vT, vC0, vC1, vONE)
        S = WF
        for nt in range(2):
            first = True
            for ft in range(4):
                for p in range(2):
                    z = pr(acc(ACC2, ft, nt) + 2 * p)
                    if first:
                        a(f"v_pk_mul_f32 {pr(S+4*nt+2)}, {z}, {z}")
                        z0 = z; first = False
                    else:
                        a(f"v_pk_add_f32 {pr(S+4*nt)}, {z}, {z0 if z0 else pr(S+4*nt)}"); z0 = None
                        a(f"v_pk_fma_f32 {pr(S+4*nt+2)}, {z}, {z}, {pr(S+4*nt+2)}")
        for q in range(4): a(f"v_add_f32 v{S+8+q}, v{S+2*q}, v{S+2*q+1}")
        A_, B_, C_, D_ = S + 8, S + 9, S + 10, S + 11
        a(f"v_permlane32_swap_b32 v{A_}, v{C_}")
        a(f"v_permlane32_swap_b32 v{B_}, v{D_}")
        a(f"v_add_f32 v{A_}, v{A_}, v{C_}")
        a(f"v_add_f32 v{B_}, v{B_}, v{D_}")
        a(f"v_permlane16_swap_b32 v{A_}, v{B_}")
        a(f"v_add_f32 v{S+12}, v{A_}, v{B_}")
        a(f"v_mov_b32 v{S+13}, v{vTAG}")
        a(f"s_mul_i32 s{s_t2}, s{s_t1}, {14*512}")
        a(f"s_add_u32 s{s_so}, s{s_t2}, {WS_STATS}")
        a(f"s_lshl_b32 s{s_t3}, s{s_j}, 9")
        a(f"s_add_u32 s{s_t2}, s{s_so}, s{s_t3}")
        vL8 = 17
        a(f"v_lshlrev_b32 v{vL8}, 3, v1")
        a(f"buffer_store_dwordx2 v[{S+12}:{S+13}], v{vL8}, {srd(sWS)}, s{s_t2} offen sc1", tag="stst")
        self.stamp("stats_pub")

        a.wait(vm=["w0_6", "gw"])
        a("s_barrier")
        nxt_rd, nxt_dma = 0, 5
        for s, t in tr_w(0, W1OFF, 0): a(s, tag=t)
        for u in range(14):
            ex = tr_w(u + 1, W1OFF, (u + 1) & 1) if u < 13 else []
            mfma1(ACC1, u, u & 1, ex)
            for nt in range(2):
                d = GACC + 4 * nt; xr = XF + (u * 2 + nt) * 4
                cin = "0" if u == 0 else f"v[{d}:{d+3}]"
                a(f"v_mfma_f32_16x16x32_bf16 v[{d}:{d+3}], a[{GWF+4*u}:{GWF+4*u+3}], v[{xr}:{xr+3}], {cin}")
        self.stamp("z1_gemm")

        PS = XF
        a(f"s_add_u32 s{s_t2}, s{s_so}, 4096")
        loads = []
        for jj in range(14):
            so, off = (s_so, jj * 512) if jj < 8 else (s_t2, (jj - 8) * 512)
            loads.append(f"buffer_load_dwordx2 v[{PS+2*jj}:{PS+2*jj+1}], v{vL8}, {srd(sWS)}, s{so} offen offset:{off} sc1")
        self.poll(loads, [PS + 2 * jj + 1 for jj in range(14)], vT)
        self.stamp("stats_got")
        for st in (14, 8, 4, 2):
            pass
        vals = [PS + 2 * jj for jj in range(14)]
        while len(vals) > 1:
            nv = []
            for q in range(0, len(vals) - 1, 2):
                a(f"v_add_f32 v{vals[q]}, v{vals[q]}, v{vals[q+1]}"); nv.append(vals[q])
            if len(vals) & 1: nv.append(vals[-1])
            vals = nv
        T_, U_, T2, U2 = PS, PS + 1, PS + 2, PS + 3
        a(f"v_mov_b32 v{U_}, v{T_}")
        a(f"v_permlane16_swap_b32 v{T_}, v{U_}")
        a(f"v_mul_f32 v{T_}, {f2u(1/896):#x}, v{T_}")
        a(f"v_mul_f32 v{U_}, {f2u(1/896):#x}, v{U_}")
        a(f"v_fma_f32 v{U_}, -v{T_}, v{T_}, v{U_}")
        a(f"v_max_f32 v{U_}, 0, v{U_}")
        a(f"v_add_f32 v{U_}, {f2u(1e-5):#x}, v{U_}")
        a(f"v_rsq_f32 v{U_}, v{U_}")
        a(f"v_mul_f32 v{T_}, v{T_}, v{U_}")
        a(f"v_sub_f32 v{T_}, 0, v{T_}")
        R0, M0_, R1, M1_ = PS + 4, PS + 6, PS + 8, PS + 10
        a(f"v_mov_b32 v{M0_}, v{T_}"); a(f"v_mov_b32 v{M1_}, v{T_}")
        a(f"v_mov_b32 v{R0}, v{U_}"); a(f"v_mov_b32 v{R1}, v{U_}")
        a(f"v_permlane32_swap_b32 v{M0_}, v{M1_}")
        a(f"v_permlane32_swap_b32 v{R0}, v{R1}")
        ZP = PS + 12
        a(f"s_lshl_b32 s{s_t2}, s{s_j}, 6")
        a(f"s_add_u32 s{s_t2}, s{s_t2}, s{s_t1}")
        a(f"s_lshl_b32 s{s_t3}, s{s_t2}, 12")
        a(f"s_add_u32 s{s_t3}, s{s_t3}, {WS_Z2N}")
        a(f"v_bfe_u32 v{t0}, v1, 2, 2")
        a(f"v_lshrrev_b32 v{t1}, 4, v1")
        a(f"v_lshlrev_b32 v{t0}, 8, v{t0}")
        a(f"v_lshl_add_u32 v{t0}, v{t1}, 6, v{t0}")
        a(f"v_and_b32 v{t1}, 3, v1")
        a(f"v_lshl_add_u32 v{t0}, v{t1}, 4, v{t0}")
        for ft in range(4):
            for nt in range(2):
                z = acc(ACC2, ft, nt); R, M = (R0, M0_) if nt == 0 else (R1, M1_)
                for p in range(2):
                    a(f"v_pk_fma_f32 {pr(z+2*p)}, {pr(z+2*p)}, {pr(R)}, {pr(M)} op_sel_hi:[1,0,0]")
                for p in range(2):
                    a(f"v_cvt_pk_bf16_f32 v{ZP+4*ft+2*nt+p}, v{z+2*p}, v{z+2*p+1}")
            a(f"buffer_store_dwordx4 v[{ZP+4*ft}:{ZP+4*ft+3}], v{t0}, {srd(sWS)}, s{s_t3} offen offset:{1024*ft} sc1", tag="zst")
        a(f"s_lshl_b32 s{s_t2}, s{s_t2}, 2")
        a(f"s_add_u32 s{s_t2}, s{s_t2}, {WS_FZ2}")
        for c in range(5): emit(read_a(c, ASLOTS[c]))
        a.wait(vm="zst")
        self.flag(s_t2, vZ, vTAG)
        self.stamp("z2n_pub")
        a("s_waitcnt lgkmcnt(0)")
        npre = self.npre
        for c in range(5, min(10, npre)): emit(dma_a(c, ASLOTS[c % 5]))

        self.gelu(ACC1, 32, vT, vC0, vC1, vONE)
        for nt in range(2):
            d = GACC + 4 * nt
            a(f"v_mul_f32 v{d}, {f2u(-1.4426950408889634):#x}, v{d}")
            a(f"v_exp_f32 v{d}, v{d}")
            a(f"v_add_f32 v{d}, 1.0, v{d}")
            a(f"v_rcp_f32 v{d}, v{d}")
        a(f"v_and_b32 v{t0}, 15, v1")
        a(f"v_lshl_add_u32 v{t0}, v{t0}, 2, s{s_wb}")
        for nt in range(2): a(f"ds_write_b32 v{t0}, v{GACC+4*nt} offset:{MISC + 64*nt}")
        for nt in range(2): a(f"v_lshlrev_b32 v{vBS+nt}, 16, v{vBS+nt}")
        for ft in range(4):
            for nt in range(2):
                for r in range(4): a(f"v_mov_b32 v{acc(ACC2, ft, nt)+r}, v{vBS+nt}")
        for c in range(5, npre):
            a.wait(vm=f"a{c}")
            emit(read_a(c, ASLOTS[c % 5]))
            if c + 5 < npre:
                a.wait(lg=f"ar{c}")
                emit(dma_a(c + 5, ASLOTS[c % 5]))
        a(f"v_lshrrev_b32 v{t0}, 5, v1")
        a(f"v_and_b32 v{t1}, 3, v1")
        a(f"v_lshlrev_b32 v{t0}, 9, v{t0}")
        a(f"v_lshl_add_u32 v{t0}, v{t1}, 6, v{t0}")
        a(f"v_bfe_u32 v{t1}, v1, 2, 2")
        a(f"v_lshl_add_u32 v{t0}, v{t1}, 4, v{t0}")
        a(f"v_bfe_u32 v{t1}, v1, 4, 1")
        a(f"v_lshl_add_u32 v{vTR}, v{t1}, 3, v{t0}")
        a(f"v_add_u32 v{vTR+1}, {2*REGION}, v{vTR}")
        a("s_waitcnt lgkmcnt(0)")
        a("s_barrier")
        self.stamp("pre_done")

        a(f"s_lshl_b32 s{s_t2}, s{s_j}, 8")
        a(f"s_add_u32 s{s_t2}, s{s_t2}, {WS_FZ2}")
        a(f"v_lshlrev_b32 v{t0}, 2, v1")
        self.poll([f"buffer_load_dword v{t1}, v{t0}, {srd(sWS)}, s{s_t2} offen sc1"], [t1], t2)
        self.stamp("z2n_got")

        NB = 6
        BF = 96
        TSL = [24576, 28672, 32768]
        s_zb = s_so
        a(f"s_lshl_b32 s{s_zb}, s{s_j}, 6")
        a(f"s_add_u32 s{s_zb}, s{s_zb}, s{s_w}")
        a(f"s_lshl_b32 s{s_zb}, s{s_zb}, 12")
        a(f"s_add_u32 s{s_zb}, s{s_zb}, {WS_Z2N}")
        def dma_b(st):
            out = [(f"s_add_u32 m0, s{s_wb}, {(st % NB)*4096}", None), (f"s_add_u32 s{s_t3}, s{s_zb}, {st*16384}", None)]
            for q in range(4):
                out.append((f"buffer_load_dwordx4 v{vLIN}, {srd(sWS)}, s{s_t3} offen offset:{q*1024} sc1 lds", f"b{st}"))
            return out
        def tr_b(sb):
            out = []
            st, wv = sb >> 2, sb & 3
            for ft in range(4):
                for hh in range(2):
                    r = BF + (sb % 3) * 16 + ft * 4 + hh * 2
                    off = (wv & 1) * REGION + (st % NB) * 4096 + ft * 1024 + hh * 256
                    out.append((f"ds_read_b64_tr_b16 v[{r}:{r+1}], v{vTR+(wv>>1)} offset:{off}", f"br{sb}"))
            return out
        for st in range(NB - 1): emit(dma_b(st))
        tail = list(range(npre, 32))
        for q, c in enumerate(tail[:3]): emit(dma_a(c, TSL[q]))
        a.wait(vm="b0")
        a("s_barrier")
        emit(tr_b(0)); emit(tr_b(1))
        self.stamp("b0_got")
        ntail = len(tail)
        rd_step = {}
        for q, c in enumerate(tail):
            lo = 4 + (q * 44) // max(ntail, 1)
            if c >= 23: lo = max(lo, 2 * (c - 23) + 2)
            assert lo <= 2 * c - 2
            rd_step[lo] = q
        assert len(rd_step) == ntail
        pend = []
        for sb in range(64):
            c, uu = sb >> 1, sb & 1
            gaps = [[] for _ in range(8)]
            if sb + 2 < 64:
                for m, x in enumerate(tr_b(sb + 2)): gaps[m].append(x)
            a.wait(lg=[f"br{sb}", f"ar{c}"])
            if (sb - 1) in rd_step:
                q = rd_step[sb - 1]
                if q + 3 < ntail:
                    a.wait(lg=f"ar{tail[q]}")
                    pend += dma_a(tail[q + 3], TSL[q % 3])
            pre = []
            if sb in rd_step:
                q = rd_step[sb]
                assert not any(t == f"a{tail[q]}" for _, t in pend)
                a.wait(vm=f"a{tail[q]}")
                for m, x in enumerate(read_a(tail[q], TSL[q % 3])): gaps[2 * m].append(x)
            for m in (1, 3, 5, 7):
                if pend: gaps[m].append(pend.pop(0))
            k, b = areg(c)
            for m in range(8):
                ft, nt = m >> 1, m & 1
                d = acc(ACC2, ft, nt); br = BF + (sb % 3) * 16 + ft * 4; ar = b + (uu * 2 + nt) * 4
                a(f"v_mfma_f32_16x16x32_bf16 v[{d}:{d+3}], v[{br}:{br+3}], {k}[{ar}:{ar+3}], v[{d}:{d+3}]")
                emit(gaps[m])
            st = sb >> 2
            if (sb & 3) == 1 and st + 1 < 16:
                assert not any(t == f"b{st+1}" for _, t in pend)
                a.wait(vm=f"b{st+1}")
                a("s_barrier")
                if st - 1 + NB < 16: pend += dma_b(st - 1 + NB)
        assert not pend
        self.stamp("p2_done")

        PP = 96
        a(f"s_mul_i32 s{s_t2}, s{s_t1}, {2*28}")
        a(f"s_lshl_b32 s{s_t3}, s{s_j}, 1")
        a(f"s_add_u32 s{s_t2}, s{s_t2}, s{s_t3}")
        a(f"s_lshl_b32 s{s_t2}, s{s_t2}, 10")
        a(f"s_add_u32 s{s_t2}, s{s_t2}, {WS_P}")
        a(f"s_add_u32 s{s_t3}, s{s_t2}, {28*1024}")
        for nt in range(2):
            for q in range(2):
                r = PP + (nt * 2 + q) * 4
                for h in range(2):
                    z = acc(ACC2, 2 * q + h, nt); z1 = acc(ACC1, 2 * q + h, nt)
                    for p in range(2): a(f"v_pk_mul_f32 {pr(z+2*p)}, {pr(z+2*p)}, {pr(z1+2*p)}")
                    for p in range(2): a(f"v_cvt_pk_bf16_f32 v{r+2*h+p}, v{z+2*p}, v{z+2*p+1}")
                a(f"buffer_store_dwordx4 v[{r}:{r+3}], v{vLIN}, {srd(sWS)}, s{s_t2 if nt == 0 else s_t3} offen offset:{1024*q} sc1", tag="pst")
        a(f"s_lshl_b32 s{s_t2}, s{s_t1}, 4")
        a(f"s_add_u32 s{s_t2}, s{s_t2}, s{s_j}")
        a(f"s_lshl_b32 s{s_t2}, s{s_t2}, 2")
        a(f"s_add_u32 s{s_t2}, s{s_t2}, {WS_FP}")
        a("s_barrier")
        vOD = vXD
        a(f"v_lshrrev_b32 v{t0}, 4, v1")
        a(f"v_lshlrev_b32 v{t0}, 1, v{t0}")
        a(f"v_xor_b32 v{t0}, v{t0}, v1")
        a(f"v_and_b32 v{t0}, 7, v{t0}")
        a(f"v_lshlrev_b32 v{t0}, 4, v{t0}")
        a(f"v_lshrrev_b32 v{t2}, 3, v1")
        a(f"s_mul_i32 s{s_t0}, s{s_w}, {8*896}")
        a(f"s_lshl_b32 s{s_t3}, s{s_dj}, 7")
        a(f"s_add_u32 s{s_t0}, s{s_t0}, s{s_t3}")
        a(f"v_mul_u32_u24 v{vOD}, 896, v{t2}")
        a(f"v_add3_u32 v{vOD}, v{vOD}, v{t0}, s{s_t0}")
        for q in range(1, 4): a(f"v_add_u32 v{vOD+q}, {q*(32*896-1024)}, v{vOD}")
        a.wait(vm="pst")
        self.flag(s_t2, vZ, vTAG)
        self.stamp("p_pub")
        for g4 in range(7):
            a(f"s_add_u32 m0, s{s_wb}, {g4*4096}")
            a(f"s_mov_b32 s{s_so2}, {g4*128*896}")
            for q in range(4):
                a(f"buffer_load_dwordx4 v{vOD+q}, {srd(sWOUT)}, s{s_so2} offen offset:{q*1024} lds", tag="wo")
        QF, YF, AP, GV = 112, 120, 128, 144
        a(f"s_lshl_b32 s{s_t0}, s{s_i}, 1")
        a(f"s_add_u32 s{s_t0}, s{s_t0}, s{s_th}")
        a(f"s_and_b32 s{s_t2}, s{s_w}, 1")
        a(f"s_lshl_b32 s{s_t3}, s{s_t0}, 1")
        a(f"s_add_u32 s{s_t3}, s{s_t3}, s{s_t2}")
        a(f"s_mul_i32 s{s_t3}, s{s_t3}, {32*896}")
        a(f"s_lshl_b32 s{s_so}, s{s_dj}, 7")
        a(f"s_add_u32 s{s_t3}, s{s_t3}, s{s_so}")
        a(f"s_lshr_b32 s{s_so}, s{s_w}, 1")
        a(f"s_lshl_b32 s{s_so}, s{s_so}, 6")
        a(f"s_add_u32 s{s_so}, s{s_t3}, s{s_so}")
        a(f"s_add_u32 s{s_so2}, s{s_so}, {16*896}")
        vRW = vWD
        a(f"v_and_b32 v{t1}, 15, v1")
        a(f"v_mul_u32_u24 v{vRW}, 896, v{t1}")
        a(f"v_lshrrev_b32 v{t1}, 4, v1")
        a(f"v_lshl_add_u32 v{vRW+1}, v{t1}, 3, v{vRW}")
        for dt2 in range(2):
            for nt in range(2):
                r = QF + (dt2 * 2 + nt) * 2
                a(f"buffer_load_dwordx2 v[{r}:{r+1}], v{vRW+1}, {srd(sQ)}, s{s_so if nt == 0 else s_so2} offen offset:{32*dt2}", tag="q")
        a(f"s_lshr_b32 s{s_t3}, s{s_t0}, 4")
        a(f"s_mul_i32 s{s_t3}, s{s_t3}, 7")
        a(f"s_add_u32 s{s_t3}, s{s_t3}, s{s_dj}")
        a(f"s_lshl_b32 s{s_t3}, s{s_t3}, 8")
        a(f"s_add_u32 s{s_t3}, s{s_t3}, {WS_FY}")
        a(f"v_lshlrev_b32 v{t1}, 2, v1")
        self.poll([f"buffer_load_dword v{t3}, v{t1}, {srd(sWS)}, s{s_t3} offen sc1"], [t3], vT)
        self.stamp("y_got")
        YOFF = 28672
        a(f"v_bfe_u32 v{t1}, v1, 3, 1")
        a(f"v_lshrrev_b32 v{t3}, 4, v1")
        a(f"v_lshl_add_u32 v{t1}, v{t1}, 5, v{t3}")
        a(f"v_lshl_add_u32 v{t1}, v{t1}, 12, v{t0}")
        a(f"v_add_u32 v{t3}, {4*4096-1024}, v{t1}")
        a(f"s_lshl_b32 s{s_t3}, s{s_dj}, 3")
        a(f"s_add_u32 s{s_t3}, s{s_t3}, s{s_w}")
        a(f"s_lshl_b32 s{s_t3}, s{s_t3}, 15")
        a(f"s_lshl_b32 s{s_cnt}, s{s_t0}, 7")
        a(f"s_add_u32 s{s_t3}, s{s_t3}, s{s_cnt}")
        a(f"s_add_u32 s{s_t3}, s{s_t3}, {WS_YT}")
        a(f"s_add_u32 m0, s{s_wb}, {YOFF}")
        a(f"buffer_load_dwordx4 v{t1}, {srd(sWS)}, s{s_t3} offen sc1 lds", tag="y")
        a(f"buffer_load_dwordx4 v{t3}, {srd(sWS)}, s{s_t3} offen offset:1024 sc1 lds", tag="y")
        a(f"v_lshrrev_b32 v{t0}, 5, v1")
        a(f"v_bfe_u32 v{t1}, v1, 2, 3")
        a(f"v_lshlrev_b32 v{t2}, 7, v{t1}")
        a(f"v_and_b32 v{t3}, 3, v1")
        a(f"v_lshl_add_u32 v{t2}, v{t3}, 3, v{t2}")
        a(f"v_bfe_u32 v{t3}, v1, 3, 2")
        a(f"v_lshl_add_u32 v{t2}, v{t3}, 5, v{t2}")
        a(f"s_and_b32 s{s_t3}, s{s_w}, 2")
        a(f"s_lshl_b32 s{s_t3}, s{s_t3}, 5")
        a(f"v_xor_b32 v{t3}, s{s_t3}, v{t2}")
        a(f"v_mul_u32_u24 v{t1}, {REGION}, v{t0}")
        a(f"v_add_u32 v{vTR}, v{t1}, v{t3}")
        a(f"v_xor_b32 v{vTR+1}, 32, v{vTR}")
        a(f"v_add_u32 v{vTR+2}, {2*REGION}, v{vTR}")
        a(f"v_add_u32 v{vTR+3}, {2*REGION}, v{vTR+1}")
        vYA = vXR
        a(f"s_lshl_b32 s{s_t3}, s{s_t2}, 6")
        a(f"v_xor_b32 v{t3}, s{s_t3}, v{t2}")
        a(f"v_lshl_add_u32 v{t3}, v{t0}, 10, v{t3}")
        a(f"s_and_b32 s{s_t3}, s{s_w}, 2")
        a(f"s_mul_i32 s{s_t3}, s{s_t3}, {REGION}")
        a(f"s_add_u32 s{s_t3}, s{s_t3}, {YOFF}")
        a(f"v_add_u32 v{vYA}, s{s_t3}, v{t3}")
        a(f"v_xor_b32 v{vYA+1}, 32, v{vYA}")
        a(f"s_lshl_b32 s{s_t3}, s{s_th}, 1")
        a(f"s_add_u32 s{s_t3}, s{s_t3}, s{s_t2}")
        a(f"s_mul_i32 s{s_t3}, s{s_t3}, {REGION}")
        a(f"s_add_u32 s{s_t3}, s{s_t3}, {MISC}")
        a(f"v_and_b32 v{t1}, 15, v1")
        a(f"v_lshl_add_u32 v{t1}, v{t1}, 2, s{s_t3}")
        a("s_waitcnt vmcnt(0)")
        a("s_barrier")
        for nt in range(2): a(f"ds_read_b32 v{GV+2*nt}, v{t1} offset:{64*nt}", tag="yr")
        for dt2 in range(2):
            for nt in range(2):
                r = YF + (dt2 * 2 + nt) * 2
                a(f"ds_read_b64_tr_b16 v[{r}:{r+1}], v{vYA+nt} offset:{dt2*REGION}", tag="yr")
        for kq in range(28):
            for dt2 in range(2):
                for hh in range(2):
                    r = (kq * 2 + dt2) * 4 + 2 * hh
                    a(f"ds_read_b64_tr_b16 a[{r}:{r+1}], v{vTR+2*hh+dt2} offset:{kq*1024}", tag="wor")
            if kq == 1:
                a.wait(lg="yr")
                TQ, TY = 148, 152
                for dt2 in range(2):
                    for nt in range(2):
                        x = dt2 * 2 + nt
                        for p in range(2):
                            unpack(TQ + 2 * p, QF + 2 * x + p); unpack(TY + 2 * p, YF + 2 * x + p)
                        for p in range(2):
                            a(f"v_pk_mul_f32 {pr(TQ+2*p)}, {pr(TQ+2*p)}, {pr(TY+2*p)}")
                        for p in range(2):
                            a(f"v_pk_mul_f32 {pr(AP+4*x+2*p)}, {pr(TQ+2*p)}, {pr(GV+2*nt)} op_sel_hi:[1,0]")
                for nt in range(2): a(f"v_sub_f32 v{GV+2*nt}, 1.0, v{GV+2*nt}")
        a("s_waitcnt lgkmcnt(0)")
        a("s_barrier")
        self.stamp("p3_prep")

        a(f"s_lshl_b32 s{s_t3}, s{s_t0}, 1")
        a(f"s_lshr_b32 s{s_cnt}, s{s_w}, 1")
        a(f"s_add_u32 s{s_t3}, s{s_t3}, s{s_cnt}")
        a(f"s_lshl_b32 s{s_t3}, s{s_t3}, 6")
        a(f"s_add_u32 s{s_t3}, s{s_t3}, {WS_FP}")
        a(f"v_min_u32 v{t1}, 13, v1")
        a(f"v_lshlrev_b32 v{t1}, 2, v{t1}")
        a(f"s_lshl_b32 s{s_t1}, s{s_t0}, 2")
        a(f"s_add_u32 s{s_t1}, s{s_t1}, s{s_w}")
        a(f"s_mul_i32 s{s_t1}, s{s_t1}, {28*1024}")
        a(f"s_add_u32 s{s_t1}, s{s_t1}, {WS_P}")
        a(f"s_mul_i32 s{s_t2}, s{s_t2}, {2*REGION}")
        a(f"v_add_u32 v{vXR}, s{s_t2}, v{vLIN}")
        a(f"v_add_u32 v{vXR+1}, {REGION}, v{vXR}")
        self.poll([f"buffer_load_dword v{t3}, v{t1}, {srd(sWS)}, s{s_t3} offen sc1"], [t3], vT)
        self.stamp("p_got")
        for g4 in range(7):
            a(f"s_add_u32 m0, s{s_wb}, {g4*4096}")
            a(f"s_add_u32 s{s_t3}, s{s_t1}, {g4*4096}")
            for q in range(4):
                a(f"buffer_load_dwordx4 v{vLIN}, {srd(sWS)}, s{s_t3} offen offset:{q*1024} sc1 lds", tag=f"p{g4}")
        PF, ACC3 = 160, 32
        def read_p(g4):
            out = []
            for q in range(4):
                for nt in range(2):
                    r = PF + (g4 & 1) * 32 + (q * 2 + nt) * 4
                    out.append((f"ds_read_b128 v[{r}:{r+3}], v{vXR+nt} offset:{(g4*4+q)*1024}", f"pr{g4}_{q}"))
            return out
        a.wait(vm="p0"); a("s_barrier"); emit(read_p(0))
        for g4 in range(7):
            ex = []
            if g4 < 6:
                a.wait(vm=f"p{g4+1}"); a("s_barrier"); ex = read_p(g4 + 1)
            for q in range(4):
                kq = g4 * 4 + q
                a.wait(lg=f"pr{g4}_{q}")
                for dt2 in range(2):
                    for nt in range(2):
                        d = ACC3 + (dt2 * 2 + nt) * 4; wr = (kq * 2 + dt2) * 4; r = PF + (g4 & 1) * 32 + (q * 2 + nt) * 4
                        cin = "0" if kq == 0 else f"v[{d}:{d+3}]"
                        a(f"v_mfma_f32_16x16x32_bf16 v[{d}:{d+3}], a[{wr}:{wr+3}], v[{r}:{r+3}], {cin}")
                        if ex and (dt2 * 2 + nt) % 2 == 0:
                            s, t = ex.pop(0); a(s, tag=t)
        self.stamp("p3_done")
        OP = 64
        a(f"v_bfe_u32 v{t0}, v1, 4, 1")
        a(f"v_lshrrev_b32 v{t1}, 5, v1")
        a(f"v_lshl_add_u32 v{vRW}, v{t0}, 5, v{vRW}")
        a(f"v_lshl_add_u32 v{vRW}, v{t1}, 4, v{vRW}")
        for nt in range(2):
            for dt2 in range(2):
                x = dt2 * 2 + nt; d = ACC3 + 4 * x
                for p in range(2):
                    a(f"v_pk_fma_f32 {pr(d+2*p)}, {pr(d+2*p)}, {pr(GV+2*nt)}, {pr(AP+4*x+2*p)} op_sel_hi:[1,0,1]")
                for p in range(2):
                    a(f"v_cvt_pk_bf16_f32 v{OP+4*nt+2*dt2+p}, v{d+2*p}, v{d+2*p+1}")
            for p in range(2): a(f"v_permlane16_swap_b32 v{OP+4*nt+p}, v{OP+4*nt+2+p}")
            a(f"buffer_store_dwordx4 v[{OP+4*nt}:{OP+4*nt+3}], v{vRW}, {srd(sOUT)}, s{s_so if nt == 0 else s_so2} offen")
        if self.stamps:
            a("s_waitcnt vmcnt(0)")
            self.stamp("end")
            self.dump_stamps()
        a("s_endpgm")
        self.gemm_names = self.names

    def helper_wg(self):
        a = self.a
        a.hist = []; a.vm = []; a.lg = []
        self.names = []; self.nst = 0
        a("L_helper:")
        UOFF, CS, HSZ = 0, 4160, 4 * 4160
        HOFF = 68640
        EXOFF = HOFF + 4 * HSZ
        assert EXOFF + 16384 <= 163840
        s_hh, s_kh, s_cw, s_it, s_pi, s_buf, s_yo, s_fy = s_i, s_j, s_th, s_dj, 74, 75, s_so, s_so2
        vZ, vTAG, vLIN, vF, vG, vHW, vHL, vHL2, vEXW, vEXR, vYS, vDP = 2, 3, 4, 5, 6, 7, 8, 9, 10, 11, 12, 13
        vMASK = 16
        vUD = 20
        HD = 36
        HT = 48
        FD = 60
        Y = 64
        FB = [96, 160]; GB = [128, 192]
        t0, t1, t2 = 240, 241, 242
        a(f"s_lshl_b32 s{s_hh}, s{s_t1}, 2")
        a(f"s_add_u32 s{s_hh}, s{s_hh}, s{s_t0}")
        a(f"s_sub_u32 s{s_hh}, s{s_hh}, 28")
        a(f"s_and_b32 s{s_kh}, s{s_w}, 1")
        a(f"s_lshr_b32 s{s_cw}, s{s_w}, 1")
        a(f"v_mov_b32 v{vZ}, 0")
        a(f"v_lshlrev_b32 v{vLIN}, 4, v1")
        a(f"s_lshl_b32 s{s_t2}, s{s_kh}, 11")
        a(f"v_add_u32 v{vHL}, s{s_t2}, v{vLIN}")
        a(f"v_subrev_u32 v{vHL2}, 8, v{vHL}")
        a(f"s_mul_i32 s{s_pi}, s{s_hh}, 14")
        a(f"s_add_u32 s{s_pi}, s{s_pi}, s{s_cw}")
        a("s_waitcnt lgkmcnt(0)")
        if self.stamps:
            a(f"s_mov_b32 s78, s{s_ts}"); self.names.append("start"); self.nst = 1
        a(f"buffer_load_dword v{vTAG}, v{vZ}, {srd(sWS)}, 0 offen sc1", tag="epoch")
        def load_h(spi):
            a(f"s_and_b32 s{s_t2}, s{spi}, 31")
            a(f"s_lshl_b32 s{s_t2}, s{s_t2}, 1")
            a(f"s_bfe_u32 s{s_t3}, s{spi}, 0x10005")
            a(f"s_add_u32 s{s_t2}, s{s_t2}, s{s_t3}")
            a(f"s_andn2_b32 s{s_t3}, s{spi}, 63")
            a(f"s_add_u32 s{s_t2}, s{s_t2}, s{s_t3}")
            a(f"s_lshl_b32 s{s_t3}, s{s_t2}, 12")
            a(f"s_lshl_b32 s{s_t2}, s{s_t2}, 1")
            a(f"buffer_load_dwordx2 v[{HD}:{HD+1}], v{vHL2}, {srd(sH)}, s{s_t3} offen", tag="h")
            a(f"buffer_load_dwordx4 v[{HD+2}:{HD+5}], v{vHL}, {srd(sH)}, s{s_t3} offen", tag="h")
            a(f"buffer_load_dwordx2 v[{HD+6}:{HD+7}], v{vHL}, {srd(sH)}, s{s_t3} offen offset:1016", tag="h")
            a(f"buffer_load_dwordx4 v[{HD+8}:{HD+11}], v{vHL}, {srd(sH)}, s{s_t3} offen offset:1024", tag="h")
            a(f"buffer_load_ushort v{vDP+1}, v{vZ}, {srd(sD)}, s{s_t2} offen", tag="h")
        def write_h():
            for rd in range(2):
                d = HD + 6 * rd
                a(f"ds_write_b128 v{vHW}, v[{d+2}:{d+5}] offset:{1024*rd}", tag="hw")
                for q in range(4): a(f"v_alignbit_b32 v{HT+q}, v{d+q+2}, v{d+q+1}, 16")
                a(f"ds_write_b128 v{vHW}, v[{HT}:{HT+3}] offset:{1024*rd + CS}", tag="hw")
                for q in range(4): a(f"v_mov_b32 v{HT+4+q}, v{d+q+1}")
                a(f"ds_write_b128 v{vHW}, v[{HT+4}:{HT+7}] offset:{1024*rd + 2*CS}", tag="hw")
                for q in range(4): a(f"v_alignbit_b32 v{HT+8+q}, v{d+q+1}, v{d+q}, 16")
                a(f"ds_write_b128 v{vHW}, v[{HT+8}:{HT+11}] offset:{1024*rd + 3*CS}", tag="hw")
                if rd == 0: a("s_waitcnt lgkmcnt(0)")
        load_h(s_pi)
        for q in range(4): a(f"v_mov_b32 v{HT+q}, 0")
        a(f"v_lshlrev_b32 v{t0}, 4, v0")
        a(f"ds_write_b128 v{t0}, v[{HT}:{HT+3}]")
        a(f"ds_write_b128 v{t0}, v[{HT}:{HT+3}] offset:4096")
        a(f"v_bfe_u32 v{t0}, v1, 1, 4")
        a(f"v_and_b32 v{t1}, 1, v1")
        a(f"v_mul_u32_u24 v{t0}, {CS}, v{t0}")
        a(f"v_lshl_add_u32 v{t0}, v{t1}, 4, v{t0}")
        a(f"v_add_u32 v{t0}, {HOFF}, v{t0}")
        a(f"ds_write_b128 v{t0}, v[{HT}:{HT+3}]")
        for q in range(15):
            a(f"v_add_u32 v{t0}, {64*q}, v1")
            a(f"v_mul_u32_u24 v{t1}, 4370, v{t0}")
            a(f"v_lshrrev_b32 v{t1}, 16, v{t1}")
            a(f"v_mul_u32_u24 v{t2}, 15, v{t1}")
            a(f"v_sub_u32 v{t0}, v{t0}, v{t2}")
            a(f"v_min_u32 v{t0}, 13, v{t0}")
            a(f"v_mul_u32_u24 v{t2}, 7168, v{t1}")
            a(f"v_lshl_add_u32 v{vUD+q}, v{t0}, 4, v{t2}")
            if q & 3: a(f"v_subrev_u32 v{vUD+q}, {1024*(q&3)}, v{vUD+q}")
        a(f"v_and_b32 v{t0}, 15, v1")
        a(f"v_lshrrev_b32 v{t1}, 4, v1")
        a(f"v_lshlrev_b32 v{t2}, 3, v{t1}")
        a(f"v_sub_u32 v{t2}, v{t0}, v{t2}")
        a(f"v_add_u32 v{t2}, 25, v{t2}")
        a(f"v_sub_u32 v{vF}, 0, v{t2}")
        a(f"v_and_b32 v{vF}, 3, v{vF}")
        a(f"v_mul_u32_u24 v{vF}, {CS+2}, v{vF}")
        a(f"v_lshl_add_u32 v{vF}, v{t2}, 1, v{vF}")
        a(f"s_mul_i32 s{s_t2}, s{s_cw}, {2*HSZ}")
        a(f"s_add_u32 s{s_t2}, s{s_t2}, {HOFF}")
        a(f"s_lshl_b32 s{s_t3}, s{s_kh}, 8")
        a(f"s_add_u32 s{s_t3}, s{s_t3}, s{s_t2}")
        a(f"v_add_u32 v{vF}, s{s_t3}, v{vF}")
        a(f"s_add_u32 s{s_t2}, s{s_t2}, 32")
        a(f"v_add_u32 v{vHW}, s{s_t2}, v{vHL}")
        a(f"v_sub_u32 v{t2}, 16, v{t2}")
        a(f"v_mov_b32 v{HT+4}, 0xffff")
        a(f"v_mov_b32 v{HT+5}, 0xffff0000")
        for q in range(4):
            a(f"v_cmp_eq_u32 vcc, {2*q}, v{t2}")
            a(f"v_cndmask_b32 v{vMASK+q}, 0, v{HT+4}, vcc")
            a(f"v_cmp_eq_u32 vcc, {2*q+1}, v{t2}")
            a(f"v_cndmask_b32 v{vMASK+q}, v{vMASK+q}, v{HT+5}, vcc")
        a(f"v_lshl_add_u32 v{t2}, v{t0}, 1, v{t1}")
        a(f"v_mul_u32_u24 v{vG}, 240, v{t2}")
        a(f"s_xor_b32 s{s_t2}, s{s_kh}, 1")
        a(f"s_mul_i32 s{s_t2}, s{s_t2}, {16*240}")
        a(f"s_lshl_b32 s{s_t3}, s{s_cw}, 4")
        a(f"s_add_u32 s{s_t2}, s{s_t2}, s{s_t3}")
        a(f"v_add_u32 v{vG}, s{s_t2}, v{vG}")
        a(f"s_lshl_b32 s{s_t2}, s{s_w}, 12")
        a(f"s_add_u32 s{s_t2}, s{s_t2}, {EXOFF}")
        a(f"v_add_u32 v{vEXW}, s{s_t2}, v{vLIN}")
        a(f"s_xor_b32 s{s_t2}, s{s_w}, 1")
        a(f"s_lshl_b32 s{s_t2}, s{s_t2}, 12")
        a(f"s_add_u32 s{s_t2}, s{s_t2}, {EXOFF}")
        a(f"v_add_u32 v{vEXR}, s{s_t2}, v{vLIN}")
        a(f"v_lshlrev_b32 v{vYS}, 5, v{t0}")
        a(f"v_bfe_u32 v{t2}, v1, 4, 1")
        a(f"v_lshl_add_u32 v{vYS}, v{t2}, 9, v{vYS}")
        a(f"v_lshrrev_b32 v{t2}, 5, v1")
        a(f"v_lshl_add_u32 v{vYS}, v{t2}, 4, v{vYS}")
        a("s_waitcnt vmcnt(0) lgkmcnt(0)")
        self.get_tag(vTAG, vTAG)
        write_h()
        a(f"v_mov_b32 v{vDP}, v{vDP+1}")
        a(f"s_mul_i32 s{s_t2}, s{s_hh}, 14")
        a(f"s_lshr_b32 s{s_t3}, s{s_t2}, 6")
        a(f"s_min_u32 s{s_t3}, s{s_t3}, 5")
        a(f"s_lshl_b32 s{s_t3}, s{s_t3}, 9")
        a(f"s_add_u32 s{s_t3}, s{s_t3}, {WS_FKV}")
        a("s_waitcnt lgkmcnt(0)")
        a("s_barrier")
        self.stamp("h_ready")
        self.poll([f"buffer_load_dwordx4 v[{HT}:{HT+3}], v{vLIN}, {srd(sWS)}, s{s_t3} offen sc1"], [HT, HT+1, HT+2, HT+3], t0)
        self.stamp("kv_got")
        a(f"s_lshl_b32 s{s_t2}, s{s_t2}, 4")
        a(f"s_mul_i32 s{s_t3}, s{s_w}, {64*7168}")
        a(f"s_add_u32 s{s_t2}, s{s_t2}, s{s_t3}")
        a(f"s_add_u32 s{s_t2}, s{s_t2}, {WS_KVT}")
        a(f"s_mul_i32 s{s_t3}, s{s_w}, 15360")
        for q in range(15):
            if (q & 3) == 0: a(f"s_add_u32 m0, s{s_t3}, {UOFF + 7200 + 1024*q}")
            a(f"buffer_load_dwordx4 v{vUD+q}, {srd(sWS)}, s{s_t2} offen offset:{1024*(q&3)} sc1 lds")
        a(f"s_mov_b32 s{s_it}, 0")
        a(f"s_mov_b32 s{s_buf}, {HSZ}")
        a(f"s_lshl_b32 s{s_yo}, s{s_pi}, 12")
        a(f"s_lshl_b32 s{s_t2}, s{s_kh}, 11")
        a(f"s_add_u32 s{s_yo}, s{s_yo}, s{s_t2}")
        a(f"s_add_u32 s{s_yo}, s{s_yo}, {WS_YT}")
        a(f"s_mul_i32 s{s_fy}, s{s_kh}, 448")
        a(f"s_add_u32 s{s_fy}, s{s_fy}, s{s_pi}")
        a(f"s_lshl_b32 s{s_fy}, s{s_fy}, 2")
        a(f"s_add_u32 s{s_fy}, s{s_fy}, {WS_FY}")
        a("s_waitcnt vmcnt(0)")
        a("s_barrier")
        self.stamp("u_got")

        def reads(rr):
            b = rr & 1
            G = [(f"ds_read_b128 v[{GB[b]+4*e}:{GB[b]+4*e+3}], v{vG} offset:{7680*e + 960*(3-rr)}", f"c{rr}") for e in range(8)]
            F = []
            for q in range(8):
                for h in range(2):
                    F.append((f"ds_read_b64 v[{FB[b]+4*q+2*h}:{FB[b]+4*q+2*h+1}], v{vF} offset:{512*q + 64*rr + 8*h}", f"c{rr}"))
            return F[:2] + G + F[2:]
        a.fence()
        a("L_conv:")
        for s, t in reads(0): a(s, tag=t)
        a(f"s_add_u32 s{s_pi}, s{s_pi}, 2")
        load_h(s_pi)
        a(f"v_lshl_or_b32 v{t0}, v{vDP}, 16, v{vDP}")
        a(f"s_sub_u32 s{s_t2}, s{s_kh}, 1")
        a(f"v_and_b32 v{t0}, s{s_t2}, v{t0}")
        for q in range(4): a(f"v_and_b32 v{FD+q}, v{vMASK+q}, v{t0}")
        for rr in range(4):
            b = rr & 1
            ex = reads(rr + 1) if rr < 3 else []
            a("s_waitcnt lgkmcnt(0)")
            if rr == 0:
                for e in range(8):
                    a(f"v_mfma_f32_16x16x32_bf16 v[{Y+4*e}:{Y+4*e+3}], v[{FD}:{FD+3}], v[{GB[b]+4*e}:{GB[b]+4*e+3}], 0")
            for q in range(8):
                for e in range(8 - q):
                    d = Y + 4 * (q + e)
                    a(f"v_mfma_f32_16x16x32_bf16 v[{d}:{d+3}], v[{FB[b]+4*q}:{FB[b]+4*q+3}], v[{GB[b]+4*e}:{GB[b]+4*e+3}], v[{d}:{d+3}]")
                    if ex:
                        s, t = ex.pop(0); a(s, tag=t)
        a("s_waitcnt vmcnt(0)")
        Lf = a.label("L_nofl")
        a(f"s_cmp_eq_u32 s{s_it}, 0")
        a(f"s_cbranch_scc1 {Lf}")
        a(f"s_sub_u32 s{s_t2}, s{s_fy}, 8")
        self.flag(s_t2, vZ, vTAG)
        a(f"{Lf}:")
        a(f"v_add_u32 v{vHW}, s{s_buf}, v{vHW}")
        a(f"v_add_u32 v{vF}, s{s_buf}, v{vF}")
        a(f"s_sub_u32 s{s_buf}, 0, s{s_buf}")
        a(f"v_add_u32 v{vG}, 32, v{vG}")
        a(f"v_mov_b32 v{vDP}, v{vDP+1}")
        write_h()
        L1, L2 = a.label("L_kh1"), a.label("L_khd")
        a.fence()
        a(f"s_cmp_eq_u32 s{s_kh}, 1")
        a(f"s_cbranch_scc1 {L1}")
        R = 96
        for kh in range(2):
            if kh == 1: a(f"{L1}:")
            keep, send = Y + 16 * kh, Y + 16 * (1 - kh)
            for x in range(4): a(f"ds_write_b128 v{vEXW}, v[{send+4*x}:{send+4*x+3}] offset:{1024*x}")
            a("s_waitcnt lgkmcnt(0)")
            a("s_barrier")
            for x in range(4): a(f"ds_read_b128 v[{R+4*x}:{R+4*x+3}], v{vEXR} offset:{1024*x}")
            a("s_waitcnt lgkmcnt(0)")
            for p in range(8): a(f"v_pk_add_f32 v[{R+2*p}:{R+2*p+1}], v[{R+2*p}:{R+2*p+1}], v[{keep+2*p}:{keep+2*p+1}]")
            a.fence()
            if kh == 0: a(f"s_branch {L2}")
        a(f"{L2}:")
        a("s_barrier")
        O = 112
        for x in range(4):
            for p in range(2): a(f"v_cvt_pk_bf16_f32 v{O+2*x+p}, v{R+4*x+2*p}, v{R+4*x+2*p+1}")
        for x2 in range(2):
            for p in range(2): a(f"v_permlane16_swap_b32 v{O+4*x2+p}, v{O+4*x2+2+p}")
            a(f"buffer_store_dwordx4 v[{O+4*x2}:{O+4*x2+3}], v{vYS}, {srd(sWS)}, s{s_yo} offen offset:{1024*x2} sc1")
        a(f"s_add_u32 s{s_yo}, s{s_yo}, 8192")
        a(f"s_add_u32 s{s_fy}, s{s_fy}, 8")
        a(f"s_add_u32 s{s_it}, s{s_it}, 1")
        a(f"s_cmp_lt_u32 s{s_it}, 7")
        a.fence()
        a("s_cbranch_scc1 L_conv")
        a("s_waitcnt vmcnt(0)")
        a(f"s_sub_u32 s{s_t2}, s{s_fy}, 8")
        self.flag(s_t2, vZ, vTAG)
        self.stamp("conv_done")
        self.dump_stamps()
        a(f"s_lshl_b32 s{s_t2}, s{s_hh}, 2")
        a(f"s_add_u32 s{s_t2}, s{s_t2}, s{s_w}")
        a(f"s_cmp_lg_u32 s{s_t2}, 0")
        a("s_cbranch_scc1 L_end")
        a(f"v_min_u32 v{t0}, 55, v1")
        a(f"v_lshlrev_b32 v{t0}, 4, v{t0}")
        a(f"s_mov_b32 s{s_t2}, {WS_FKV}")
        a(f"s_mov_b32 s{s_t3}, {WS_FY}")
        loads = []
        for q in range(4):
            loads.append(f"buffer_load_dwordx4 v[{96+8*q}:{99+8*q}], v{t0}, {srd(sWS)}, s{s_t2} offen offset:{896*q} sc1")
            loads.append(f"buffer_load_dwordx4 v[{100+8*q}:{103+8*q}], v{t0}, {srd(sWS)}, s{s_t3} offen offset:{896*q} sc1")
        self.poll(loads, list(range(96, 128)), t1)
        a(f"s_mov_b32 s{s_t2}, {WS_EPOCH}")
        self.flag(s_t2, vZ, vTAG)
        a("L_end:")
        a("s_endpgm")
        self.helper_names = self.names

    def build(self):
        a = self.a
        ref = open("gated_mix__ssm_conv_h3__mixer_gmlp__prompt.s.ref").read().split("\n")
        for l in ref:
            if l.startswith(";") and "@launch" not in l: a.raw(l)
            elif not l.startswith(";"): break
        a.raw(header(["@launch grid=(256,1,1) block=(256,1,1) lds=163840"]))
        a.raw(kstart(NAME))
        self.prologue()
        self.gemm_wg()
        self.helper_wg()
        a.raw(kdesc(NAME, 512, 256))
        return a.text()

if __name__ == "__main__":
    import argparse
    ap = argparse.ArgumentParser()
    ap.add_argument("-o", default="gated_mix__ssm_conv_h3__mixer_gmlp__prompt.s")
    ap.add_argument("--stamps", action="store_true")
    ap.add_argument("--npre", type=int, default=16)
    args = ap.parse_args()
    g = Gen(stamps=args.stamps, npre=args.npre)
    t = g.build()
    open(args.o, "w").write(t)
    print("lines", t.count("\n"), "pad states", g.a.npad, "max vm", g.a.maxvm)
```

```python
import sys, struct
from asmlib import *

NAME = "gated_mix__ssm_conv_h3__mixer_gmlp__prompt_kernel"

WS_EPOCH = 0x0
WS_FKV   = 0x1000
WS_FZ2   = 0x2000
WS_FP    = 0x3000
WS_FY    = 0x4000
WS_TS    = 0x8000
WS_STATS = 0x80000
WS_KVT   = 0x100000
WS_YT    = 0x300000
WS_Z2N   = 0x500000
WS_P     = 0x900000
WS_SIZE  = 0x1000000

REGION = 40960
SPIN = 20000

def f2u(x): return struct.unpack("<I", struct.pack("<f", x))[0]

sQ, sK, sV, sSH, sWIN, sWSP, sWOUT, sWS, sOUT, sGW, sBSP, sH, sD = 8, 12, 16, 20, 24, 28, 32, 36, 40, 44, 48, 52, 56
s_i, s_j, s_th, s_dj, s_w, s_wb, s_tag = 60, 61, 62, 63, 64, 65, 66
s_t0, s_t1, s_t2, s_t3, s_cnt, s_so, s_so2 = 67, 68, 69, 70, 71, 72, 73
s_ts = 76
def srd(b): return f"s[{b}:{b+3}]"

class Gen:
    def __init__(self, stamps=False, npre=16, opts=None):
        self.a = Asm()
        self.stamps = stamps
        self.nst = 0
        self.npre = npre
        self.o = opts or {}

    def stamp(self, name):
        if not self.stamps: return
        a = self.a
        a(f"s_memrealtime s[{s_ts}:{s_ts+1}]")
        a("s_waitcnt lgkmcnt(0)")
        a(f"s_mov_b32 s{78+self.nst}, s{s_ts}")
        self.names.append(name)
        self.nst += 1
        assert self.nst <= 24

    def dump_stamps(self):
        if not self.stamps: return
        a = self.a
        a(f"s_lshl_b32 s{s_t0}, s2, 2")
        a(f"s_add_u32 s{s_t0}, s{s_t0}, s{s_w}")
        a(f"s_lshl_b32 s{s_t0}, s{s_t0}, 7")
        a(f"s_add_u32 s{s_t0}, s{s_t0}, {WS_TS}")
        a("v_mov_b32 v2, 0")
        a("s_mov_b64 exec, 1")
        for n in range(self.nst):
            a(f"v_mov_b32 v3, s{78+n}")
            a(f"buffer_store_dword v3, v2, {srd(sWS)}, s{s_t0} offen offset:{4*n}")
        a("s_mov_b64 exec, -1")

    def poll(self, loads, tagregs, vt):
        a = self.a
        L = a.label("L_poll"); Ld = a.label("L_polld")
        a(f"s_mov_b32 s{s_cnt}, {SPIN}")
        a.fence()
        a(f"{L}:")
        for l in loads: a(l)
        a("s_waitcnt vmcnt(0)")
        if len(tagregs) == 1:
            a(f"v_cmp_ne_u32 vcc, s{s_tag}, v{tagregs[0]}")
        else:
            a(f"v_xor_b32 v{vt}, s{s_tag}, v{tagregs[0]}")
            for r in tagregs[1:]:
                a(f"v_bitop3_b32 v{vt}, v{vt}, v{r}, s{s_tag} bitop3:0xf6")
            a(f"v_cmp_ne_u32 vcc, 0, v{vt}")
        a("s_cmp_eq_u64 vcc, 0")
        a(f"s_cbranch_scc1 {Ld}")
        a(f"s_sub_u32 s{s_cnt}, s{s_cnt}, 1")
        a(f"s_cmp_lg_u32 s{s_cnt}, 0")
        a(f"s_cbranch_scc1 {L}")
        a(f"{Ld}:")

    def flag(self, soff_reg, vz, vtag):
        a = self.a
        a("s_mov_b64 exec, 1")
        a(f"buffer_store_dword v{vtag}, v{vz}, {srd(sWS)}, s{soff_reg} offen sc1", tag="flag")
        a("s_mov_b64 exec, -1")

    def mk_srd(self, b, nbytes):
        a = self.a
        a(f"s_mov_b32 s{b+2}, {nbytes}")
        a(f"s_mov_b32 s{b+3}, 0x20000")

    def gelu(self, base, n, vt, vC0, vC1, vONE):
        a = self.a
        for b in range(base, base + n, 8):
            for p in range(4): a(f"v_pk_mul_f32 v[{vt+2*p}:{vt+2*p+1}], v[{b+2*p}:{b+2*p+1}], v[{b+2*p}:{b+2*p+1}]")
            for p in range(4): a(f"v_pk_fma_f32 v[{vt+2*p}:{vt+2*p+1}], v[{vt+2*p}:{vt+2*p+1}], v[{vC1}:{vC1+1}], v[{vC0}:{vC0+1}]")
            for p in range(4): a(f"v_pk_mul_f32 v[{vt+2*p}:{vt+2*p+1}], v[{vt+2*p}:{vt+2*p+1}], v[{b+2*p}:{b+2*p+1}]")
            for p in range(8): a(f"v_exp_f32 v{vt+p}, v{vt+p}")
            for p in range(4): a(f"v_pk_add_f32 v[{vt+2*p}:{vt+2*p+1}], v[{vt+2*p}:{vt+2*p+1}], v[{vONE}:{vONE+1}]")
            for p in range(8): a(f"v_rcp_f32 v{vt+p}, v{vt+p}")
            for p in range(4): a(f"v_pk_mul_f32 v[{b+2*p}:{b+2*p+1}], v[{b+2*p}:{b+2*p+1}], v[{vt+2*p}:{vt+2*p+1}]")

    def prologue(self):
        a = self.a
        a("s_cmp_ge_u32 s2, 256")
        a("s_cbranch_scc1 L_end")
        for b, off in ((sK, 8), (sV, 16), (sSH, 24), (sQ, 0), (sWIN, 56), (sWS, 112), (sWSP, 64), (sBSP, 72), (sWOUT, 80), (sGW, 88), (sOUT, 96), (sH, 32), (sD, 40)):
            a(f"s_load_dwordx2 s[{b}:{b+1}], s[0:1], {off}")
        if self.stamps:
            a(f"s_memrealtime s[{s_ts}:{s_ts+1}]")
        if self.o.get("padto"):
            a("s_memrealtime s[100:101]")
        a("v_lshrrev_b32 v2, 6, v0")
        a("v_and_b32 v1, 63, v0")
        a(f"v_readfirstlane_b32 s{s_w}, v2")
        for b, n in ((sK, 1835008), (sV, 1835008), (sSH, 3584), (sQ, 1835008), (sWIN, 1605632), (sWS, WS_SIZE), (sWSP, 8388608),
                     (sBSP, 4096), (sWOUT, 802816), (sGW, 896), (sOUT, 1835008), (sH, 1835008), (sD, 896)):
            self.mk_srd(b, n)
        a(f"s_lshr_b32 s{s_t0}, s2, 3")
        a(f"s_and_b32 s{s_t1}, s2, 7")
        a(f"s_cmp_ge_u32 s{s_t0}, 28")
        a("s_cbranch_scc1 L_helper")

    def get_tag(self, vt, vtag):
        a = self.a
        a(f"v_readfirstlane_b32 s{s_tag}, v{vt}")
        a(f"s_mul_i32 s{s_tag}, s{s_tag}, 0x9E3779B1")
        a(f"s_add_u32 s{s_tag}, s{s_tag}, 0x7F4A7C15")
        a(f"v_mov_b32 v{vtag}, s{s_tag}")

    def gemm_wg(self):
        a = self.a
        self.names = []; self.nst = 0
        vZ, vTAG = 2, 3
        vXD = 4
        vWD = 8
        vTR = 10
        vXR = 14
        vLIN = 16
        vBS = 18
        vC0, vC1, vONE = 20, 22, 24
        vAD = 26
        vT = 248
        ACC2, ACC1, WF, XF, GACC = 32, 64, 96, 128, 240
        acc = lambda base, ft, nt: base + (ft * 2 + nt) * 4
        XSLOT = lambda c: (c % 6) * 4096
        W2OFF, W1OFF, MISC = 24576, 4096, 38912

        a(f"s_mul_i32 s{s_t2}, s{s_t0}, 37")
        a(f"s_lshr_b32 s{s_t2}, s{s_t2}, 8")
        a(f"s_mul_i32 s{s_t3}, s{s_t2}, 7")
        a(f"s_sub_u32 s{s_dj}, s{s_t0}, s{s_t3}")
        a(f"s_and_b32 s{s_th}, s{s_t1}, 1")
        a(f"s_lshr_b32 s{s_t1}, s{s_t1}, 1")
        a(f"s_lshl_b32 s{s_t1}, s{s_t1}, 2")
        a(f"s_add_u32 s{s_i}, s{s_t1}, s{s_t2}")
        a(f"s_mul_i32 s{s_j}, s{s_th}, 7")
        a(f"s_add_u32 s{s_j}, s{s_j}, s{s_dj}")
        a(f"s_mul_i32 s{s_wb}, s{s_w}, {REGION}")
        a(f"v_mov_b32 v{vZ}, 0")
        a(f"v_lshlrev_b32 v{vLIN}, 4, v1")

        KR, VR, SKR = 32, 44, 52
        KU, VU, SU, KVR, KVP = 56, 78, 94, 102, 120
        vKO, vKO2, vSO = vT, vT + 1, vT + 2
        a(f"s_lshl_b32 s{s_t0}, s{s_i}, 1")
        a(f"s_add_u32 s{s_t0}, s{s_t0}, s{s_th}")
        a(f"s_lshl_b32 s{s_t1}, s{s_t0}, 2")
        a(f"s_add_u32 s{s_t1}, s{s_t1}, s{s_w}")
        a(f"s_mul_i32 s{s_t2}, s{s_t1}, {16*896}")
        a(f"s_lshl_b32 s{s_t3}, s{s_dj}, 7")
        a(f"s_add_u32 s{s_t2}, s{s_t2}, s{s_t3}")
        a(f"v_lshrrev_b32 v{vKO}, 5, v1")
        a(f"v_and_b32 v{vSO}, 31, v1")
        a(f"v_mul_u32_u24 v{vKO}, {8*896}, v{vKO}")
        a(f"v_lshl_add_u32 v{vKO}, v{vSO}, 2, v{vKO}")
        a(f"v_add_u32 v{vKO}, s{s_t2}, v{vKO}")
        a(f"v_subrev_u32 v{vKO2}, {3*896}, v{vKO}")
        a(f"s_lshl_b32 s{s_t3}, s{s_dj}, 9")
        a(f"v_lshl_add_u32 v{vSO}, v{vSO}, 4, s{s_t3}")
        a(f"s_mov_b32 s{s_so}, {4*896}")
        a("s_waitcnt lgkmcnt(0)")
        if self.stamps:
            a(f"s_mov_b32 s78, s{s_ts}"); self.names.append("start"); self.nst = 1
        a(f"buffer_load_dword v{vTAG}, v{vZ}, {srd(sWS)}, 0 offen sc1", tag="epoch")
        a(f"buffer_load_dwordx4 v[{SKR}:{SKR+3}], v{vSO}, {srd(sSH)}, 0 offen", tag="kv")
        for r in range(3): a(f"buffer_load_dword v{KR+r}, v{vKO2}, {srd(sK)}, 0 offen offset:{896*r}", tag="kv")
        for r in range(8):
            so = "0" if r < 4 else f"s{s_so}"
            a(f"buffer_load_dword v{KR+3+r}, v{vKO}, {srd(sK)}, {so} offen offset:{896*(r&3)}", tag="kv")
            a(f"buffer_load_dword v{VR+r}, v{vKO}, {srd(sV)}, {so} offen offset:{896*(r&3)}", tag="kv")

        t0, t1, t2 = vT + 3, vT + 4, vT + 5
        a(f"v_lshrrev_b32 v{t0}, 5, v1")
        a(f"v_bfe_u32 v{t1}, v1, 4, 1")
        a(f"v_lshl_or_b32 v{t0}, v{t1}, 1, v{t0}")
        a(f"v_and_b32 v{t1}, 7, v1")
        a(f"v_xor_b32 v{t1}, v{t1}, v{t0}")
        a(f"v_lshlrev_b32 v{t1}, 4, v{t1}")
        a(f"v_lshrrev_b32 v{t2}, 3, v1")
        a(f"s_lshl_b32 s{s_t1}, s{s_i}, 2")
        a(f"s_add_u32 s{s_t1}, s{s_t1}, s{s_w}")
        a(f"s_mul_i32 s{s_t2}, s{s_t1}, {32*896}")
        a(f"v_mul_u32_u24 v{vXD}, 896, v{t2}")
        a(f"v_add3_u32 v{vXD}, v{vXD}, v{t1}, s{s_t2}")
        a(f"v_xor_b32 v{vXD+1}, 64, v{vXD}")
        a(f"v_add_u32 v{vXD+1}, {8*896-1024}, v{vXD+1}")
        a(f"v_add_u32 v{vXD+2}, {16*896-2048}, v{vXD}")
        a(f"v_add_u32 v{vXD+3}, {16*896-2048}, v{vXD+1}")
        t3 = vT + 6
        a(f"v_bfe_u32 v{t3}, v1, 4, 1")
        a(f"s_and_b32 s{s_t2}, s{s_w}, 2")
        a(f"v_or_b32 v{t3}, s{s_t2}, v{t3}")
        a(f"v_lshlrev_b32 v{t3}, 1, v{t3}")
        a(f"v_xor_b32 v{t3}, v{t3}, v1")
        a(f"v_and_b32 v{t3}, 7, v{t3}")
        a(f"v_lshlrev_b32 v{t3}, 4, v{t3}")
        a(f"s_mul_i32 s{s_t2}, s{s_w}, {8*3584}")
        a(f"s_lshl_b32 s{s_t3}, s{s_j}, 7")
        a(f"s_add_u32 s{s_t2}, s{s_t2}, s{s_t3}")
        a(f"v_mul_u32_u24 v{vWD}, 3584, v{t2}")
        a(f"v_add3_u32 v{vWD}, v{vWD}, v{t3}, s{s_t2}")
        a(f"v_add_u32 v{vWD+1}, {32*3584-1024}, v{vWD}")

        def dma_x(c):
            a(f"s_add_u32 m0, s{s_wb}, {XSLOT(c)}")
            a(f"s_mov_b32 s{s_so2}, {c*128}")
            for q in range(4):
                a(f"buffer_load_dwordx4 v{vXD+q}, {srd(sQ)}, s{s_so2} offen offset:{q*1024} lds", tag=f"x{c}")
        def dma_w(c, half):
            off = W2OFF if half else W1OFF
            a(f"s_add_u32 m0, s{s_wb}, {off + c*2048}")
            a(f"s_mov_b32 s{s_so2}, {c*64*3584 + (1792 if half else 0)}")
            for q in range(2):
                a(f"buffer_load_dwordx4 v{vWD+q}, {srd(sWIN)}, s{s_so2} offen offset:{q*1024} lds", tag=f"w{half}_{c}")
        for c in range(6):
            dma_x(c); dma_w(c, 1)
        dma_w(6, 1)

        a(f"s_lshl_b32 s{s_t2}, s{s_t1}, 17")
        a(f"v_lshlrev_b32 v{vAD}, 12, v{t2}")
        a(f"v_add3_u32 v{vAD}, v{vAD}, v{t1}, s{s_t2}")
        a(f"v_xor_b32 v{vAD+1}, 64, v{vAD}")
        a(f"v_add_u32 v{vAD+1}, {8*4096-1024}, v{vAD+1}")
        a(f"v_add_u32 v{vAD+2}, {16*4096-2048}, v{vAD}")
        a(f"v_add_u32 v{vAD+3}, {16*4096-2048}, v{vAD+1}")
        a(f"v_bfe_u32 v{t1}, v1, 1, 1")
        a(f"v_bfe_u32 v{t2}, v1, 2, 1")
        a(f"v_lshl_or_b32 v{t1}, v{t1}, 1, v{t2}")
        a(f"v_bfe_u32 v{t2}, v1, 3, 1")
        a(f"v_lshl_or_b32 v{t1}, v{t2}, 2, v{t1}")
        a(f"v_xor_b32 v{t1}, v{t1}, v{t0}")
        a(f"v_and_b32 v{t2}, 15, v1")
        a(f"v_lshlrev_b32 v{t2}, 7, v{t2}")
        a(f"v_lshl_add_u32 v{t1}, v{t1}, 4, v{t2}")
        a(f"v_add_u32 v{vXR}, s{s_wb}, v{t1}")
        a(f"v_xor_b32 v{vXR+1}, 64, v{vXR}")
        a(f"v_mul_u32_u24 v{t0}, {REGION}, v{t0}")
        a(f"v_bfe_u32 v{t1}, v1, 2, 2")
        a(f"v_lshl_add_u32 v{t0}, v{t1}, 7, v{t0}")
        a(f"v_and_b32 v{t1}, 3, v1")
        a(f"v_lshl_add_u32 v{t0}, v{t1}, 3, v{t0}")
        a(f"v_bfe_u32 v{t1}, v1, 3, 2")
        a(f"v_lshl_add_u32 v{vTR}, v{t1}, 5, v{t0}")
        for ft in range(1, 4): a(f"v_xor_b32 v{vTR+ft}, {32*ft}, v{vTR}")
        c0 = -2.0 * 0.7978845608028654 * 1.4426950408889634
        for r, val in ((vC0, c0), (vC1, c0 * 0.044715), (vONE, 1.0)):
            a(f"v_mov_b32 v{r}, {f2u(val):#x}"); a(f"v_mov_b32 v{r+1}, {f2u(val):#x}")

        a.wait(vm="kv")
        self.stamp("kv_loaded")
        self.get_tag(vTAG, vTAG)
        def unpack(dst, src):
            a(f"v_lshlrev_b32 v{dst}, 16, v{src}"); a(f"v_and_b32 v{dst+1}, 0xffff0000, v{src}")
        for jj in range(4):
            for ch in range(2):
                src = SKR + 2 * ch + (jj >> 1)
                if jj & 1: a(f"v_and_b32 v{SU+2*jj+ch}, 0xffff0000, v{src}")
                else: a(f"v_lshlrev_b32 v{SU+2*jj+ch}, 16, v{src}")
        for r in range(11): unpack(KU + 2 * r, KR + r)
        for r in range(8): unpack(VU + 2 * r, VR + r)
        pr = lambda b: f"v[{b}:{b+1}]"
        for jj in range(4):
            for r in range(8):
                kk = KU + 2 * (r + 3 - jj)
                if jj == 0: a(f"v_pk_mul_f32 {pr(KVR+2*r)}, {pr(kk)}, {pr(SU)}")
                else: a(f"v_pk_fma_f32 {pr(KVR+2*r)}, {pr(kk)}, {pr(SU+2*jj)}, {pr(KVR+2*r)}")
        for r in range(8): a(f"v_pk_mul_f32 {pr(KVR+2*r)}, {pr(KVR+2*r)}, {pr(VU+2*r)}")
        for ch in range(2):
            for d in range(4):
                a(f"v_cvt_pk_bf16_f32 v{KVP+4*ch+d}, v{KVR+2*(7-2*d)+ch}, v{KVR+2*(6-2*d)+ch}")
        a(f"s_lshl_b32 s{s_t1}, s{s_t0}, 2")
        a(f"s_add_u32 s{s_t1}, s{s_t1}, s{s_w}")
        a(f"s_mul_i32 s{s_t2}, s{s_t1}, {2*7168}")
        a(f"s_lshl_b32 s{s_t3}, s{s_dj}, 10")
        a(f"s_add_u32 s{s_t2}, s{s_t2}, s{s_t3}")
        a(f"s_add_u32 s{s_t2}, s{s_t2}, {WS_KVT}")
        a(f"v_lshrrev_b32 v{t0}, 5, v1")
        a(f"v_mul_u32_u24 v{t0}, {7168-512}, v{t0}")
        a(f"v_add_u32 v{t0}, v{t0}, v{vLIN}")
        for ch in range(2):
            a(f"buffer_store_dwordx4 v[{KVP+4*ch}:{KVP+4*ch+3}], v{t0}, {srd(sWS)}, s{s_t2} offen offset:{512*ch} sc1", tag="kvst")
        a(f"s_lshl_b32 s{s_t3}, s{s_dj}, 7")
        a(f"s_add_u32 s{s_t1}, s{s_t1}, s{s_t3}")
        a(f"s_lshl_b32 s{s_t1}, s{s_t1}, 2")
        a(f"s_add_u32 s{s_so}, s{s_t1}, {WS_FKV}")
        self.stamp("kv_done")

        def read_x(c):
            for uu in range(2):
                for nt in range(2):
                    r = XF + ((2 * c + uu) * 2 + nt) * 4
                    a(f"ds_read_b128 v[{r}:{r+3}], v{vXR+uu} offset:{XSLOT(c) + nt*2048}", tag=f"xr{c}")
        def tr_w(u, off, buf):
            out = []
            for ft in range(4):
                for hh in range(2):
                    r = WF + buf * 16 + ft * 4 + hh * 2
                    out.append((f"ds_read_b64_tr_b16 v[{r}:{r+1}], v{vTR+ft} offset:{off + u*1024 + hh*512}", f"wr{u}_{ft}"))
            return out
        def mfma1(base, u, buf, extra):
            extra = list(extra)
            for ft in range(4):
                a.wait(lg=f"wr{u}_{ft}")
                for nt in range(2):
                    d = acc(base, ft, nt); wr = WF + buf * 16 + ft * 4; xr = XF + (u * 2 + nt) * 4
                    cin = "0" if u == 0 else f"v[{d}:{d+3}]"
                    a(f"v_mfma_f32_16x16x32_bf16 v[{d}:{d+3}], v[{wr}:{wr+3}], v[{xr}:{xr+3}], {cin}")
                    if extra:
                        s, t = extra.pop(0); a(s, tag=t)
            for s, t in extra: a(s, tag=t)

        for c in range(7):
            a.wait(vm=[f"x{c}", f"w1_{c}"])
            a("s_barrier")
            read_x(c)
            for s, t in tr_w(2 * c, W2OFF, 0): a(s, tag=t)
            a.wait(lg=f"xr{c}")
            if c == 0: dma_x(6)
            if 1 <= c <= 3: dma_w(2 * c - 2, 0); dma_w(2 * c - 1, 0)
            if c == 4: dma_w(6, 0)
            mfma1(ACC2, 2 * c, 0, tr_w(2 * c + 1, W2OFF, 1))
            mfma1(ACC2, 2 * c + 1, 1, [])
            if c == 6:
                a.wait(vm="kvst")
                self.flag(s_so, vZ, vTAG)
        self.stamp("z2_gemm")

        GWF = 200
        a(f"v_lshrrev_b32 v{t0}, 5, v1")
        a(f"v_bfe_u32 v{t1}, v1, 4, 1")
        a(f"v_lshl_or_b32 v{t0}, v{t1}, 1, v{t0}")
        a(f"v_lshlrev_b32 v{t0}, 4, v{t0}")
        for u in range(14):
            a(f"buffer_load_dwordx4 a[{GWF+4*u}:{GWF+4*u+3}], v{t0}, {srd(sGW)}, 0 offen offset:{64*u}", tag="gw")
        a(f"s_lshl_b32 s{s_t1}, s{s_i}, 2")
        a(f"s_add_u32 s{s_t1}, s{s_t1}, s{s_w}")
        a(f"s_lshl_b32 s{s_t2}, s{s_t1}, 6")
        a(f"v_and_b32 v{t1}, 15, v1")
        a(f"v_lshlrev_b32 v{t1}, 1, v{t1}")
        for nt in range(2):
            a(f"buffer_load_ushort v{vBS+nt}, v{t1}, {srd(sBSP)}, s{s_t2} offen offset:{32*nt}", tag="gw")

        ASLOTS = [20480, 0, 24576, 28672, 32768]
        def areg(c):
            if c < 16: return ("a", 16 * c)
            if c < 23: return ("v", 144 + 16 * (c - 16))
            return ("a", 16 * (c - 23))
        def dma_a(c, slot):
            out = [(f"s_add_u32 m0, s{s_wb}, {slot}", None), (f"s_mov_b32 s{s_so2}, {c*128}", None)]
            for q in range(4):
                out.append((f"buffer_load_dwordx4 v{vAD+q}, {srd(sWSP)}, s{s_so2} offen offset:{q*1024} lds", f"a{c}"))
            return out
        def read_a(c, slot):
            out = []
            k, b = areg(c)
            for uu in range(2):
                for nt in range(2):
                    r = b + (uu * 2 + nt) * 4
                    out.append((f"ds_read_b128 {k}[{r}:{r+3}], v{vXR+uu} offset:{slot + nt*2048}", f"ar{c}"))
            return out
        def emit(lst):
            for s, t in lst: a(s, tag=t)

        a("s_barrier")
        for c in range(5): emit(dma_a(c, ASLOTS[c]))

        self.gelu(ACC2, 32, vT, vC0, vC1, vONE)
        S = WF
        for nt in range(2):
            first = True
            for ft in range(4):
                for p in range(2):
                    z = pr(acc(ACC2, ft, nt) + 2 * p)
                    if first:
                        a(f"v_pk_mul_f32 {pr(S+4*nt+2)}, {z}, {z}")
                        z0 = z; first = False
                    else:
                        a(f"v_pk_add_f32 {pr(S+4*nt)}, {z}, {z0 if z0 else pr(S+4*nt)}"); z0 = None
                        a(f"v_pk_fma_f32 {pr(S+4*nt+2)}, {z}, {z}, {pr(S+4*nt+2)}")
        for q in range(4): a(f"v_add_f32 v{S+8+q}, v{S+2*q}, v{S+2*q+1}")
        A_, B_, C_, D_ = S + 8, S + 9, S + 10, S + 11
        a(f"v_permlane32_swap_b32 v{A_}, v{C_}")
        a(f"v_permlane32_swap_b32 v{B_}, v{D_}")
        a(f"v_add_f32 v{A_}, v{A_}, v{C_}")
        a(f"v_add_f32 v{B_}, v{B_}, v{D_}")
        a(f"v_permlane16_swap_b32 v{A_}, v{B_}")
        a(f"v_add_f32 v{S+12}, v{A_}, v{B_}")
        a(f"v_mov_b32 v{S+13}, v{vTAG}")
        a(f"s_mul_i32 s{s_t2}, s{s_t1}, {14*512}")
        a(f"s_add_u32 s{s_so}, s{s_t2}, {WS_STATS}")
        a(f"s_lshl_b32 s{s_t3}, s{s_j}, 9")
        a(f"s_add_u32 s{s_t2}, s{s_so}, s{s_t3}")
        vL8 = 17
        a(f"v_lshlrev_b32 v{vL8}, 3, v1")
        a(f"buffer_store_dwordx2 v[{S+12}:{S+13}], v{vL8}, {srd(sWS)}, s{s_t2} offen sc1", tag="stst")
        self.stamp("stats_pub")

        a.wait(vm=["w0_6", "gw"])
        a("s_barrier")
        nxt_rd, nxt_dma = 0, 5
        for s, t in tr_w(0, W1OFF, 0): a(s, tag=t)
        for u in range(14):
            ex = tr_w(u + 1, W1OFF, (u + 1) & 1) if u < 13 else []
            mfma1(ACC1, u, u & 1, ex)
            for nt in range(2):
                d = GACC + 4 * nt; xr = XF + (u * 2 + nt) * 4
                cin = "0" if u == 0 else f"v[{d}:{d+3}]"
                a(f"v_mfma_f32_16x16x32_bf16 v[{d}:{d+3}], a[{GWF+4*u}:{GWF+4*u+3}], v[{xr}:{xr+3}], {cin}")
        self.stamp("z1_gemm")

        PS = XF
        a(f"s_add_u32 s{s_t2}, s{s_so}, 4096")
        loads = []
        for jj in range(14):
            so, off = (s_so, jj * 512) if jj < 8 else (s_t2, (jj - 8) * 512)
            loads.append(f"buffer_load_dwordx2 v[{PS+2*jj}:{PS+2*jj+1}], v{vL8}, {srd(sWS)}, s{so} offen offset:{off} sc1")
        self.poll(loads, [PS + 2 * jj + 1 for jj in range(14)], vT)
        self.stamp("stats_got")
        for st in (14, 8, 4, 2):
            pass
        vals = [PS + 2 * jj for jj in range(14)]
        while len(vals) > 1:
            nv = []
            for q in range(0, len(vals) - 1, 2):
                a(f"v_add_f32 v{vals[q]}, v{vals[q]}, v{vals[q+1]}"); nv.append(vals[q])
            if len(vals) & 1: nv.append(vals[-1])
            vals = nv
        T_, U_, T2, U2 = PS, PS + 1, PS + 2, PS + 3
        a(f"v_mov_b32 v{U_}, v{T_}")
        a(f"v_permlane16_swap_b32 v{T_}, v{U_}")
        a(f"v_mul_f32 v{T_}, {f2u(1/896):#x}, v{T_}")
        a(f"v_mul_f32 v{U_}, {f2u(1/896):#x}, v{U_}")
        a(f"v_fma_f32 v{U_}, -v{T_}, v{T_}, v{U_}")
        a(f"v_max_f32 v{U_}, 0, v{U_}")
        a(f"v_add_f32 v{U_}, {f2u(1e-5):#x}, v{U_}")
        a(f"v_rsq_f32 v{U_}, v{U_}")
        a(f"v_mul_f32 v{T_}, v{T_}, v{U_}")
        a(f"v_sub_f32 v{T_}, 0, v{T_}")
        R0, M0_, R1, M1_ = PS + 4, PS + 6, PS + 8, PS + 10
        a(f"v_mov_b32 v{M0_}, v{T_}"); a(f"v_mov_b32 v{M1_}, v{T_}")
        a(f"v_mov_b32 v{R0}, v{U_}"); a(f"v_mov_b32 v{R1}, v{U_}")
        a(f"v_permlane32_swap_b32 v{M0_}, v{M1_}")
        a(f"v_permlane32_swap_b32 v{R0}, v{R1}")
        ZP = PS + 12
        a(f"s_lshl_b32 s{s_t2}, s{s_j}, 6")
        a(f"s_add_u32 s{s_t2}, s{s_t2}, s{s_t1}")
        a(f"s_lshl_b32 s{s_t3}, s{s_t2}, 12")
        a(f"s_add_u32 s{s_t3}, s{s_t3}, {WS_Z2N}")
        a(f"v_bfe_u32 v{t0}, v1, 2, 2")
        a(f"v_lshrrev_b32 v{t1}, 4, v1")
        a(f"v_lshlrev_b32 v{t0}, 8, v{t0}")
        a(f"v_lshl_add_u32 v{t0}, v{t1}, 6, v{t0}")
        a(f"v_and_b32 v{t1}, 3, v1")
        a(f"v_lshl_add_u32 v{t0}, v{t1}, 4, v{t0}")
        for ft in range(4):
            for nt in range(2):
                z = acc(ACC2, ft, nt); R, M = (R0, M0_) if nt == 0 else (R1, M1_)
                for p in range(2):
                    a(f"v_pk_fma_f32 {pr(z+2*p)}, {pr(z+2*p)}, {pr(R)}, {pr(M)} op_sel_hi:[1,0,0]")
                for p in range(2):
                    a(f"v_cvt_pk_bf16_f32 v{ZP+4*ft+2*nt+p}, v{z+2*p}, v{z+2*p+1}")
            a(f"buffer_store_dwordx4 v[{ZP+4*ft}:{ZP+4*ft+3}], v{t0}, {srd(sWS)}, s{s_t3} offen offset:{1024*ft} sc1", tag="zst")
        a(f"s_lshl_b32 s{s_t2}, s{s_t2}, 2")
        a(f"s_add_u32 s{s_t2}, s{s_t2}, {WS_FZ2}")
        for c in range(5): emit(read_a(c, ASLOTS[c]))
        a.wait(vm="zst")
        self.flag(s_t2, vZ, vTAG)
        self.stamp("z2n_pub")
        a("s_waitcnt lgkmcnt(0)")
        npre = self.npre
        for c in range(5, min(10, npre)): emit(dma_a(c, ASLOTS[c % 5]))

        self.gelu(ACC1, 32, vT, vC0, vC1, vONE)
        for nt in range(2):
            d = GACC + 4 * nt
            a(f"v_mul_f32 v{d}, {f2u(-1.4426950408889634):#x}, v{d}")
            a(f"v_exp_f32 v{d}, v{d}")
            a(f"v_add_f32 v{d}, 1.0, v{d}")
            a(f"v_rcp_f32 v{d}, v{d}")
        a(f"v_and_b32 v{t0}, 15, v1")
        a(f"v_lshl_add_u32 v{t0}, v{t0}, 2, s{s_wb}")
        for nt in range(2): a(f"ds_write_b32 v{t0}, v{GACC+4*nt} offset:{MISC + 64*nt}")
        for nt in range(2): a(f"v_lshlrev_b32 v{vBS+nt}, 16, v{vBS+nt}")
        for ft in range(4):
            for nt in range(2):
                for r in range(4): a(f"v_mov_b32 v{acc(ACC2, ft, nt)+r}, v{vBS+nt}")
        for c in range(5, npre):
            a.wait(vm=f"a{c}")
            emit(read_a(c, ASLOTS[c % 5]))
            if c + 5 < npre:
                a.wait(lg=f"ar{c}")
                emit(dma_a(c + 5, ASLOTS[c % 5]))
        a(f"v_lshrrev_b32 v{t0}, 5, v1")
        a(f"v_and_b32 v{t1}, 3, v1")
        a(f"v_lshlrev_b32 v{t0}, 9, v{t0}")
        a(f"v_lshl_add_u32 v{t0}, v{t1}, 6, v{t0}")
        a(f"v_bfe_u32 v{t1}, v1, 2, 2")
        a(f"v_lshl_add_u32 v{t0}, v{t1}, 4, v{t0}")
        a(f"v_bfe_u32 v{t1}, v1, 4, 1")
        a(f"v_lshl_add_u32 v{vTR}, v{t1}, 3, v{t0}")
        a(f"v_add_u32 v{vTR+1}, {2*REGION}, v{vTR}")
        a("s_waitcnt lgkmcnt(0)")
        a("s_barrier")
        self.stamp("pre_done")

        a(f"s_lshl_b32 s{s_t2}, s{s_j}, 8")
        a(f"s_add_u32 s{s_t2}, s{s_t2}, {WS_FZ2}")
        a(f"v_lshlrev_b32 v{t0}, 2, v1")
        self.poll([f"buffer_load_dword v{t1}, v{t0}, {srd(sWS)}, s{s_t2} offen sc1"], [t1], t2)
        self.stamp("z2n_got")

        NB = 6
        BF = 96
        TSL = [24576, 28672, 32768]
        s_zb = s_so
        a(f"s_lshl_b32 s{s_zb}, s{s_j}, 6")
        a(f"s_add_u32 s{s_zb}, s{s_zb}, s{s_w}")
        a(f"s_lshl_b32 s{s_zb}, s{s_zb}, 12")
        a(f"s_add_u32 s{s_zb}, s{s_zb}, {WS_Z2N}")
        def dma_b(st):
            out = [(f"s_add_u32 m0, s{s_wb}, {(st % NB)*4096}", None), (f"s_add_u32 s{s_t3}, s{s_zb}, {st*16384}", None)]
            for q in range(4):
                out.append((f"buffer_load_dwordx4 v{vLIN}, {srd(sWS)}, s{s_t3} offen offset:{q*1024} sc1 lds", f"b{st}"))
            return out
        def tr_b(sb):
            out = []
            st, wv = sb >> 2, sb & 3
            for ft in range(4):
                for hh in range(2):
                    r = BF + (sb % 3) * 16 + ft * 4 + hh * 2
                    off = (wv & 1) * REGION + (st % NB) * 4096 + ft * 1024 + hh * 256
                    out.append((f"ds_read_b64_tr_b16 v[{r}:{r+1}], v{vTR+(wv>>1)} offset:{off}", f"br{sb}"))
            return out
        for st in range(NB - 1): emit(dma_b(st))
        tail = list(range(npre, 32))
        for q, c in enumerate(tail[:3]): emit(dma_a(c, TSL[q]))
        a.wait(vm="b0")
        a("s_barrier")
        emit(tr_b(0)); emit(tr_b(1))
        self.stamp("b0_got")
        ntail = len(tail)
        rd_step = {}
        for q, c in enumerate(tail):
            lo = 4 + (q * 44) // max(ntail, 1)
            if c >= 23: lo = max(lo, 2 * (c - 23) + 2)
            assert lo <= 2 * c - 2
            rd_step[lo] = q
        assert len(rd_step) == ntail
        pend = []
        for sb in range(64):
            c, uu = sb >> 1, sb & 1
            gaps = [[] for _ in range(8)]
            if sb + 2 < 64:
                for m, x in enumerate(tr_b(sb + 2)): gaps[m].append(x)
            a.wait(lg=[f"br{sb}", f"ar{c}"])
            if (sb - 1) in rd_step:
                q = rd_step[sb - 1]
                if q + 3 < ntail:
                    a.wait(lg=f"ar{tail[q]}")
                    pend += dma_a(tail[q + 3], TSL[q % 3])
            pre = []
            if sb in rd_step:
                q = rd_step[sb]
                assert not any(t == f"a{tail[q]}" for _, t in pend)
                a.wait(vm=f"a{tail[q]}")
                for m, x in enumerate(read_a(tail[q], TSL[q % 3])): gaps[2 * m].append(x)
            for m in (1, 3, 5, 7):
                if pend: gaps[m].append(pend.pop(0))
            k, b = areg(c)
            for m in range(8):
                ft, nt = m >> 1, m & 1
                d = acc(ACC2, ft, nt); br = BF + (sb % 3) * 16 + ft * 4; ar = b + (uu * 2 + nt) * 4
                a(f"v_mfma_f32_16x16x32_bf16 v[{d}:{d+3}], v[{br}:{br+3}], {k}[{ar}:{ar+3}], v[{d}:{d+3}]")
                emit(gaps[m])
            st = sb >> 2
            if (sb & 3) == 1 and st + 1 < 16:
                assert not any(t == f"b{st+1}" for _, t in pend)
                a.wait(vm=f"b{st+1}")
                a("s_barrier")
                if st - 1 + NB < 16: pend += dma_b(st - 1 + NB)
        assert not pend
        self.stamp("p2_done")

        PP = 96
        a(f"s_mul_i32 s{s_t2}, s{s_t1}, {2*28}")
        a(f"s_lshl_b32 s{s_t3}, s{s_j}, 1")
        a(f"s_add_u32 s{s_t2}, s{s_t2}, s{s_t3}")
        a(f"s_lshl_b32 s{s_t2}, s{s_t2}, 10")
        a(f"s_add_u32 s{s_t2}, s{s_t2}, {WS_P}")
        a(f"s_add_u32 s{s_t3}, s{s_t2}, {28*1024}")
        for nt in range(2):
            for q in range(2):
                r = PP + (nt * 2 + q) * 4
                for h in range(2):
                    z = acc(ACC2, 2 * q + h, nt); z1 = acc(ACC1, 2 * q + h, nt)
                    for p in range(2): a(f"v_pk_mul_f32 {pr(z+2*p)}, {pr(z+2*p)}, {pr(z1+2*p)}")
                    for p in range(2): a(f"v_cvt_pk_bf16_f32 v{r+2*h+p}, v{z+2*p}, v{z+2*p+1}")
                a(f"buffer_store_dwordx4 v[{r}:{r+3}], v{vLIN}, {srd(sWS)}, s{s_t2 if nt == 0 else s_t3} offen offset:{1024*q} sc1", tag="pst")
        a(f"s_lshl_b32 s{s_t2}, s{s_t1}, 4")
        a(f"s_add_u32 s{s_t2}, s{s_t2}, s{s_j}")
        a(f"s_lshl_b32 s{s_t2}, s{s_t2}, 2")
        a(f"s_add_u32 s{s_t2}, s{s_t2}, {WS_FP}")
        a("s_barrier")
        vOD = vXD
        a(f"v_lshrrev_b32 v{t0}, 4, v1")
        a(f"v_lshlrev_b32 v{t0}, 1, v{t0}")
        a(f"v_xor_b32 v{t0}, v{t0}, v1")
        a(f"v_and_b32 v{t0}, 7, v{t0}")
        a(f"v_lshlrev_b32 v{t0}, 4, v{t0}")
        a(f"v_lshrrev_b32 v{t2}, 3, v1")
        a(f"s_mul_i32 s{s_t0}, s{s_w}, {8*896}")
        a(f"s_lshl_b32 s{s_t3}, s{s_dj}, 7")
        a(f"s_add_u32 s{s_t0}, s{s_t0}, s{s_t3}")
        a(f"v_mul_u32_u24 v{vOD}, 896, v{t2}")
        a(f"v_add3_u32 v{vOD}, v{vOD}, v{t0}, s{s_t0}")
        for q in range(1, 4): a(f"v_add_u32 v{vOD+q}, {q*(32*896-1024)}, v{vOD}")
        a.wait(vm="pst")
        self.flag(s_t2, vZ, vTAG)
        self.stamp("p_pub")
        for g4 in range(7):
            a(f"s_add_u32 m0, s{s_wb}, {g4*4096}")
            a(f"s_mov_b32 s{s_so2}, {g4*128*896}")
            for q in range(4):
                a(f"buffer_load_dwordx4 v{vOD+q}, {srd(sWOUT)}, s{s_so2} offen offset:{q*1024} lds", tag="wo")
        QF, YF, AP, GV = 112, 120, 128, 144
        a(f"s_lshl_b32 s{s_t0}, s{s_i}, 1")
        a(f"s_add_u32 s{s_t0}, s{s_t0}, s{s_th}")
        a(f"s_and_b32 s{s_t2}, s{s_w}, 1")
        a(f"s_lshl_b32 s{s_t3}, s{s_t0}, 1")
        a(f"s_add_u32 s{s_t3}, s{s_t3}, s{s_t2}")
        a(f"s_mul_i32 s{s_t3}, s{s_t3}, {32*896}")
        a(f"s_lshl_b32 s{s_so}, s{s_dj}, 7")
        a(f"s_add_u32 s{s_t3}, s{s_t3}, s{s_so}")
        a(f"s_lshr_b32 s{s_so}, s{s_w}, 1")
        a(f"s_lshl_b32 s{s_so}, s{s_so}, 6")
        a(f"s_add_u32 s{s_so}, s{s_t3}, s{s_so}")
        a(f"s_add_u32 s{s_so2}, s{s_so}, {16*896}")
        vRW = vWD
        a(f"v_and_b32 v{t1}, 15, v1")
        a(f"v_mul_u32_u24 v{vRW}, 896, v{t1}")
        a(f"v_lshrrev_b32 v{t1}, 4, v1")
        a(f"v_lshl_add_u32 v{vRW+1}, v{t1}, 3, v{vRW}")
        for dt2 in range(2):
            for nt in range(2):
                r = QF + (dt2 * 2 + nt) * 2
                a(f"buffer_load_dwordx2 v[{r}:{r+1}], v{vRW+1}, {srd(sQ)}, s{s_so if nt == 0 else s_so2} offen offset:{32*dt2}", tag="q")
        a(f"s_lshr_b32 s{s_t3}, s{s_t0}, 4")
        a(f"s_mul_i32 s{s_t3}, s{s_t3}, 7")
        a(f"s_add_u32 s{s_t3}, s{s_t3}, s{s_dj}")
        a(f"s_lshl_b32 s{s_t3}, s{s_t3}, 8")
        a(f"s_add_u32 s{s_t3}, s{s_t3}, {WS_FY}")
        a(f"v_lshlrev_b32 v{t1}, 2, v1")
        self.poll([f"buffer_load_dword v{t3}, v{t1}, {srd(sWS)}, s{s_t3} offen sc1"], [t3], vT)
        self.stamp("y_got")
        YOFF = 28672
        a(f"v_bfe_u32 v{t1}, v1, 3, 1")
        a(f"v_lshrrev_b32 v{t3}, 4, v1")
        a(f"v_lshl_add_u32 v{t1}, v{t1}, 5, v{t3}")
        a(f"v_lshl_add_u32 v{t1}, v{t1}, 12, v{t0}")
        a(f"v_add_u32 v{t3}, {4*4096-1024}, v{t1}")
        a(f"s_lshl_b32 s{s_t3}, s{s_dj}, 3")
        a(f"s_add_u32 s{s_t3}, s{s_t3}, s{s_w}")
        a(f"s_lshl_b32 s{s_t3}, s{s_t3}, 15")
        a(f"s_lshl_b32 s{s_cnt}, s{s_t0}, 7")
        a(f"s_add_u32 s{s_t3}, s{s_t3}, s{s_cnt}")
        a(f"s_add_u32 s{s_t3}, s{s_t3}, {WS_YT}")
        a(f"s_add_u32 m0, s{s_wb}, {YOFF}")
        a(f"buffer_load_dwordx4 v{t1}, {srd(sWS)}, s{s_t3} offen sc1 lds", tag="y")
        a(f"buffer_load_dwordx4 v{t3}, {srd(sWS)}, s{s_t3} offen offset:1024 sc1 lds", tag="y")
        a(f"v_lshrrev_b32 v{t0}, 5, v1")
        a(f"v_bfe_u32 v{t1}, v1, 2, 3")
        a(f"v_lshlrev_b32 v{t2}, 7, v{t1}")
        a(f"v_and_b32 v{t3}, 3, v1")
        a(f"v_lshl_add_u32 v{t2}, v{t3}, 3, v{t2}")
        a(f"v_bfe_u32 v{t3}, v1, 3, 2")
        a(f"v_lshl_add_u32 v{t2}, v{t3}, 5, v{t2}")
        a(f"s_and_b32 s{s_t3}, s{s_w}, 2")
        a(f"s_lshl_b32 s{s_t3}, s{s_t3}, 5")
        a(f"v_xor_b32 v{t3}, s{s_t3}, v{t2}")
        a(f"v_mul_u32_u24 v{t1}, {REGION}, v{t0}")
        a(f"v_add_u32 v{vTR}, v{t1}, v{t3}")
        a(f"v_xor_b32 v{vTR+1}, 32, v{vTR}")
        a(f"v_add_u32 v{vTR+2}, {2*REGION}, v{vTR}")
        a(f"v_add_u32 v{vTR+3}, {2*REGION}, v{vTR+1}")
        vYA = vXR
        a(f"s_lshl_b32 s{s_t3}, s{s_t2}, 6")
        a(f"v_xor_b32 v{t3}, s{s_t3}, v{t2}")
        a(f"v_lshl_add_u32 v{t3}, v{t0}, 10, v{t3}")
        a(f"s_and_b32 s{s_t3}, s{s_w}, 2")
        a(f"s_mul_i32 s{s_t3}, s{s_t3}, {REGION}")
        a(f"s_add_u32 s{s_t3}, s{s_t3}, {YOFF}")
        a(f"v_add_u32 v{vYA}, s{s_t3}, v{t3}")
        a(f"v_xor_b32 v{vYA+1}, 32, v{vYA}")
        a(f"s_lshl_b32 s{s_t3}, s{s_th}, 1")
        a(f"s_add_u32 s{s_t3}, s{s_t3}, s{s_t2}")
        a(f"s_mul_i32 s{s_t3}, s{s_t3}, {REGION}")
        a(f"s_add_u32 s{s_t3}, s{s_t3}, {MISC}")
        a(f"v_and_b32 v{t1}, 15, v1")
        a(f"v_lshl_add_u32 v{t1}, v{t1}, 2, s{s_t3}")
        a("s_waitcnt vmcnt(0)")
        a("s_barrier")
        for nt in range(2): a(f"ds_read_b32 v{GV+2*nt}, v{t1} offset:{64*nt}", tag="yr")
        for dt2 in range(2):
            for nt in range(2):
                r = YF + (dt2 * 2 + nt) * 2
                a(f"ds_read_b64_tr_b16 v[{r}:{r+1}], v{vYA+nt} offset:{dt2*REGION}", tag="yr")
        for kq in range(28):
            for dt2 in range(2):
                for hh in range(2):
                    r = (kq * 2 + dt2) * 4 + 2 * hh
                    a(f"ds_read_b64_tr_b16 a[{r}:{r+1}], v{vTR+2*hh+dt2} offset:{kq*1024}", tag="wor")
            if kq == 1:
                a.wait(lg="yr")
                TQ, TY = 148, 152
                for dt2 in range(2):
                    for nt in range(2):
                        x = dt2 * 2 + nt
                        for p in range(2):
                            unpack(TQ + 2 * p, QF + 2 * x + p); unpack(TY + 2 * p, YF + 2 * x + p)
                        for p in range(2):
                            a(f"v_pk_mul_f32 {pr(TQ+2*p)}, {pr(TQ+2*p)}, {pr(TY+2*p)}")
                        for p in range(2):
                            a(f"v_pk_mul_f32 {pr(AP+4*x+2*p)}, {pr(TQ+2*p)}, {pr(GV+2*nt)} op_sel_hi:[1,0]")
                for nt in range(2): a(f"v_sub_f32 v{GV+2*nt}, 1.0, v{GV+2*nt}")
        a("s_waitcnt lgkmcnt(0)")
        a("s_barrier")
        self.stamp("p3_prep")

        a(f"s_lshl_b32 s{s_t3}, s{s_t0}, 1")
        a(f"s_lshr_b32 s{s_cnt}, s{s_w}, 1")
        a(f"s_add_u32 s{s_t3}, s{s_t3}, s{s_cnt}")
        a(f"s_lshl_b32 s{s_t3}, s{s_t3}, 6")
        a(f"s_add_u32 s{s_t3}, s{s_t3}, {WS_FP}")
        a(f"v_min_u32 v{t1}, 13, v1")
        a(f"v_lshlrev_b32 v{t1}, 2, v{t1}")
        a(f"s_lshl_b32 s{s_t1}, s{s_t0}, 2")
        a(f"s_add_u32 s{s_t1}, s{s_t1}, s{s_w}")
        a(f"s_mul_i32 s{s_t1}, s{s_t1}, {28*1024}")
        a(f"s_add_u32 s{s_t1}, s{s_t1}, {WS_P}")
        a(f"s_mul_i32 s{s_t2}, s{s_t2}, {2*REGION}")
        a(f"v_add_u32 v{vXR}, s{s_t2}, v{vLIN}")
        a(f"v_add_u32 v{vXR+1}, {REGION}, v{vXR}")
        self.poll([f"buffer_load_dword v{t3}, v{t1}, {srd(sWS)}, s{s_t3} offen sc1"], [t3], vT)
        self.stamp("p_got")
        for g4 in range(7):
            a(f"s_add_u32 m0, s{s_wb}, {g4*4096}")
            a(f"s_add_u32 s{s_t3}, s{s_t1}, {g4*4096}")
            for q in range(4):
                a(f"buffer_load_dwordx4 v{vLIN}, {srd(sWS)}, s{s_t3} offen offset:{q*1024} sc1 lds", tag=f"p{g4}")
        PF, ACC3 = 160, 32
        def read_p(g4):
            out = []
            for q in range(4):
                for nt in range(2):
                    r = PF + (g4 & 1) * 32 + (q * 2 + nt) * 4
                    out.append((f"ds_read_b128 v[{r}:{r+3}], v{vXR+nt} offset:{(g4*4+q)*1024}", f"pr{g4}_{q}"))
            return out
        a.wait(vm="p0"); a("s_barrier"); emit(read_p(0))
        for g4 in range(7):
            ex = []
            if g4 < 6:
                a.wait(vm=f"p{g4+1}"); a("s_barrier"); ex = read_p(g4 + 1)
            for q in range(4):
                kq = g4 * 4 + q
                a.wait(lg=f"pr{g4}_{q}")
                for dt2 in range(2):
                    for nt in range(2):
                        d = ACC3 + (dt2 * 2 + nt) * 4; wr = (kq * 2 + dt2) * 4; r = PF + (g4 & 1) * 32 + (q * 2 + nt) * 4
                        cin = "0" if kq == 0 else f"v[{d}:{d+3}]"
                        a(f"v_mfma_f32_16x16x32_bf16 v[{d}:{d+3}], a[{wr}:{wr+3}], v[{r}:{r+3}], {cin}")
                        if ex and (dt2 * 2 + nt) % 2 == 0:
                            s, t = ex.pop(0); a(s, tag=t)
        self.stamp("p3_done")
        OP = 64
        a(f"v_bfe_u32 v{t0}, v1, 4, 1")
        a(f"v_lshrrev_b32 v{t1}, 5, v1")
        a(f"v_lshl_add_u32 v{vRW}, v{t0}, 5, v{vRW}")
        a(f"v_lshl_add_u32 v{vRW}, v{t1}, 4, v{vRW}")
        for nt in range(2):
            for dt2 in range(2):
                x = dt2 * 2 + nt; d = ACC3 + 4 * x
                for p in range(2):
                    a(f"v_pk_fma_f32 {pr(d+2*p)}, {pr(d+2*p)}, {pr(GV+2*nt)}, {pr(AP+4*x+2*p)} op_sel_hi:[1,0,1]")
                for p in range(2):
                    a(f"v_cvt_pk_bf16_f32 v{OP+4*nt+2*dt2+p}, v{d+2*p}, v{d+2*p+1}")
            for p in range(2): a(f"v_permlane16_swap_b32 v{OP+4*nt+p}, v{OP+4*nt+2+p}")
            a(f"buffer_store_dwordx4 v[{OP+4*nt}:{OP+4*nt+3}], v{vRW}, {srd(sOUT)}, s{s_so if nt == 0 else s_so2} offen")
        if self.stamps:
            a("s_waitcnt vmcnt(0)")
            self.stamp("end")
            self.dump_stamps()
        if self.o.get("padto"):
            a("L_padto:")
            a("s_memrealtime s[98:99]")
            a("s_waitcnt lgkmcnt(0)")
            a("s_sub_u32 s98, s98, s100")
            a(f"s_cmp_lt_u32 s98, {self.o['padto']*100}")
            a("s_cbranch_scc1 L_padto")
        a("s_endpgm")
        self.gemm_names = self.names

    def helper_wg(self):
        a = self.a
        a.hist = []; a.vm = []; a.lg = []
        self.names = []; self.nst = 0
        a("L_helper:")
        UOFF, CS, HSZ = 0, 4160, 4 * 4160
        HOFF = 68640
        EXOFF = HOFF + 4 * HSZ
        assert EXOFF + 16384 <= 163840
        s_hh, s_kh, s_cw, s_it, s_pi, s_buf, s_yo, s_fy = s_i, s_j, s_th, s_dj, 74, 75, s_so, s_so2
        vZ, vTAG, vLIN, vF, vG, vHW, vHL, vHL2, vEXW, vEXR, vYS, vDP = 2, 3, 4, 5, 6, 7, 8, 9, 10, 11, 12, 13
        vMASK = 16
        vUD = 20
        HD = 36
        HT = 48
        FD = 60
        Y = 64
        FB = [96, 160]; GB = [128, 192]
        t0, t1, t2 = 240, 241, 242
        a(f"s_lshl_b32 s{s_hh}, s{s_t1}, 2")
        a(f"s_add_u32 s{s_hh}, s{s_hh}, s{s_t0}")
        a(f"s_sub_u32 s{s_hh}, s{s_hh}, 28")
        a(f"s_and_b32 s{s_kh}, s{s_w}, 1")
        a(f"s_lshr_b32 s{s_cw}, s{s_w}, 1")
        a(f"v_mov_b32 v{vZ}, 0")
        a(f"v_lshlrev_b32 v{vLIN}, 4, v1")
        a(f"s_lshl_b32 s{s_t2}, s{s_kh}, 11")
        a(f"v_add_u32 v{vHL}, s{s_t2}, v{vLIN}")
        a(f"v_subrev_u32 v{vHL2}, 8, v{vHL}")
        a(f"s_mul_i32 s{s_pi}, s{s_hh}, 14")
        a(f"s_add_u32 s{s_pi}, s{s_pi}, s{s_cw}")
        a("s_waitcnt lgkmcnt(0)")
        if self.stamps:
            a(f"s_mov_b32 s78, s{s_ts}"); self.names.append("start"); self.nst = 1
        a(f"buffer_load_dword v{vTAG}, v{vZ}, {srd(sWS)}, 0 offen sc1", tag="epoch")
        def load_h(spi):
            a(f"s_and_b32 s{s_t2}, s{spi}, 31")
            a(f"s_lshl_b32 s{s_t2}, s{s_t2}, 1")
            a(f"s_bfe_u32 s{s_t3}, s{spi}, 0x10005")
            a(f"s_add_u32 s{s_t2}, s{s_t2}, s{s_t3}")
            a(f"s_andn2_b32 s{s_t3}, s{spi}, 63")
            a(f"s_add_u32 s{s_t2}, s{s_t2}, s{s_t3}")
            a(f"s_lshl_b32 s{s_t3}, s{s_t2}, 12")
            a(f"s_lshl_b32 s{s_t2}, s{s_t2}, 1")
            a(f"buffer_load_dwordx2 v[{HD}:{HD+1}], v{vHL2}, {srd(sH)}, s{s_t3} offen", tag="h")
            a(f"buffer_load_dwordx4 v[{HD+2}:{HD+5}], v{vHL}, {srd(sH)}, s{s_t3} offen", tag="h")
            a(f"buffer_load_dwordx2 v[{HD+6}:{HD+7}], v{vHL}, {srd(sH)}, s{s_t3} offen offset:1016", tag="h")
            a(f"buffer_load_dwordx4 v[{HD+8}:{HD+11}], v{vHL}, {srd(sH)}, s{s_t3} offen offset:1024", tag="h")
            a(f"buffer_load_ushort v{vDP+1}, v{vZ}, {srd(sD)}, s{s_t2} offen", tag="h")
        def write_h():
            for rd in range(2):
                d = HD + 6 * rd
                a(f"ds_write_b128 v{vHW}, v[{d+2}:{d+5}] offset:{1024*rd}", tag="hw")
                for q in range(4): a(f"v_alignbit_b32 v{HT+q}, v{d+q+2}, v{d+q+1}, 16")
                a(f"ds_write_b128 v{vHW}, v[{HT}:{HT+3}] offset:{1024*rd + CS}", tag="hw")
                for q in range(4): a(f"v_mov_b32 v{HT+4+q}, v{d+q+1}")
                a(f"ds_write_b128 v{vHW}, v[{HT+4}:{HT+7}] offset:{1024*rd + 2*CS}", tag="hw")
                for q in range(4): a(f"v_alignbit_b32 v{HT+8+q}, v{d+q+1}, v{d+q}, 16")
                a(f"ds_write_b128 v{vHW}, v[{HT+8}:{HT+11}] offset:{1024*rd + 3*CS}", tag="hw")
                if rd == 0: a("s_waitcnt lgkmcnt(0)")
        load_h(s_pi)
        for q in range(4): a(f"v_mov_b32 v{HT+q}, 0")
        a(f"v_lshlrev_b32 v{t0}, 4, v0")
        a(f"ds_write_b128 v{t0}, v[{HT}:{HT+3}]")
        a(f"ds_write_b128 v{t0}, v[{HT}:{HT+3}] offset:4096")
        a(f"v_bfe_u32 v{t0}, v1, 1, 4")
        a(f"v_and_b32 v{t1}, 1, v1")
        a(f"v_mul_u32_u24 v{t0}, {CS}, v{t0}")
        a(f"v_lshl_add_u32 v{t0}, v{t1}, 4, v{t0}")
        a(f"v_add_u32 v{t0}, {HOFF}, v{t0}")
        a(f"ds_write_b128 v{t0}, v[{HT}:{HT+3}]")
        for q in range(15):
            a(f"v_add_u32 v{t0}, {64*q}, v1")
            a(f"v_mul_u32_u24 v{t1}, 4370, v{t0}")
            a(f"v_lshrrev_b32 v{t1}, 16, v{t1}")
            a(f"v_mul_u32_u24 v{t2}, 15, v{t1}")
            a(f"v_sub_u32 v{t0}, v{t0}, v{t2}")
            a(f"v_min_u32 v{t0}, 13, v{t0}")
            a(f"v_mul_u32_u24 v{t2}, 7168, v{t1}")
            a(f"v_lshl_add_u32 v{vUD+q}, v{t0}, 4, v{t2}")
            if q & 3: a(f"v_subrev_u32 v{vUD+q}, {1024*(q&3)}, v{vUD+q}")
        a(f"v_and_b32 v{t0}, 15, v1")
        a(f"v_lshrrev_b32 v{t1}, 4, v1")
        a(f"v_lshlrev_b32 v{t2}, 3, v{t1}")
        a(f"v_sub_u32 v{t2}, v{t0}, v{t2}")
        a(f"v_add_u32 v{t2}, 25, v{t2}")
        a(f"v_sub_u32 v{vF}, 0, v{t2}")
        a(f"v_and_b32 v{vF}, 3, v{vF}")
        a(f"v_mul_u32_u24 v{vF}, {CS+2}, v{vF}")
        a(f"v_lshl_add_u32 v{vF}, v{t2}, 1, v{vF}")
        a(f"s_mul_i32 s{s_t2}, s{s_cw}, {2*HSZ}")
        a(f"s_add_u32 s{s_t2}, s{s_t2}, {HOFF}")
        a(f"s_lshl_b32 s{s_t3}, s{s_kh}, 8")
        a(f"s_add_u32 s{s_t3}, s{s_t3}, s{s_t2}")
        a(f"v_add_u32 v{vF}, s{s_t3}, v{vF}")
        a(f"s_add_u32 s{s_t2}, s{s_t2}, 32")
        a(f"v_add_u32 v{vHW}, s{s_t2}, v{vHL}")
        a(f"v_sub_u32 v{t2}, 16, v{t2}")
        a(f"v_mov_b32 v{HT+4}, 0xffff")
        a(f"v_mov_b32 v{HT+5}, 0xffff0000")
        for q in range(4):
            a(f"v_cmp_eq_u32 vcc, {2*q}, v{t2}")
            a(f"v_cndmask_b32 v{vMASK+q}, 0, v{HT+4}, vcc")
            a(f"v_cmp_eq_u32 vcc, {2*q+1}, v{t2}")
            a(f"v_cndmask_b32 v{vMASK+q}, v{vMASK+q}, v{HT+5}, vcc")
        a(f"v_lshl_add_u32 v{t2}, v{t0}, 1, v{t1}")
        a(f"v_mul_u32_u24 v{vG}, 240, v{t2}")
        a(f"s_xor_b32 s{s_t2}, s{s_kh}, 1")
        a(f"s_mul_i32 s{s_t2}, s{s_t2}, {16*240}")
        a(f"s_lshl_b32 s{s_t3}, s{s_cw}, 4")
        a(f"s_add_u32 s{s_t2}, s{s_t2}, s{s_t3}")
        a(f"v_add_u32 v{vG}, s{s_t2}, v{vG}")
        a(f"s_lshl_b32 s{s_t2}, s{s_w}, 12")
        a(f"s_add_u32 s{s_t2}, s{s_t2}, {EXOFF}")
        a(f"v_add_u32 v{vEXW}, s{s_t2}, v{vLIN}")
        a(f"s_xor_b32 s{s_t2}, s{s_w}, 1")
        a(f"s_lshl_b32 s{s_t2}, s{s_t2}, 12")
        a(f"s_add_u32 s{s_t2}, s{s_t2}, {EXOFF}")
        a(f"v_add_u32 v{vEXR}, s{s_t2}, v{vLIN}")
        a(f"v_lshlrev_b32 v{vYS}, 5, v{t0}")
        a(f"v_bfe_u32 v{t2}, v1, 4, 1")
        a(f"v_lshl_add_u32 v{vYS}, v{t2}, 9, v{vYS}")
        a(f"v_lshrrev_b32 v{t2}, 5, v1")
        a(f"v_lshl_add_u32 v{vYS}, v{t2}, 4, v{vYS}")
        a("s_waitcnt vmcnt(0) lgkmcnt(0)")
        self.get_tag(vTAG, vTAG)
        write_h()
        a(f"v_mov_b32 v{vDP}, v{vDP+1}")
        a(f"s_mul_i32 s{s_t2}, s{s_hh}, 14")
        a(f"s_lshr_b32 s{s_t3}, s{s_t2}, 6")
        a(f"s_min_u32 s{s_t3}, s{s_t3}, 5")
        a(f"s_lshl_b32 s{s_t3}, s{s_t3}, 9")
        a(f"s_add_u32 s{s_t3}, s{s_t3}, {WS_FKV}")
        a("s_waitcnt lgkmcnt(0)")
        a("s_barrier")
        self.stamp("h_ready")
        self.poll([f"buffer_load_dwordx4 v[{HT}:{HT+3}], v{vLIN}, {srd(sWS)}, s{s_t3} offen sc1"], [HT, HT+1, HT+2, HT+3], t0)
        self.stamp("kv_got")
        a(f"s_lshl_b32 s{s_t2}, s{s_t2}, 4")
        a(f"s_mul_i32 s{s_t3}, s{s_w}, {64*7168}")
        a(f"s_add_u32 s{s_t2}, s{s_t2}, s{s_t3}")
        a(f"s_add_u32 s{s_t2}, s{s_t2}, {WS_KVT}")
        a(f"s_mul_i32 s{s_t3}, s{s_w}, 15360")
        for q in range(15):
            if (q & 3) == 0: a(f"s_add_u32 m0, s{s_t3}, {UOFF + 7200 + 1024*q}")
            a(f"buffer_load_dwordx4 v{vUD+q}, {srd(sWS)}, s{s_t2} offen offset:{1024*(q&3)} sc1 lds")
        a(f"s_mov_b32 s{s_it}, 0")
        a(f"s_mov_b32 s{s_buf}, {HSZ}")
        a(f"s_lshl_b32 s{s_yo}, s{s_pi}, 12")
        a(f"s_lshl_b32 s{s_t2}, s{s_kh}, 11")
        a(f"s_add_u32 s{s_yo}, s{s_yo}, s{s_t2}")
        a(f"s_add_u32 s{s_yo}, s{s_yo}, {WS_YT}")
        a(f"s_mul_i32 s{s_fy}, s{s_kh}, 448")
        a(f"s_add_u32 s{s_fy}, s{s_fy}, s{s_pi}")
        a(f"s_lshl_b32 s{s_fy}, s{s_fy}, 2")
        a(f"s_add_u32 s{s_fy}, s{s_fy}, {WS_FY}")
        a("s_waitcnt vmcnt(0)")
        a("s_barrier")
        self.stamp("u_got")

        def reads(rr):
            b = rr & 1
            G = [(f"ds_read_b128 v[{GB[b]+4*e}:{GB[b]+4*e+3}], v{vG} offset:{7680*e + 960*(3-rr)}", f"c{rr}") for e in range(8)]
            F = []
            for q in range(8):
                for h in range(2):
                    F.append((f"ds_read_b64 v[{FB[b]+4*q+2*h}:{FB[b]+4*q+2*h+1}], v{vF} offset:{512*q + 64*rr + 8*h}", f"c{rr}"))
            return F[:2] + G + F[2:]
        a.fence()
        a("L_conv:")
        for s, t in reads(0): a(s, tag=t)
        a(f"s_add_u32 s{s_pi}, s{s_pi}, 2")
        load_h(s_pi)
        a(f"v_lshl_or_b32 v{t0}, v{vDP}, 16, v{vDP}")
        a(f"s_sub_u32 s{s_t2}, s{s_kh}, 1")
        a(f"v_and_b32 v{t0}, s{s_t2}, v{t0}")
        for q in range(4): a(f"v_and_b32 v{FD+q}, v{vMASK+q}, v{t0}")
        for rr in range(4):
            b = rr & 1
            ex = reads(rr + 1) if rr < 3 else []
            a("s_waitcnt lgkmcnt(0)")
            if rr == 0:
                for e in range(8):
                    a(f"v_mfma_f32_16x16x32_bf16 v[{Y+4*e}:{Y+4*e+3}], v[{FD}:{FD+3}], v[{GB[b]+4*e}:{GB[b]+4*e+3}], 0")
            for q in range(8):
                for e in range(8 - q):
                    d = Y + 4 * (q + e)
                    a(f"v_mfma_f32_16x16x32_bf16 v[{d}:{d+3}], v[{FB[b]+4*q}:{FB[b]+4*q+3}], v[{GB[b]+4*e}:{GB[b]+4*e+3}], v[{d}:{d+3}]")
                    if ex:
                        s, t = ex.pop(0); a(s, tag=t)
        a("s_waitcnt vmcnt(0)")
        Lf = a.label("L_nofl")
        a(f"s_cmp_eq_u32 s{s_it}, 0")
        a(f"s_cbranch_scc1 {Lf}")
        a(f"s_sub_u32 s{s_t2}, s{s_fy}, 8")
        self.flag(s_t2, vZ, vTAG)
        a(f"{Lf}:")
        a(f"v_add_u32 v{vHW}, s{s_buf}, v{vHW}")
        a(f"v_add_u32 v{vF}, s{s_buf}, v{vF}")
        a(f"s_sub_u32 s{s_buf}, 0, s{s_buf}")
        a(f"v_add_u32 v{vG}, 32, v{vG}")
        a(f"v_mov_b32 v{vDP}, v{vDP+1}")
        write_h()
        L1, L2 = a.label("L_kh1"), a.label("L_khd")
        a.fence()
        a(f"s_cmp_eq_u32 s{s_kh}, 1")
        a(f"s_cbranch_scc1 {L1}")
        R = 96
        for kh in range(2):
            if kh == 1: a(f"{L1}:")
            keep, send = Y + 16 * kh, Y + 16 * (1 - kh)
            for x in range(4): a(f"ds_write_b128 v{vEXW}, v[{send+4*x}:{send+4*x+3}] offset:{1024*x}")
            a("s_waitcnt lgkmcnt(0)")
            a("s_barrier")
            for x in range(4): a(f"ds_read_b128 v[{R+4*x}:{R+4*x+3}], v{vEXR} offset:{1024*x}")
            a("s_waitcnt lgkmcnt(0)")
            for p in range(8): a(f"v_pk_add_f32 v[{R+2*p}:{R+2*p+1}], v[{R+2*p}:{R+2*p+1}], v[{keep+2*p}:{keep+2*p+1}]")
            a.fence()
            if kh == 0: a(f"s_branch {L2}")
        a(f"{L2}:")
        a("s_barrier")
        O = 112
        for x in range(4):
            for p in range(2): a(f"v_cvt_pk_bf16_f32 v{O+2*x+p}, v{R+4*x+2*p}, v{R+4*x+2*p+1}")
        for x2 in range(2):
            for p in range(2): a(f"v_permlane16_swap_b32 v{O+4*x2+p}, v{O+4*x2+2+p}")
            a(f"buffer_store_dwordx4 v[{O+4*x2}:{O+4*x2+3}], v{vYS}, {srd(sWS)}, s{s_yo} offen offset:{1024*x2} sc1")
        a(f"s_add_u32 s{s_yo}, s{s_yo}, 8192")
        a(f"s_add_u32 s{s_fy}, s{s_fy}, 8")
        a(f"s_add_u32 s{s_it}, s{s_it}, 1")
        a(f"s_cmp_lt_u32 s{s_it}, 7")
        a.fence()
        a("s_cbranch_scc1 L_conv")
        a("s_waitcnt vmcnt(0)")
        a(f"s_sub_u32 s{s_t2}, s{s_fy}, 8")
        self.flag(s_t2, vZ, vTAG)
        self.stamp("conv_done")
        self.dump_stamps()
        a(f"s_lshl_b32 s{s_t2}, s{s_hh}, 2")
        a(f"s_add_u32 s{s_t2}, s{s_t2}, s{s_w}")
        a(f"s_cmp_lg_u32 s{s_t2}, 0")
        a("s_cbranch_scc1 L_end")
        a(f"v_min_u32 v{t0}, 55, v1")
        a(f"v_lshlrev_b32 v{t0}, 4, v{t0}")
        a(f"s_mov_b32 s{s_t2}, {WS_FKV}")
        a(f"s_mov_b32 s{s_t3}, {WS_FY}")
        loads = []
        for q in range(4):
            loads.append(f"buffer_load_dwordx4 v[{96+8*q}:{99+8*q}], v{t0}, {srd(sWS)}, s{s_t2} offen offset:{896*q} sc1")
            loads.append(f"buffer_load_dwordx4 v[{100+8*q}:{103+8*q}], v{t0}, {srd(sWS)}, s{s_t3} offen offset:{896*q} sc1")
        self.poll(loads, list(range(96, 128)), t1)
        a(f"s_mov_b32 s{s_t2}, {WS_EPOCH}")
        self.flag(s_t2, vZ, vTAG)
        a("L_end:")
        a("s_endpgm")
        self.helper_names = self.names

    def build(self):
        a = self.a
        ref = open("gated_mix__ssm_conv_h3__mixer_gmlp__prompt.s.ref").read().split("\n")
        for l in ref:
            if l.startswith(";") and "@launch" not in l: a.raw(l)
            elif not l.startswith(";"): break
        a.raw(header(["@launch grid=(256,1,1) block=(256,1,1) lds=163840"]))
        a.raw(kstart(NAME))
        self.prologue()
        self.gemm_wg()
        self.helper_wg()
        a.raw(kdesc(NAME, 512, 256))
        return a.text()

if __name__ == "__main__":
    import argparse
    ap = argparse.ArgumentParser()
    ap.add_argument("-o", default="gated_mix__ssm_conv_h3__mixer_gmlp__prompt.s")
    ap.add_argument("--stamps", action="store_true")
    ap.add_argument("--npre", type=int, default=16)
    ap.add_argument("--opt", action="append", default=[])
    args = ap.parse_args()
    g = Gen(stamps=args.stamps, npre=args.npre, opts={o.split("=")[0]: int(o.split("=")[1]) for o in args.opt})
    t = g.build()
    open(args.o, "w").write(t)
    print("lines", t.count("\n"), "pad states", g.a.npad, "max vm", g.a.maxvm)
```

```python
import sys, struct
from asmlib import *

NAME = "gated_mix__ssm_conv_h3__mixer_gmlp__prompt_kernel"

WS_EPOCH = 0x0
FS       = 128
WS_FKV   = 0x1000
WS_FY    = WS_FKV + 224 * FS
WS_FZ2   = 0x10000
WS_FP    = 0x18000
WS_TS    = 0x40000
WS_STATS = 0x80000
WS_KVT   = 0x100000
WS_YT    = 0x300000
WS_Z2N   = 0x500000
WS_P     = 0x900000
WS_SIZE  = 0x1000000

REGION = 40960
SPIN = 20000

def f2u(x): return struct.unpack("<I", struct.pack("<f", x))[0]

sQ, sK, sV, sSH, sWIN, sWSP, sWOUT, sWS, sOUT, sGW, sBSP, sH, sD = 8, 12, 16, 20, 24, 28, 32, 36, 40, 44, 48, 52, 56
s_i, s_j, s_th, s_dj, s_w, s_wb, s_tag = 60, 61, 62, 63, 64, 65, 66
s_t0, s_t1, s_t2, s_t3, s_cnt, s_so, s_so2 = 67, 68, 69, 70, 71, 72, 73
s_ts = 4
s_ca = 74
s_aw, s_ar, s_bw, s_br = 81, 85, 93, 97
vST = 31
s_sb = 3
def srd(b): return f"s[{b}:{b+3}]"

class Gen:
    def __init__(self, stamps=False, npre=16, opts=None):
        self.a = Asm()
        self.stamps = stamps
        self.nst = 0
        self.npre = npre
        self.o = opts or {}
        self.skip = set()
        self.waited = False

    def stamp(self, name):
        if self.o.get("probe_" + name):
            self.a("s_memrealtime s[6:7]"); self.a("s_waitcnt lgkmcnt(0)")
        if not self.stamps or name in self.skip: return
        a = self.a
        a(f"s_memrealtime s[{s_ts}:{s_ts+1}]")
        a("s_waitcnt lgkmcnt(0)")
        a(f"v_writelane_b32 v{vST}, s{s_ts}, {self.nst}")
        self.names.append(name)
        self.nst += 1
        assert self.nst <= 32

    def dump_stamps(self):
        if not self.stamps: return
        a = self.a
        a(f"s_lshl_b32 s{s_t0}, s2, 2")
        a(f"s_add_u32 s{s_t0}, s{s_t0}, s{s_w}")
        a(f"s_lshl_b32 s{s_t0}, s{s_t0}, 7")
        a(f"s_add_u32 s{s_t0}, s{s_t0}, {WS_TS}")
        a("v_lshlrev_b32 v30, 2, v1")
        a("s_mov_b32 exec_hi, 0")
        a(f"buffer_store_dword v{vST}, v30, {srd(sWS)}, s{s_t0} offen")
        a("s_mov_b64 exec, -1")

    def poll(self, loads, tagregs, vt, wave=None, issued=False):
        a = self.a
        L = a.label("L_poll"); Ld = a.label("L_polld")
        if wave is not None:
            vm_before = list(a.vm)
            a(f"s_cmp_lg_u32 s{s_w}, {wave}")
            a(f"s_cbranch_scc1 {Ld}")
        a(f"s_mov_b32 s{s_cnt}, {SPIN}")
        a.fence()
        if issued:
            Lc = a.label("L_pollc")
            a(f"s_branch {Lc}")
        a(f"{L}:")
        for l in loads: a(l)
        if issued: a(f"{Lc}:")
        a("s_waitcnt vmcnt(0)")
        if len(tagregs) == 1:
            a(f"v_cmp_ne_u32 vcc, s{s_tag}, v{tagregs[0]}")
        else:
            a(f"v_xor_b32 v{vt}, s{s_tag}, v{tagregs[0]}")
            for r in tagregs[1:]:
                a(f"v_bitop3_b32 v{vt}, v{vt}, v{r}, s{s_tag} bitop3:0xf6")
            a(f"v_cmp_ne_u32 vcc, 0, v{vt}")
        a("s_cmp_eq_u64 vcc, 0")
        a(f"s_cbranch_scc1 {Ld}")
        a(f"s_sub_u32 s{s_cnt}, s{s_cnt}, 1")
        a(f"s_cmp_lg_u32 s{s_cnt}, 0")
        a(f"s_cbranch_scc1 {L}")
        a(f"{Ld}:")
        if wave is not None: a.vm = vm_before

    def flag(self, soff_reg, vz, vtag):
        a = self.a
        a("s_mov_b64 exec, 1")
        a(f"buffer_store_dword v{vtag}, v{vz}, {srd(sWS)}, s{soff_reg} offen sc1", tag="flag")
        a("s_mov_b64 exec, -1")
    def only_wave(self, sreg, wave):
        return [f"s_cmp_eq_u32 s{s_w}, {wave}", f"s_cselect_b32 s{sreg}, s{sreg}, {WS_SIZE}"]

    def mk_srd(self, b, nbytes):
        a = self.a
        a(f"s_mov_b32 s{b+2}, {nbytes}")
        a(f"s_mov_b32 s{b+3}, 0x20000")

    def gelu(self, base, n, vt, vC0, vC1, vONE):
        o = []
        for b in range(base, base + n, 8):
            for p in range(4): o.append(f"v_pk_mul_f32 v[{vt+2*p}:{vt+2*p+1}], v[{b+2*p}:{b+2*p+1}], v[{b+2*p}:{b+2*p+1}]")
            for p in range(4): o.append(f"v_pk_fma_f32 v[{vt+2*p}:{vt+2*p+1}], v[{vt+2*p}:{vt+2*p+1}], v[{vC1}:{vC1+1}], v[{vC0}:{vC0+1}]")
            for p in range(4): o.append(f"v_pk_mul_f32 v[{vt+2*p}:{vt+2*p+1}], v[{vt+2*p}:{vt+2*p+1}], v[{b+2*p}:{b+2*p+1}]")
            for p in range(8): o.append(f"v_exp_f32 v{vt+p}, v{vt+p}")
            for p in range(4): o.append(f"v_pk_add_f32 v[{vt+2*p}:{vt+2*p+1}], v[{vt+2*p}:{vt+2*p+1}], v[{vONE}:{vONE+1}]")
            for p in range(8): o.append(f"v_rcp_f32 v{vt+p}, v{vt+p}")
            for p in range(4): o.append(f"v_pk_mul_f32 v[{b+2*p}:{b+2*p+1}], v[{b+2*p}:{b+2*p+1}], v[{vt+2*p}:{vt+2*p+1}]")
        return o

    def put(self, it):
        if callable(it): it()
        elif isinstance(it, tuple): self.a(it[0], tag=it[1])
        else: self.a(it)
    def emit(self, lst):
        for it in lst: self.put(it)
    def weave(self, fg, bg, every):
        acc = 0.0
        for it in fg:
            self.put(it)
            acc += 1.0 / every
            while acc >= 1.0 and bg:
                self.put(bg.pop(0)); acc -= 1.0
    def wvm(self, tags): return lambda: self.a.wait(vm=tags)
    def wlg(self, tags): return lambda: self.a.wait(lg=tags)

    def prologue(self):
        a = self.a
        a("s_cmp_ge_u32 s2, 256")
        a("s_cbranch_scc1 L_end")
        for b, off in ((sK, 8), (sV, 16), (sSH, 24), (sQ, 0), (sWIN, 56), (sWS, 112), (sWSP, 64), (sBSP, 72), (sWOUT, 80), (sGW, 88), (sOUT, 96), (sH, 32), (sD, 40)):
            a(f"s_load_dwordx2 s[{b}:{b+1}], s[0:1], {off}")
        if self.stamps:
            a(f"s_memrealtime s[{s_ts}:{s_ts+1}]")
        if self.o.get("padto"):
            a("s_memrealtime s[6:7]")
        a("v_lshrrev_b32 v2, 6, v0")
        a("v_and_b32 v1, 63, v0")
        a(f"v_readfirstlane_b32 s{s_w}, v2")
        for b, n in ((sK, 1835008), (sV, 1835008), (sSH, 3584), (sQ, 1835008), (sWIN, 1605632), (sWS, WS_SIZE), (sWSP, 8388608),
                     (sBSP, 4096), (sWOUT, 802816), (sGW, 896), (sOUT, 1835008), (sH, 1835008), (sD, 896)):
            self.mk_srd(b, n)
        a(f"s_lshr_b32 s{s_t0}, s2, 3")
        a(f"s_and_b32 s{s_t1}, s2, 7")
        a(f"s_cmp_ge_u32 s{s_t0}, 28")
        a("s_cbranch_scc1 L_helper")

    def get_tag(self, vt, vtag):
        a = self.a
        a(f"v_readfirstlane_b32 s{s_tag}, v{vt}")
        a(f"s_mul_i32 s{s_tag}, s{s_tag}, 0x9E3779B1")
        a(f"s_add_u32 s{s_tag}, s{s_tag}, 0x7F4A7C15")
        a(f"v_mov_b32 v{vtag}, s{s_tag}")

    def gemm_wg(self):
        a = self.a; o = self.o
        emit, weave, wvm, wlg = self.emit, self.weave, self.wvm, self.wlg
        self.names = []; self.nst = 0
        vZ, vTAG = 2, 3
        vXD = 4
        vWD = 8
        vTR = 10
        vXR = 14
        vLIN, vL8 = 16, 17
        vBS = 18
        vC0, vC1, vONE = 20, 22, 24
        vAD = 26
        vGW = 30
        vT = 248
        ACC2, ACC1, WF, XF, GACC = 32, 64, 96, 128, 240
        acc = lambda base, ft, nt: base + (ft * 2 + nt) * 4
        pr = lambda b: f"v[{b}:{b+1}]"
        WOFF, GWOFF = 0, 14336
        ASLOT = [20480, 24576, 28672, 32768]
        XSLOT = lambda c: ASLOT[c % 4]
        KVD, GATE = 36864, 38912
        NB = 5
        BSLOT = lambda st: (st % NB) * 4096
        t0, t1, t2, t3 = vT + 3, vT + 4, vT + 5, vT + 6

        a(f"s_mul_i32 s{s_t2}, s{s_t0}, 37")
        a(f"s_lshr_b32 s{s_t2}, s{s_t2}, 8")
        a(f"s_mul_i32 s{s_t3}, s{s_t2}, 7")
        a(f"s_sub_u32 s{s_dj}, s{s_t0}, s{s_t3}")
        a(f"s_and_b32 s{s_th}, s{s_t1}, 1")
        a(f"s_lshr_b32 s{s_t1}, s{s_t1}, 1")
        a(f"s_lshl_b32 s{s_t1}, s{s_t1}, 2")
        a(f"s_add_u32 s{s_i}, s{s_t1}, s{s_t2}")
        a(f"s_mul_i32 s{s_j}, s{s_th}, 7")
        a(f"s_add_u32 s{s_j}, s{s_j}, s{s_dj}")
        a(f"s_mul_i32 s{s_wb}, s{s_w}, {REGION}")
        a(f"v_mov_b32 v{vZ}, 0")
        a(f"v_lshlrev_b32 v{vLIN}, 4, v1")
        a(f"s_lshl_b32 s{s_t2}, s{s_t2}, 1")
        a(f"s_add_u32 s{s_t2}, s{s_t2}, s{s_dj}")
        if o.get("norot1"): a(f"s_mov_b32 s{s_t2}, 0")
        a(f"s_lshl_b32 s{s_t2}, s{s_t2}, 7")
        a(f"s_sub_u32 s{s_t3}, s{s_t2}, 896")
        a(f"s_cmp_ge_u32 s{s_t2}, 896")
        a(f"s_cselect_b32 s{s_ca}, s{s_t3}, s{s_t2}")
        def next_ca(c):
            return [f"s_add_u32 s{s_ca+c}, s{s_ca+c-1}, 128", f"s_cmp_eq_u32 s{s_ca+c}, 896", f"s_cselect_b32 s{s_ca+c}, 0, s{s_ca+c}"]

        KR, VR, SKR, DR = 32, 44, 52, 43
        KU, VU, SU, KVR, KVP = 56, 78, 94, 102, 120
        vKO, vKO2, vSO = vT, vT + 1, vT + 2
        def kv_issue():
            a(f"s_lshl_b32 s{s_t0}, s{s_i}, 1")
            a(f"s_add_u32 s{s_t0}, s{s_t0}, s{s_th}")
            a(f"s_lshl_b32 s{s_t1}, s{s_t0}, 2")
            a(f"s_add_u32 s{s_t1}, s{s_t1}, s{s_w}")
            a(f"s_mul_i32 s{s_t2}, s{s_t1}, {16*896}")
            a(f"s_lshl_b32 s{s_cnt}, s{s_dj}, 7")
            a(f"s_add_u32 s{s_t2}, s{s_t2}, s{s_cnt}")
            a(f"v_lshrrev_b32 v{vKO}, 5, v1")
            a(f"v_and_b32 v{vSO}, 31, v1")
            a(f"v_mul_u32_u24 v{vKO}, {8*896}, v{vKO}")
            a(f"v_lshl_add_u32 v{vKO}, v{vSO}, 2, v{vKO}")
            a(f"v_add_u32 v{vKO}, s{s_t2}, v{vKO}")
            a(f"v_subrev_u32 v{vKO2}, {3*896}, v{vKO}")
            a(f"v_lshlrev_b32 v{vT+7}, 2, v{vSO}")
            a(f"s_lshl_b32 s{s_t3}, s{s_dj}, 9")
            a(f"v_lshl_add_u32 v{vSO}, v{vSO}, 4, s{s_t3}")
            a(f"s_mov_b32 s{s_so}, {4*896}")
            self.first_wait()
            for r in range(3): a(f"buffer_load_dword v{KR+r}, v{vKO2}, {srd(sK)}, 0 offen offset:{896*r}", tag="kv")
            for r in range(8):
                so = "0" if r < 4 else f"s{s_so}"
                a(f"buffer_load_dword v{KR+3+r}, v{vKO}, {srd(sK)}, {so} offen offset:{896*(r&3)}", tag="kv")
                a(f"buffer_load_dword v{VR+r}, v{vKO}, {srd(sV)}, {so} offen offset:{896*(r&3)}", tag="kv")
            a(f"buffer_load_dwordx4 v[{SKR}:{SKR+3}], v{vSO}, {srd(sSH)}, 0 offen", tag="kv")
            a(f"buffer_load_dword v{DR}, v{vT+7}, {srd(sD)}, s{s_cnt} offen", tag="kv")
            a(f"buffer_load_dword v{vTAG}, v{vZ}, {srd(sWS)}, 0 offen sc1", tag="kv")

        def dma_addr():
            a(f"v_lshrrev_b32 v{t0}, 5, v1")
            a(f"v_bfe_u32 v{t1}, v1, 4, 1")
            a(f"v_lshl_or_b32 v{t0}, v{t1}, 1, v{t0}")
            a(f"v_and_b32 v{t1}, 7, v1")
            a(f"v_xor_b32 v{t1}, v{t1}, v{t0}")
            a(f"v_lshlrev_b32 v{t1}, 4, v{t1}")
            a(f"v_lshrrev_b32 v{t2}, 3, v1")
            a(f"s_lshl_b32 s{s_sb}, s{s_i}, 2")
            a(f"s_add_u32 s{s_sb}, s{s_sb}, s{s_w}")
            a(f"s_mul_i32 s{s_t2}, s{s_sb}, {32*896}")
            a(f"v_mul_u32_u24 v{vXD}, 896, v{t2}")
            a(f"v_add3_u32 v{vXD}, v{vXD}, v{t1}, s{s_t2}")
            a(f"v_xor_b32 v{vXD+1}, 64, v{vXD}")
            a(f"v_add_u32 v{vXD+1}, {8*896-1024}, v{vXD+1}")
            a(f"v_add_u32 v{vXD+2}, {16*896-2048}, v{vXD}")
            a(f"v_add_u32 v{vXD+3}, {16*896-2048}, v{vXD+1}")
            a(f"v_bfe_u32 v{t3}, v1, 4, 1")
            a(f"s_and_b32 s{s_t2}, s{s_w}, 2")
            a(f"v_or_b32 v{t3}, s{s_t2}, v{t3}")
            a(f"v_lshlrev_b32 v{t3}, 1, v{t3}")
            a(f"v_xor_b32 v{t3}, v{t3}, v1")
            a(f"v_and_b32 v{t3}, 7, v{t3}")
            a(f"v_lshlrev_b32 v{t3}, 4, v{t3}")
            a(f"s_mul_i32 s{s_t2}, s{s_w}, {8*3584}")
            a(f"s_lshl_b32 s{s_t3}, s{s_j}, 7")
            a(f"s_add_u32 s{s_t2}, s{s_t2}, s{s_t3}")
            a(f"s_add_u32 s{s_t2}, s{s_t2}, 1792")
            a(f"v_mul_u32_u24 v{vWD}, 3584, v{t2}")
            a(f"v_add3_u32 v{vWD}, v{vWD}, v{t3}, s{s_t2}")
            a(f"v_add_u32 v{vWD+1}, {32*3584-1024}, v{vWD}")
            self.first_wait()

        def dma_x(c):
            out = [f"s_add_u32 m0, s{s_wb}, {XSLOT(c)}"]
            for q in range(4):
                out.append((f"buffer_load_dwordx4 v{vXD+q}, {srd(sQ)}, s{s_ca+c} offen offset:{q*1024} lds", f"x{c}"))
            return out
        def dma_w(c, half):
            out = [f"s_add_u32 m0, s{s_wb}, {WOFF + c*2048}", f"s_mul_i32 s{s_so2}, s{s_ca+c}, 1792"]
            for q in range(2):
                out.append((f"buffer_load_dwordx4 v{vWD+q}, {srd(sWIN)}, s{s_so2} offen offset:{q*1024} lds", f"w{half}_{c}"))
            return out
        NIF = o.get("nif", 4)
        kv_issue()
        dma_addr()
        if o.get("early0", 1): emit(dma_x(0)); emit(dma_w(0, 1))
        for c in range(1, 7): emit(next_ca(c))

        a(f"s_lshl_b32 s{s_t2}, s{s_sb}, 17")
        a(f"v_lshlrev_b32 v{vAD}, 12, v{t2}")
        a(f"v_add3_u32 v{vAD}, v{vAD}, v{t1}, s{s_t2}")
        a(f"v_xor_b32 v{vAD+1}, 64, v{vAD}")
        a(f"v_add_u32 v{vAD+1}, {8*4096-1024}, v{vAD+1}")
        a(f"v_add_u32 v{vAD+2}, {16*4096-2048}, v{vAD}")
        a(f"v_add_u32 v{vAD+3}, {16*4096-2048}, v{vAD+1}")
        a(f"v_lshl_add_u32 v{vGW}, v{t0}, 4, s{s_wb}")
        a(f"v_bfe_u32 v{t1}, v1, 1, 1")
        a(f"v_bfe_u32 v{t2}, v1, 2, 1")
        a(f"v_lshl_or_b32 v{t1}, v{t1}, 1, v{t2}")
        a(f"v_bfe_u32 v{t2}, v1, 3, 1")
        a(f"v_lshl_or_b32 v{t1}, v{t2}, 2, v{t1}")
        a(f"v_xor_b32 v{t1}, v{t1}, v{t0}")
        a(f"v_and_b32 v{t2}, 15, v1")
        a(f"v_lshlrev_b32 v{t2}, 7, v{t2}")
        a(f"v_lshl_add_u32 v{t1}, v{t1}, 4, v{t2}")
        a(f"v_add_u32 v{vXR}, s{s_wb}, v{t1}")
        a(f"v_xor_b32 v{vXR+1}, 64, v{vXR}")
        a(f"v_mul_u32_u24 v{t0}, {REGION}, v{t0}")
        a(f"v_bfe_u32 v{t1}, v1, 2, 2")
        a(f"v_lshl_add_u32 v{t0}, v{t1}, 7, v{t0}")
        a(f"v_and_b32 v{t1}, 3, v1")
        a(f"v_lshl_add_u32 v{t0}, v{t1}, 3, v{t0}")
        a(f"v_bfe_u32 v{t1}, v1, 3, 2")
        a(f"v_lshl_add_u32 v{vTR}, v{t1}, 5, v{t0}")
        for ft in range(1, 4): a(f"v_xor_b32 v{vTR+ft}, {32*ft}, v{vTR}")
        c0 = -2.0 * 0.7978845608028654 * 1.4426950408889634
        for r, val in ((vC0, c0), (vC1, c0 * 0.044715), (vONE, 1.0)):
            a(f"v_mov_b32 v{r}, {f2u(val):#x}"); a(f"v_mov_b32 v{r+1}, {f2u(val):#x}")
        a(f"v_lshlrev_b32 v{vL8}, 3, v1")
        a(f"s_and_b32 s{s_t2}, s{s_i}, 3")
        if o.get("aspread", 1) == 2:
            a(f"s_lshr_b32 s{s_t3}, s{s_dj}, 1"); a(f"s_lshl_b32 s{s_so2}, s{s_dj}, 1")
        elif o.get("aspread", 1) == 1:
            a(f"s_lshr_b32 s{s_t3}, s{s_dj}, 2"); a(f"s_mov_b32 s{s_so2}, s{s_dj}")
        else:
            a(f"s_mov_b32 s{s_t3}, 0"); a(f"s_mov_b32 s{s_so2}, 0")
        if o.get("nobrot"): a(f"s_mov_b32 s{s_t2}, 0")
        a(f"s_add_u32 s{s_t2}, s{s_t2}, s{s_so2}")
        a(f"s_lshl_b32 s{s_so2}, s{s_j}, 6")
        a(f"s_add_u32 s{s_so2}, s{s_so2}, s{s_w}")
        a(f"s_lshl_b32 s{s_so2}, s{s_so2}, 12")
        a(f"s_add_u32 s{s_so2}, s{s_so2}, {WS_Z2N}")
        for n in range(4):
            a(f"s_xor_b32 s{s_cnt}, s{s_t3}, {n}")
            a(f"s_lshl_b32 s{s_aw+n}, s{s_cnt}, 10")
            a(f"s_lshl_b32 s{s_cnt}, s{s_cnt}, 16")
            a(f"s_add_u32 s{s_bw+n}, s{s_cnt}, s{s_so2}")
            a(f"s_add_u32 s{s_cnt}, s{s_t2}, {n}")
            a(f"s_and_b32 s{s_cnt}, s{s_cnt}, 3")
            a(f"s_lshl_b32 s{s_ar+2*n}, s{s_cnt}, 8")
            a(f"s_add_u32 s{s_ar+2*n+1}, s{s_ar+2*n}, 128")
            a(f"s_lshl_b32 s{s_br+n}, s{s_cnt}, 14")

        def unpack(dst, src):
            a(f"v_lshlrev_b32 v{dst}, 16, v{src}"); a(f"v_and_b32 v{dst+1}, 0xffff0000, v{src}")
        if not o.get("early0", 1): emit(dma_x(0)); emit(dma_w(0, 1))
        self.stamp("issued")
        a.wait(vm="kv")
        self.stamp("kv_loaded")
        self.get_tag(vTAG, vTAG)
        real_a = a; fg = []
        class Rec:
            def __call__(self_, l, tag=None): fg.append((l, tag) if tag else l)
        a = Rec()
        for jj in range(4):
            for ch in range(2):
                src = SKR + 2 * ch + (jj >> 1)
                if jj & 1: a(f"v_and_b32 v{SU+2*jj+ch}, 0xffff0000, v{src}")
                else: a(f"v_lshlrev_b32 v{SU+2*jj+ch}, 16, v{src}")
        for r in range(11): unpack(KU + 2 * r, KR + r)
        for r in range(8): unpack(VU + 2 * r, VR + r)
        for jj in range(4):
            for r in range(8):
                kk = KU + 2 * (r + 3 - jj)
                if jj == 0: a(f"v_pk_mul_f32 {pr(KVR+2*r)}, {pr(kk)}, {pr(SU)}")
                else: a(f"v_pk_fma_f32 {pr(KVR+2*r)}, {pr(kk)}, {pr(SU+2*jj)}, {pr(KVR+2*r)}")
        for r in range(8): a(f"v_pk_mul_f32 {pr(KVR+2*r)}, {pr(KVR+2*r)}, {pr(VU+2*r)}")
        for ch in range(2):
            for d in range(4):
                a(f"v_cvt_pk_bf16_f32 v{KVP+4*ch+d}, v{KVR+2*(7-2*d)+ch}, v{KVR+2*(6-2*d)+ch}")
        a(f"s_mul_i32 s{s_t2}, s{s_t1}, {2*7168}")
        a(f"s_lshl_b32 s{s_t3}, s{s_dj}, 10")
        a(f"s_add_u32 s{s_t2}, s{s_t2}, s{s_t3}")
        a(f"s_add_u32 s{s_t2}, s{s_t2}, {WS_KVT}")
        a(f"v_lshrrev_b32 v{t0}, 5, v1")
        a(f"v_mul_u32_u24 v{t1}, {7168-512}, v{t0}")
        a(f"v_add_u32 v{t1}, v{t1}, v{vLIN}")
        for ch in range(2):
            a(f"buffer_store_dwordx4 v[{KVP+4*ch}:{KVP+4*ch+3}], v{t1}, {srd(sWS)}, s{s_t2} offen offset:{512*ch} sc1", tag="kvst")
        a(f"s_lshl_b32 s{s_t3}, s{s_dj}, 5")
        a(f"s_add_u32 s{s_t1}, s{s_t0}, s{s_t3}")
        a(f"s_mul_i32 s{s_t1}, s{s_t1}, {FS}")
        a(f"s_add_u32 s{s_so}, s{s_t1}, {WS_FKV}")
        fg += self.only_wave(s_so, 0)
        unpack(SU, DR)
        for r in range(8): a(f"v_pk_mul_f32 {pr(KVR+2*r)}, {pr(KVR+2*r)}, {pr(SU)}")
        a(f"v_bfe_u32 v{t1}, v1, 3, 2")
        a(f"v_mul_u32_u24 v{t1}, {REGION}, v{t1}")
        a(f"v_lshl_add_u32 v{t1}, v{t0}, 4, v{t1}")
        a(f"v_and_b32 v{t0}, 7, v1")
        a(f"v_lshl_add_u32 v{t1}, v{t0}, 8, v{t1}")
        a(f"v_and_b32 v{t0}, 3, v1")
        a(f"v_xor_b32 v{t0}, s{s_w}, v{t0}")
        a(f"v_lshl_add_u32 v{t1}, v{t0}, 5, v{t1}")
        for ch in range(2):
            for d in range(4):
                a(f"v_cvt_pk_bf16_f32 v{KU+4*ch+d}, v{KVR+4*d+ch}, v{KVR+4*d+2+ch}")
            a(f"ds_write_b128 v{t1}, v[{KU+4*ch}:{KU+4*ch+3}] offset:{KVD + 128*ch}", tag="kvd")
        a = real_a
        bg = []
        for c in range(1, NIF): bg += dma_x(c) + dma_w(c, 1)
        fg2 = []
        for it in fg:
            if isinstance(it, str) and it.startswith("s_cselect"): fg2[-1] = fg2[-1] + "\n" + it
            else: fg2.append(it)
        weave(fg2, bg, o.get("wv0", 5)); emit(bg)
        self.stamp("kv_done")

        def read_x(c):
            out = []
            for uu in range(2):
                for nt in range(2):
                    r = XF + ((2 * c + uu) * 2 + nt) * 4
                    out.append((f"ds_read_b128 v[{r}:{r+3}], v{vXR+uu} offset:{XSLOT(c) + nt*2048}", f"xr{2*c+uu}"))
            return out
        def tr_w(u, buf):
            out = []
            for ft in range(4):
                for hh in range(2):
                    r = WF + buf * 16 + ft * 4 + hh * 2
                    out.append((f"ds_read_b64_tr_b16 v[{r}:{r+1}], v{vTR+ft} offset:{WOFF + u*1024 + hh*512}", f"wr{u}_{ft}"))
            return out
        def mfma1(base, u, buf, extra, per=1):
            for ft in range(4):
                a.wait(lg=[f"wr{u}_{ft}", f"xr{u}"])
                for nt in range(2):
                    d = acc(base, ft, nt); wr = WF + buf * 16 + ft * 4; xr = XF + (u * 2 + nt) * 4
                    cin = "0" if u == 0 else f"v[{d}:{d+3}]"
                    a(f"v_mfma_f32_16x16x32_bf16 v[{d}:{d+3}], v[{wr}:{wr+3}], v[{xr}:{xr+3}], {cin}")
                    for _ in range(per):
                        if extra: self.put(extra.pop(0))
        def small_loads():
            out = [f"v_add_u32 v{t0}, s{s_ca}, v{vLIN}", f"v_subrev_u32 v{t1}, 896, v{t0}", f"v_min_u32 v{t0}, v{t0}, v{t1}",
                   f"s_add_u32 m0, s{s_wb}, {GWOFF}", f"v_and_b32 v{t1}, 15, v1",
                   (f"buffer_load_dwordx4 v{t0}, {srd(sGW)}, 0 offen lds", "gw"),
                   f"v_lshlrev_b32 v{t1}, 1, v{t1}", f"s_lshl_b32 s{s_t2}, s{s_sb}, 6"]
            for nt in range(2):
                out.append((f"buffer_load_ushort v{vBS+nt}, v{t1}, {srd(sBSP)}, s{s_t2} offen offset:{32*nt}", "gw"))
            return out
        w1q = [f"v_subrev_u32 v{vWD}, 1792, v{vWD}", f"v_subrev_u32 v{vWD+1}, 1792, v{vWD+1}"]
        w1_done = 0
        kvflag = o.get("kvflag", 3)
        def mix(x, y):
            out = []
            while x or y:
                if x: out.append(x.pop(0))
                if y: out.append(y.pop(0))
            return out
        def enter(c):
            a.wait(vm=[f"x{c}", f"w1_{c}"] + (["kvst"] if c == kvflag else []), lg="kvd")
            a("s_barrier")
            if c == kvflag: self.flag(s_so, vZ, vTAG)
            if o.get("fine"): self.stamp(f"c{c}")
        enter(0)
        rx = read_x(0); tw = tr_w(0, 0)
        emit(rx[:2] + tw[:2] + rx[2:] + tw[2:])
        nxt = NIF
        for c in range(7):
            ex = []
            if nxt < 7:
                if nxt - c >= 4: ex.append(wlg(f"xr{2*c+1}"))
                ex += dma_x(nxt) + dma_w(nxt, 1); nxt += 1
            else:
                ex = w1q; w1q = []
                for _ in range(o.get("w1per", 2)):
                    if w1_done < c - 1: ex += dma_w(w1_done, 0); w1_done += 1
            ex = mix(tr_w(2 * c + 1, 1), ex)
            mfma1(ACC2, 2 * c, 0, ex, 2); emit(ex)
            ex = []
            if c < 6:
                enter(c + 1)
                rx = read_x(c + 1); tw = tr_w(2 * c + 2, 0)
                ex = rx[:2] + tw[:2] + rx[2:] + tw[2:]
            mfma1(ACC2, 2 * c + 1, 1, ex, 2); emit(ex)
        self.stamp("z2_gemm")
        a("s_barrier")
        emit(small_loads())
        bg0 = []
        while w1_done < 7: bg0 += dma_w(w1_done, 0); w1_done += 1

        def areg(c):
            if c < 16: return ("a", 16 * c)
            if c < 22: return ("v", 144 + 16 * (c - 16))
            return ("a", 16 * (c - 22))
        def dma_a(c):
            out = []
            if c >= 4: out.append(wlg(f"ar{c-4}"))
            out += [f"s_add_u32 m0, s{s_wb}, {ASLOT[c % 4]}", f"s_add_u32 s{s_so2}, s{s_aw + (c>>3)}, s{s_ar + (c&7)}"]
            for q in range(4):
                out.append((f"buffer_load_dwordx4 v{vAD+q}, {srd(sWSP)}, s{s_so2} offen offset:{q*1024} lds", f"a{c}"))
            return out
        def read_a(c):
            out = [wvm(f"a{c}")]
            k, b = areg(c)
            for uu in range(2):
                for nt in range(2):
                    r = b + (uu * 2 + nt) * 4
                    out.append((f"ds_read_b128 {k}[{r}:{r+3}], v{vXR+uu} offset:{ASLOT[c % 4] + nt*2048}", f"ar{c}"))
            return out

        na0 = o.get("na0", 2)
        bg = bg0
        for c in range(na0): bg += dma_a(c)
        weave(self.gelu(ACC2, 32, vT, vC0, vC1, vONE), bg, o.get("wvg", 6)); emit(bg)
        S = WF
        for nt in range(2):
            first = True
            for ft in range(4):
                for p in range(2):
                    z = pr(acc(ACC2, ft, nt) + 2 * p)
                    if first:
                        a(f"v_pk_mul_f32 {pr(S+4*nt+2)}, {z}, {z}")
                        z0 = z; first = False
                    else:
                        a(f"v_pk_add_f32 {pr(S+4*nt)}, {z}, {z0 if z0 else pr(S+4*nt)}"); z0 = None
                        a(f"v_pk_fma_f32 {pr(S+4*nt+2)}, {z}, {z}, {pr(S+4*nt+2)}")
        for q in range(4): a(f"v_add_f32 v{S+8+q}, v{S+2*q}, v{S+2*q+1}")
        A_, B_, C_, D_ = S + 8, S + 9, S + 10, S + 11
        a(f"s_mul_i32 s{s_t2}, s{s_sb}, {14*512}")
        a(f"v_permlane32_swap_b32 v{A_}, v{C_}")
        a(f"v_permlane32_swap_b32 v{B_}, v{D_}")
        a(f"v_add_f32 v{A_}, v{A_}, v{C_}")
        a(f"v_add_f32 v{B_}, v{B_}, v{D_}")
        a(f"s_add_u32 s{s_so}, s{s_t2}, {WS_STATS}")
        a(f"s_lshl_b32 s{s_t3}, s{s_j}, 9")
        a(f"v_permlane16_swap_b32 v{A_}, v{B_}")
        a(f"v_mov_b32 v{S+13}, v{vTAG}")
        a(f"s_add_u32 s{s_t2}, s{s_so}, s{s_t3}")
        a(f"v_add_f32 v{S+12}, v{A_}, v{B_}")
        a(f"buffer_store_dwordx2 v[{S+12}:{S+13}], v{vL8}, {srd(sWS)}, s{s_t2} offen sc1", tag="stst")
        self.stamp("stats_pub")

        na1 = o.get("na1", 2)
        u1, u2 = o.get("u1", 7), o.get("u2", 10)
        a.wait(vm=["w0_6", "gw"])
        a("s_barrier")
        GWF = 248
        def rd_gw(u): return (f"ds_read_b128 a[{GWF+4*(u&1)}:{GWF+4*(u&1)+3}], v{vGW} offset:{GWOFF + 64*u}", f"gr{u}")
        def z1_steps(ua, ub, bg):
            for u in range(ua, ub):
                ex = tr_w(u + 1, (u + 1) & 1) if u < 13 else []
                take = [bg.pop(0) for _ in range(min(len(bg), 4))]
                ex2 = []
                for m in range(8):
                    grp = ex[m:m+1] + ([take.pop(0)] if (m & 1) == 0 and take else [])
                    ex2.append(lambda grp=grp: emit(grp))
                mfma1(ACC1, u, u & 1, ex2)
                a.wait(lg=f"gr{u}")
                for nt in range(2):
                    d = GACC + 4 * nt; xr = XF + (u * 2 + nt) * 4
                    cin = "0" if u == 0 else f"v[{d}:{d+3}]"
                    a(f"v_mfma_f32_16x16x32_bf16 v[{d}:{d+3}], a[{GWF+4*(u&1)}:{GWF+4*(u&1)+3}], v[{xr}:{xr+3}], {cin}")
                    if nt == 0 and u < 13: self.put(rd_gw(u + 1))
                    if bg: self.put(bg.pop(0))
        emit(tr_w(0, 0) + [rd_gw(0)])
        PS = XF
        assert u1 >= 4
        bg = [f"s_add_u32 s{s_t2}, s{s_so}, 4096", f"s_lshl_b32 s{s_t1}, s{s_j}, 6", f"s_add_u32 s{s_t1}, s{s_t1}, s{s_sb}",
              f"s_lshl_b32 s{s_t3}, s{s_t1}, 12", f"s_add_u32 s{s_t3}, s{s_t3}, {WS_Z2N}", f"s_lshr_b32 s{s_t1}, s{s_t1}, 2",
              f"s_mul_i32 s{s_t1}, s{s_t1}, {FS}", f"s_add_u32 s{s_t1}, s{s_t1}, {WS_FZ2}", "\n".join(self.only_wave(s_t1, 1)),
              f"v_bfe_u32 v{t0}, v1, 2, 2", f"v_lshrrev_b32 v{t1}, 4, v1", f"v_lshlrev_b32 v{t0}, 8, v{t0}",
              f"v_lshl_add_u32 v{t0}, v{t1}, 6, v{t0}", f"v_and_b32 v{t1}, 3, v1", f"v_lshl_add_u32 v{t0}, v{t1}, 4, v{t0}"]
        for c in range(na0, na1): bg += dma_a(c)
        z1_steps(0, u1, bg); emit(bg)
        loads = []
        for jj in range(14):
            so, off = (s_so, jj * 512) if jj < 8 else (s_t2, (jj - 8) * 512)
            loads.append(f"buffer_load_dwordx2 v[{PS+2*jj}:{PS+2*jj+1}], v{vL8}, {srd(sWS)}, s{so} offen offset:{off} sc1")
        bg = [(l, "st") for l in loads]
        z1_steps(u1, u2, bg); emit(bg)
        self.stamp("z1_part")
        self.poll(loads, [PS + 2 * jj + 1 for jj in range(14)], vT, issued=True)
        self.stamp("stats_got")
        vals = [PS + 2 * jj for jj in range(14)]
        while len(vals) > 1:
            nv = []
            for q in range(0, len(vals) - 1, 2):
                a(f"v_add_f32 v{vals[q]}, v{vals[q]}, v{vals[q+1]}"); nv.append(vals[q])
            if len(vals) & 1: nv.append(vals[-1])
            vals = nv
        T_, U_ = PS, PS + 1
        a(f"v_mul_f32 v{T_}, {f2u(1/896):#x}, v{T_}")
        a(f"v_mov_b32 v{U_}, v{T_}")
        a(f"v_permlane16_swap_b32 v{T_}, v{U_}")
        a(f"v_fma_f32 v{U_}, -v{T_}, v{T_}, v{U_}")
        a(f"v_max_f32 v{U_}, 0, v{U_}")
        a(f"v_add_f32 v{U_}, {f2u(1e-5):#x}, v{U_}")
        R0, M0_, R1, M1_ = PS + 4, PS + 6, PS + 8, PS + 10
        a(f"v_rsq_f32 v{R0}, v{U_}")
        a(f"v_mul_f32 v{M0_}, v{T_}, v{R0}")
        a(f"v_mov_b32 v{R1}, v{R0}")
        a(f"v_mov_b32 v{M1_}, v{M0_}")
        a(f"v_permlane32_swap_b32 v{R0}, v{R1}")
        a(f"v_permlane32_swap_b32 v{M0_}, v{M1_}")
        ZP = PS + 12
        for ft in range(4):
            for nt in range(2):
                z = acc(ACC2, ft, nt); R, M = (R0, M0_) if nt == 0 else (R1, M1_)
                for p in range(2):
                    a(f"v_pk_fma_f32 {pr(z+2*p)}, {pr(z+2*p)}, {pr(R)}, {pr(M)} op_sel_hi:[1,0,0] neg_lo:[0,0,1] neg_hi:[0,0,1]")
                for p in range(2):
                    a(f"v_cvt_pk_bf16_f32 v{ZP+4*ft+2*nt+p}, v{z+2*p}, v{z+2*p+1}")
            a(f"buffer_store_dwordx4 v[{ZP+4*ft}:{ZP+4*ft+3}], v{t0}, {srd(sWS)}, s{s_t3} offen offset:{1024*ft} sc1", tag="zst")
        npre = self.npre
        na2 = o.get("na2", 2)
        nd = na1; bg = []
        for c in range(na1): bg += read_a(c)
        for _ in range(na2): bg += dma_a(nd); nd += 1
        z1_steps(u2, 14, bg); emit(bg)
        g1 = self.gelu(ACC1, 32, vT, vC0, vC1, vONE)
        cut = o.get("g1cut", 0)
        emit(g1[:cut])
        a.wait(vm="zst")
        a("s_barrier")
        self.flag(s_t1, vZ, vTAG)
        self.stamp("z2n_pub")
        bg = []
        nr = na1
        while nd < min(nr + 3, 32): bg += dma_a(nd); nd += 1
        while nr < npre:
            bg += read_a(nr); nr += 1
            if nd < 32 and nr < npre + o.get("tailpre", 0): bg += dma_a(nd); nd += 1
        fg = g1[cut:]
        for nt in range(2):
            d = GACC + 4 * nt
            fg += [f"v_mul_f32 v{d}, {f2u(-1.4426950408889634):#x}, v{d}", f"v_exp_f32 v{d}, v{d}", f"v_add_f32 v{d}, 1.0, v{d}", f"v_rcp_f32 v{d}, v{d}"]
        fg += [f"v_and_b32 v{t0}, 15, v1", f"v_lshl_add_u32 v{t0}, v{t0}, 2, s{s_wb}"]
        for nt in range(2): fg.append(f"ds_write_b32 v{t0}, v{GACC+4*nt} offset:{GATE + 64*nt}")
        for nt in range(2): fg.append(f"v_lshlrev_b32 v{vBS+nt}, 16, v{vBS+nt}")
        for ft in range(4):
            for nt in range(2):
                for r in range(4): fg.append(f"v_mov_b32 v{acc(ACC2, ft, nt)+r}, v{vBS+nt}")
        fg += [f"v_lshrrev_b32 v{t0}, 5, v1", f"v_and_b32 v{t1}, 3, v1", f"v_lshlrev_b32 v{t0}, 9, v{t0}", f"v_lshl_add_u32 v{t0}, v{t1}, 6, v{t0}",
               f"v_bfe_u32 v{t1}, v1, 2, 2", f"v_lshl_add_u32 v{t0}, v{t1}, 4, v{t0}", f"v_bfe_u32 v{t1}, v1, 4, 1",
               f"v_lshl_add_u32 v{vTR}, v{t1}, 3, v{t0}", f"v_add_u32 v{vTR+1}, {2*REGION}, v{vTR}"]
        vOD, vSW = vXD, vWD
        fg += [f"v_lshrrev_b32 v{t0}, 4, v1", f"v_lshlrev_b32 v{t0}, 1, v{t0}", f"v_xor_b32 v{t0}, v{t0}, v1", f"v_and_b32 v{t0}, 7, v{t0}",
               f"v_lshlrev_b32 v{vSW}, 4, v{t0}", f"v_lshrrev_b32 v{t2}, 3, v1", f"s_mul_i32 s{s_t0}, s{s_w}, {8*896}", f"s_lshl_b32 s{s_t3}, s{s_dj}, 7",
               f"s_add_u32 s{s_t0}, s{s_t0}, s{s_t3}", f"v_mul_u32_u24 v{vOD}, 896, v{t2}", f"v_add3_u32 v{vOD}, v{vOD}, v{vSW}, s{s_t0}"]
        for q in range(1, 4): fg.append(f"v_add_u32 v{vOD+q}, {q*(32*896-1024)}, v{vOD}")
        vYF = vGW
        fg += [f"s_mul_i32 s{s_t3}, s{s_dj}, 293", f"s_lshr_b32 s{s_t3}, s{s_t3}, 6", f"v_min_u32 v{vYF}, 5, v1", f"v_add_u32 v{vYF}, s{s_t3}, v{vYF}",
               f"v_min_u32 v{vYF}, 31, v{vYF}", f"v_mul_u32_u24 v{vYF}, {FS}, v{vYF}", f"v_add_u32 v{vYF}, {WS_FY}, v{vYF}"]
        yfl = f"buffer_load_dword v{vBS}, v{vYF}, {srd(sWS)}, 0 offen sc1"
        fg += [f"s_mul_i32 s{s_t2}, s{s_j}, {16*FS}", f"s_add_u32 s{s_t2}, s{s_t2}, {WS_FZ2}", f"v_and_b32 v{t0}, 15, v1", f"v_mul_u32_u24 v{t0}, {FS}, v{t0}"]
        weave(fg, bg, o.get("wv1", 3)); emit(bg)
        self.stamp("pre_done")

        self.poll([f"buffer_load_dword v{t1}, v{t0}, {srd(sWS)}, s{s_t2} offen sc1"], [t1], t2, wave=0)
        a("s_barrier")
        self.stamp("z2n_got")

        BF = 96
        def dma_b(st):
            out = [f"s_add_u32 m0, s{s_wb}, {BSLOT(st)}", f"s_add_u32 s{s_t3}, s{s_bw + (st>>2)}, s{s_br + (st&3)}"]
            for q in range(4):
                out.append((f"buffer_load_dwordx4 v{vLIN}, {srd(sWS)}, s{s_t3} offen offset:{q*1024} sc1 lds", f"b{st}"))
            return out
        def tr_b(sb):
            out = []
            st, wv = sb >> 2, sb & 3
            for ft in range(4):
                for hh in range(2):
                    r = BF + (sb % 3) * 16 + ft * 4 + hh * 2
                    off = (wv & 1) * REGION + BSLOT(st) + ft * 1024 + hh * 256
                    out.append((f"ds_read_b64_tr_b16 v[{r}:{r+1}], v{vTR+(wv>>1)} offset:{off}", f"br{sb}"))
            return out
        WOSLOT = ASLOT + [BSLOT(11), BSLOT(12), BSLOT(13)]
        def dma_wo(g4):
            out = [f"s_add_u32 m0, s{s_wb}, {WOSLOT[g4]}", f"s_mul_i32 s{s_so2}, s{s_ca+g4}, 896"]
            for q in range(4):
                out.append((f"buffer_load_dwordx4 v{vOD+q}, {srd(sWOUT)}, s{s_so2} offen offset:{q*1024} lds", "wo"))
            return out
        nb0 = o.get("nb0", 3)
        for st in range(nb0): emit(dma_b(st))
        while nr < nd and nr < 22: emit(read_a(nr)); nr += 1
        a.wait(vm="b0")
        a("s_barrier")
        emit(tr_b(0)); emit(tr_b(1))
        self.stamp("b0_got")
        pend = []
        for st in range(nb0, NB - 1): pend += dma_b(st)
        while nd < min(nr + 4, 32): pend += dma_a(nd); nd += 1
        ntail = 32 - nr
        first, last = o.get("tfirst", 8), o.get("tlast", 46)
        rd_at = {}
        for q, c in enumerate(range(nr, 32)):
            at = first + (q * (last - first)) // max(ntail - 1, 1)
            if c >= 22: at = max(at, 2 * (c - 22) + 2)
            while at in rd_at: at += 1
            assert at <= 2 * c - 2, (c, at)
            rd_at[at] = c
        wo_in = o.get("wo_in", 7); wo_done = 0
        tagof = lambda it: it[1] if isinstance(it, tuple) else None
        for sb in range(64):
            c, uu = sb >> 1, sb & 1
            gaps = [[] for _ in range(8)]
            if sb + 2 < 64:
                for m, x in enumerate(tr_b(sb + 2)): gaps[m].append(x)
            if (sb - 2) in rd_at:
                cc = rd_at[sb - 2]
                if nd < 32:
                    assert nd == cc + 4
                    pend += dma_a(nd); nd += 1
                elif cc >= 28 and wo_done < wo_in:
                    assert WOSLOT[wo_done] == ASLOT[cc % 4]
                    pend += [wlg(f"ar{cc}")] + dma_wo(wo_done); wo_done += 1
            if sb == o.get("yat", 59): pend.append((yfl, "yf"))
            a.wait(lg=[f"br{sb}", f"ar{c}"])
            free = [0, 1, 2, 3, 4, 5, 6, 7]
            if sb in rd_at:
                cc = rd_at[sb]
                while any(tagof(x) == f"a{cc}" for x in pend): self.put(pend.pop(0))
                rd = read_a(cc)
                self.put(rd[0])
                for m, x in enumerate(rd[1:]): gaps[2 * m].append(x)
                free = [1, 3, 5, 7]
            nv = 0
            for m in free[:-1] if len(free) == 8 else free:
                if pend:
                    isv = isinstance(pend[0], tuple)
                    if isv and (nv >= 2 or (nv == 1 and m < 4)): continue
                    gaps[m].append(pend.pop(0)); nv += isv
            k, b = areg(c)
            for m in range(8):
                ft, nt = m >> 1, m & 1
                d = acc(ACC2, ft, nt); br = BF + (sb % 3) * 16 + ft * 4; ar = b + (uu * 2 + nt) * 4
                a(f"v_mfma_f32_16x16x32_bf16 v[{d}:{d+3}], v[{br}:{br+3}], {k}[{ar}:{ar+3}], v[{d}:{d+3}]")
                emit(gaps[m])
            st = sb >> 2
            if (sb & 3) == 1 and st + 1 < 16:
                while any(tagof(x) == f"b{st+1}" for x in pend): self.put(pend.pop(0))
                a.wait(vm=f"b{st+1}")
                a("s_barrier")
                if st - 1 + NB < 16: pend += dma_b(st - 1 + NB)
                elif wo_done >= 4 and wo_done < wo_in and wo_done - 4 <= st - 12:
                    pend += dma_wo(wo_done); wo_done += 1
        emit(pend)
        self.stamp("p2_done")

        PP = 96
        a(f"s_mul_i32 s{s_t2}, s{s_sb}, {2*28}")
        a(f"s_lshl_b32 s{s_t3}, s{s_j}, 1")
        a(f"s_add_u32 s{s_t2}, s{s_t2}, s{s_t3}")
        a(f"s_lshl_b32 s{s_t2}, s{s_t2}, 10")
        a(f"s_add_u32 s{s_t2}, s{s_t2}, {WS_P}")
        a(f"s_add_u32 s{s_t3}, s{s_t2}, {28*1024}")
        for nt in range(2):
            for q in range(2):
                r = PP + (nt * 2 + q) * 4
                for h in range(2):
                    z = acc(ACC2, 2 * q + h, nt); z1 = acc(ACC1, 2 * q + h, nt)
                    for p in range(2): a(f"v_pk_mul_f32 {pr(z+2*p)}, {pr(z+2*p)}, {pr(z1+2*p)}")
                    for p in range(2): a(f"v_cvt_pk_bf16_f32 v{r+2*h+p}, v{z+2*p}, v{z+2*p+1}")
                a(f"buffer_store_dwordx4 v[{r}:{r+3}], v{vLIN}, {srd(sWS)}, s{s_t2 if nt == 0 else s_t3} offen offset:{1024*q} sc1", tag="pst")
        a(f"s_lshl_b32 s{s_t1}, s{s_i}, 4")
        a(f"s_add_u32 s{s_t1}, s{s_t1}, s{s_j}")
        a(f"s_mul_i32 s{s_t1}, s{s_t1}, {FS}")
        a(f"s_add_u32 s{s_t1}, s{s_t1}, {WS_FP}")
        emit(self.only_wave(s_t1, 1))
        if wo_done < 7:
            a("s_barrier")
            while wo_done < 7: emit(dma_wo(wo_done)); wo_done += 1
        QF, YF, KF, AP, GV = 112, 120, 64, 128, 144
        a(f"s_lshl_b32 s{s_t0}, s{s_i}, 1")
        a(f"s_add_u32 s{s_t0}, s{s_t0}, s{s_th}")
        a(f"s_and_b32 s{s_t2}, s{s_w}, 1")
        a(f"s_lshl_b32 s{s_t3}, s{s_t0}, 1")
        a(f"s_add_u32 s{s_t3}, s{s_t3}, s{s_t2}")
        a(f"s_mul_i32 s{s_t3}, s{s_t3}, {32*896}")
        a(f"s_lshl_b32 s{s_so}, s{s_dj}, 7")
        a(f"s_add_u32 s{s_t3}, s{s_t3}, s{s_so}")
        a(f"s_lshr_b32 s{s_so}, s{s_w}, 1")
        a(f"s_lshl_b32 s{s_so}, s{s_so}, 6")
        a(f"s_add_u32 s{s_so}, s{s_t3}, s{s_so}")
        a(f"s_add_u32 s{s_so2}, s{s_so}, {16*896}")
        vRW = vAD
        a(f"v_and_b32 v{t1}, 15, v1")
        a(f"v_mul_u32_u24 v{vRW}, 896, v{t1}")
        a(f"v_lshrrev_b32 v{t1}, 4, v1")
        a(f"v_lshl_add_u32 v{vRW+1}, v{t1}, 3, v{vRW}")
        a(f"v_lshrrev_b32 v{t0}, 5, v1")
        a(f"v_bfe_u32 v{t1}, v1, 2, 3")
        a(f"v_lshlrev_b32 v{t2}, 7, v{t1}")
        a(f"v_and_b32 v{t3}, 3, v1")
        a(f"v_lshl_add_u32 v{t2}, v{t3}, 3, v{t2}")
        a(f"v_bfe_u32 v{t3}, v1, 3, 2")
        a(f"v_lshl_add_u32 v{t2}, v{t3}, 5, v{t2}")
        a(f"s_and_b32 s{s_t3}, s{s_w}, 2")
        a(f"s_lshl_b32 s{s_t3}, s{s_t3}, 5")
        a(f"v_xor_b32 v{t3}, s{s_t3}, v{t2}")
        a(f"v_mul_u32_u24 v{t1}, {REGION}, v{t0}")
        a(f"v_add_u32 v{vTR}, v{t1}, v{t3}")
        a(f"v_xor_b32 v{vTR+1}, 32, v{vTR}")
        a(f"v_add_u32 v{vTR+2}, {2*REGION}, v{vTR}")
        a(f"v_add_u32 v{vTR+3}, {2*REGION}, v{vTR+1}")
        YOFF = BSLOT(14)
        vYA = vXR
        a(f"s_lshl_b32 s{s_t3}, s{s_t2}, 6")
        a(f"v_xor_b32 v{t3}, s{s_t3}, v{t2}")
        a(f"v_lshl_add_u32 v{t3}, v{t0}, 10, v{t3}")
        a(f"s_and_b32 s{s_t3}, s{s_w}, 2")
        a(f"s_mul_i32 s{s_t3}, s{s_t3}, {REGION}")
        a(f"s_add_u32 s{s_t3}, s{s_t3}, {YOFF}")
        a(f"v_add_u32 v{vYA}, s{s_t3}, v{t3}")
        a(f"v_xor_b32 v{vYA+1}, 32, v{vYA}")
        a(f"s_lshl_b32 s{s_t3}, s{s_th}, 1")
        a(f"s_add_u32 s{s_t3}, s{s_t3}, s{s_t2}")
        a(f"s_mul_i32 s{s_t3}, s{s_t3}, {REGION}")
        a(f"s_add_u32 s{s_t3}, s{s_t3}, {GATE}")
        a(f"v_and_b32 v{t1}, 15, v1")
        a(f"v_lshl_add_u32 v{t1}, v{t1}, 2, s{s_t3}")
        for nt in range(2): a(f"ds_read_b32 v{GV+2*nt}, v{t1} offset:{64*nt}", tag="kr")
        for dt2 in range(2):
            for nt in range(2):
                r = KF + (dt2 * 2 + nt) * 2
                a(f"ds_read_b64_tr_b16 v[{r}:{r+1}], v{vYA+nt} offset:{dt2*REGION + KVD - YOFF}", tag="kr")
        vYD = vC0
        a(f"v_bfe_u32 v{t1}, v1, 3, 1")
        a(f"v_lshrrev_b32 v{t2}, 4, v1")
        a(f"v_lshl_add_u32 v{t1}, v{t1}, 5, v{t2}")
        a(f"v_lshl_add_u32 v{vYD}, v{t1}, 12, v{vSW}")
        a(f"v_add_u32 v{vYD+1}, {4*4096-1024}, v{vYD}")
        s_y, s_y2 = s_aw, s_aw + 1
        a(f"s_lshl_b32 s{s_y}, s{s_dj}, 3")
        a(f"s_add_u32 s{s_y}, s{s_y}, s{s_w}")
        a(f"s_lshl_b32 s{s_y}, s{s_y}, 15")
        a(f"s_lshl_b32 s{s_cnt}, s{s_t0}, 7")
        a(f"s_add_u32 s{s_y}, s{s_y}, s{s_cnt}")
        a(f"s_add_u32 s{s_y}, s{s_y}, {WS_YT}")
        late_wo = "wo" in a.vm[a.vm.index("pst"):]
        def y_dma(sreg):
            a(f"s_add_u32 m0, s{s_wb}, {YOFF}")
            a(f"buffer_load_dwordx4 v{vYD}, {srd(sWS)}, s{sreg} offen sc1 lds", tag="y")
            a(f"buffer_load_dwordx4 v{vYD+1}, {srd(sWS)}, s{sreg} offen offset:1024 sc1 lds", tag="y")
        def q_loads():
            for dt2 in range(2):
                for nt in range(2):
                    r = QF + (dt2 * 2 + nt) * 2
                    a(f"buffer_load_dwordx2 v[{r}:{r+1}], v{vRW+1}, {srd(sQ)}, s{s_so if nt == 0 else s_so2} offen offset:{32*dt2}", tag="q")
        def wo_reads():
            for kq in range(28):
                for dt2 in range(2):
                    for hh in range(2):
                        r = (kq * 2 + dt2) * 4 + 2 * hh
                        a(f"ds_read_b64_tr_b16 a[{r}:{r+1}], v{vTR+2*hh+dt2} offset:{WOSLOT[kq>>2] + (kq&3)*1024}", tag="wor")
        if not late_wo:
            a.wait(vm=["wo", "yf"])
            a("s_barrier")
        else: a.wait(vm="yf")
        a(f"v_cmp_ne_u32 vcc, s{s_tag}, v{vBS}")
        a("s_cmp_eq_u64 vcc, 0")
        a(f"s_cselect_b32 s{s_y2}, s{s_y}, {WS_SIZE}")
        y_dma(s_y2)
        q_loads()
        if not late_wo: wo_reads()
        a.wait(vm="pst")
        a("s_barrier")
        self.flag(s_t1, vZ, vTAG)
        self.stamp("p_pub")
        if late_wo:
            a.wait(vm="wo")
            a("s_barrier")
            wo_reads()
        Ly = a.label("L_yok")
        a(f"s_cmp_eq_u32 s{s_y2}, s{s_y}")
        a(f"s_cbranch_scc1 {Ly}")
        self.poll([yfl], [vBS], vT)
        y_dma(s_y)
        a(f"{Ly}:")
        self.stamp("y_got")

        a(f"s_mul_i32 s{s_t3}, s{s_i}, {16*FS}")
        a(f"s_add_u32 s{s_t3}, s{s_t3}, {WS_FP}")
        a(f"v_min_u32 v{t1}, 13, v1")
        a(f"v_mul_u32_u24 v{t1}, {FS}, v{t1}")
        a(f"s_lshl_b32 s{s_t1}, s{s_t0}, 2")
        a(f"s_add_u32 s{s_t1}, s{s_t1}, s{s_w}")
        a(f"s_mul_i32 s{s_t1}, s{s_t1}, {28*1024}")
        a(f"s_add_u32 s{s_t1}, s{s_t1}, {WS_P}")
        for g4 in range(7):
            a(f"s_lshl_b32 s{s_ca+g4}, s{s_ca+g4}, 5")
            a(f"s_add_u32 s{s_ca+g4}, s{s_ca+g4}, s{s_t1}")
        vPR = vAD + 2
        a(f"s_mul_i32 s{s_t2}, s{s_t2}, {2*REGION}")
        a(f"v_add_u32 v{vPR}, s{s_t2}, v{vLIN}")
        a(f"v_add_u32 v{vPR+1}, {REGION}, v{vPR}")
        a(f"v_bfe_u32 v{t0}, v1, 4, 1")
        a(f"v_lshrrev_b32 v{t2}, 5, v1")
        a(f"v_lshl_add_u32 v{vRW}, v{t0}, 5, v{vRW}")
        a(f"v_lshl_add_u32 v{vRW}, v{t2}, 4, v{vRW}")
        self.poll([f"buffer_load_dword v{t3}, v{t1}, {srd(sWS)}, s{s_t3} offen sc1"], [t3], vT, wave=0)
        a("s_waitcnt vmcnt(0) lgkmcnt(0)")
        a("s_barrier")
        self.stamp("p_got")
        def dma_p(g4):
            out = [f"s_add_u32 m0, s{s_wb}, {WOSLOT[g4]}"]
            for q in range(4):
                out.append((f"buffer_load_dwordx4 v{vLIN}, {srd(sWS)}, s{s_ca+g4} offen offset:{q*1024} sc1 lds", f"p{g4}"))
            return out
        np0 = o.get("np0", 3)
        for g4 in range(np0): emit(dma_p(g4))
        for dt2 in range(2):
            for nt in range(2):
                r = YF + (dt2 * 2 + nt) * 2
                a(f"ds_read_b64_tr_b16 v[{r}:{r+1}], v{vYA+nt} offset:{dt2*REGION}", tag="yr")
        TQ, TY, TK = 148, 152, 156
        for x in range(4):
            for p in range(2): unpack(AP + 4 * x + 2 * p, QF + 2 * x + p)
            for p in range(2): a(f"v_pk_mul_f32 {pr(AP+4*x+2*p)}, {pr(AP+4*x+2*p)}, {pr(GV+2*(x&1))} op_sel_hi:[1,0]")
        a.wait(lg="yr")
        for x in range(4):
            for p in range(2):
                unpack(TY + 2 * p, YF + 2 * x + p); unpack(TK + 2 * p, KF + 2 * x + p)
            for p in range(2): a(f"v_pk_add_f32 {pr(TY+2*p)}, {pr(TY+2*p)}, {pr(TK+2*p)}")
            for p in range(2): a(f"v_pk_mul_f32 {pr(AP+4*x+2*p)}, {pr(AP+4*x+2*p)}, {pr(TY+2*p)}")
        for nt in range(2): a(f"v_sub_f32 v{GV+2*nt}, 1.0, v{GV+2*nt}")
        PF, ACC3 = 160, 32
        def read_p(g4):
            out = []
            for q in range(4):
                for nt in range(2):
                    r = PF + (g4 & 1) * 32 + (q * 2 + nt) * 4
                    out.append((f"ds_read_b128 v[{r}:{r+3}], v{vPR+nt} offset:{WOSLOT[g4] + q*1024}", f"pr{g4}_{q}"))
            return out
        a.wait(vm="p0"); a("s_barrier"); emit(read_p(0))
        for g4 in range(7):
            ex = dma_p(g4 + np0) if g4 + np0 < 7 else []
            for q in range(4):
                kq = g4 * 4 + q
                if q == 2 and g4 < 6:
                    emit(ex)
                    a.wait(vm=f"p{g4+1}"); a("s_barrier"); ex = read_p(g4 + 1)
                a.wait(lg=f"pr{g4}_{q}")
                for dt2 in range(2):
                    for nt in range(2):
                        d = ACC3 + (dt2 * 2 + nt) * 4; wr = (kq * 2 + dt2) * 4; r = PF + (g4 & 1) * 32 + (q * 2 + nt) * 4
                        cin = "0" if kq == 0 else f"v[{d}:{d+3}]"
                        a(f"v_mfma_f32_16x16x32_bf16 v[{d}:{d+3}], a[{wr}:{wr+3}], v[{r}:{r+3}], {cin}")
                        if ex: self.put(ex.pop(0))
        self.stamp("p3_done")
        OP = 64
        for nt in range(2):
            for dt2 in range(2):
                x = dt2 * 2 + nt; d = ACC3 + 4 * x
                for p in range(2):
                    a(f"v_pk_fma_f32 {pr(d+2*p)}, {pr(d+2*p)}, {pr(GV+2*nt)}, {pr(AP+4*x+2*p)} op_sel_hi:[1,0,1]")
                for p in range(2):
                    a(f"v_cvt_pk_bf16_f32 v{OP+4*nt+2*dt2+p}, v{d+2*p}, v{d+2*p+1}")
            for p in range(2): a(f"v_permlane16_swap_b32 v{OP+4*nt+p}, v{OP+4*nt+2+p}")
            a(f"buffer_store_dwordx4 v[{OP+4*nt}:{OP+4*nt+3}], v{vRW}, {srd(sOUT)}, s{s_so if nt == 0 else s_so2} offen")
        if self.stamps:
            a("s_waitcnt vmcnt(0)")
            self.stamp("end")
            self.dump_stamps()
        if self.o.get("padto"):
            a("L_padto:")
            a("s_memrealtime s[4:5]")
            a("s_waitcnt lgkmcnt(0)")
            a("s_sub_u32 s4, s4, s6")
            a(f"s_cmp_lt_u32 s4, {self.o['padto']*100}")
            a("s_cbranch_scc1 L_padto")
        a("s_endpgm")
        self.gemm_names = self.names

    def first_wait(self):
        if self.waited: return
        self.waited = True
        a = self.a
        a("s_waitcnt lgkmcnt(0)")
        if self.stamps:
            a(f"v_writelane_b32 v{vST}, s{s_ts}, 0"); self.names.append("start"); self.nst = 1

    def helper_wg(self):
        a = self.a; o = self.o
        emit, wvm, wlg = self.emit, self.wvm, self.wlg
        a.hist = []; a.vm = []; a.lg = []
        self.names = []; self.nst = 0; self.waited = False
        a("L_helper:")
        UOFF, CS, HSZ = 0, 4160, 4 * 4160
        HOFF = 68640
        EXOFF = HOFF + 4 * HSZ
        assert EXOFF + 16384 <= 163840
        s_hh, s_kh, s_cw, s_it, s_pi, s_buf, s_yo, s_fy, s_yp, s_fp, s_km = s_i, s_j, s_th, s_dj, 74, 75, s_so, s_so2, 76, 77, 78
        vZ, vTAG, vLIN, vF, vG, vG0, vHL, vHL2, vEXW, vEXR, vYS, vHW = 2, 3, 4, 5, 6, 7, 8, 9, 10, 11, 12, 13
        vUD = 32
        HD = 40
        HT = 52
        ASZ = 286 * 80
        s_hm, s_ch, s_um, s_us = 82, 83, 84, 85
        O = 16
        t0, t1, t2 = 24, 25, 26
        Y = 64
        FB = [96, 160]; GB = [128, 192]
        SEND, KEEP = 224, 240
        a(f"s_lshl_b32 s{s_hh}, s{s_t1}, 2")
        a(f"s_add_u32 s{s_hh}, s{s_hh}, s{s_t0}")
        a(f"s_sub_u32 s{s_hh}, s{s_hh}, 28")
        if o.get("cpf", 1):
            a(f"s_getpc_b64 s[80:81]")
            a("L_pc:")
            a(f"s_and_b32 s{s_t2}, s{s_hh}, 3")
            a(f"s_lshl_b32 s{s_t2}, s{s_t2}, 2")
            a(f"s_add_u32 s{s_t2}, s{s_t2}, s{s_w}")
            a(f"v_lshl_add_u32 v{t0}, v1, 4, s{s_t2}")
            a(f"v_lshlrev_b32 v{t0}, 7, v{t0}")
            a.raw(f"    v_min_u32 v{t0}, L_codeend-{NAME}-4, v{t0}")
            a.raw(f"    s_sub_u32 s80, s80, L_pc-{NAME}")
            a("s_subb_u32 s81, s81, 0")
            a("s_mov_b32 exec_hi, 0")
            a(f"global_load_dword v{t1}, v{t0}, s[80:81]")
            a("s_mov_b32 exec_hi, -1")
        a(f"s_and_b32 s{s_kh}, s{s_w}, 1")
        a(f"s_lshr_b32 s{s_cw}, s{s_w}, 1")
        a(f"v_mov_b32 v{vZ}, 0")
        a(f"v_lshlrev_b32 v{vLIN}, 4, v1")
        a(f"s_lshl_b32 s{s_t2}, s{s_kh}, 11")
        a(f"v_add_u32 v{vHL}, s{s_t2}, v{vLIN}")
        a(f"v_subrev_u32 v{vHL2}, 8, v{vHL}")
        a(f"s_mul_i32 s{s_pi}, s{s_hh}, 14")
        a(f"s_add_u32 s{s_pi}, s{s_pi}, s{s_cw}")
        self.first_wait()
        a(f"buffer_load_dword v{vTAG}, v{vZ}, {srd(sWS)}, 0 offen sc1", tag="epoch")
        def load_h():
            return [f"s_and_b32 s{s_t2}, s{s_pi}, 31", f"s_lshl_b32 s{s_t2}, s{s_t2}, 1", f"s_bfe_u32 s{s_t3}, s{s_pi}, 0x10005",
                    f"s_add_u32 s{s_t2}, s{s_t2}, s{s_t3}", f"s_andn2_b32 s{s_t3}, s{s_pi}, 63", f"s_add_u32 s{s_t2}, s{s_t2}, s{s_t3}",
                    f"s_lshl_b32 s{s_t3}, s{s_t2}, 12", f"s_add_u32 s{s_pi}, s{s_pi}, 2",
                    (f"buffer_load_dwordx2 v[{HD}:{HD+1}], v{vHL2}, {srd(sH)}, s{s_t3} offen", "h"),
                    (f"buffer_load_dwordx4 v[{HD+2}:{HD+5}], v{vHL}, {srd(sH)}, s{s_t3} offen", "h"),
                    (f"buffer_load_dwordx2 v[{HD+6}:{HD+7}], v{vHL}, {srd(sH)}, s{s_t3} offen offset:1016", "h"),
                    (f"buffer_load_dwordx4 v[{HD+8}:{HD+11}], v{vHL}, {srd(sH)}, s{s_t3} offen offset:1024", "h")]
        def w128(addr, r, off, tag):
            return [(f"ds_write_b64 v{addr}, v[{r}:{r+1}] offset:{off}", tag), (f"ds_write_b64 v{addr}, v[{r+2}:{r+3}] offset:{off+8}", tag)]
        def h_valu(rd):
            d = HD + 6 * rd; out = []
            for q in range(4): out.append(f"v_alignbit_b32 v{HT+q}, v{d+q+2}, v{d+q+1}, 16")
            for q in range(4): out.append(f"v_mov_b32 v{HT+4+q}, v{d+q+1}")
            for q in range(4): out.append(f"v_alignbit_b32 v{HT+8+q}, v{d+q+1}, v{d+q}, 16")
            return out
        def h_writes(rd):
            d = HD + 6 * rd
            return w128(vHW, d + 2, 1024 * rd, "hw") + w128(vHW, HT, 1024 * rd + CS, "hw") + w128(vHW, HT + 4, 1024 * rd + 2 * CS, "hw") + w128(vHW, HT + 8, 1024 * rd + 3 * CS, "hw")
        a(f"s_lshl_b32 s{s_yo}, s{s_pi}, 12")
        a(f"s_lshl_b32 s{s_t2}, s{s_kh}, 9")
        a(f"s_add_u32 s{s_yo}, s{s_yo}, s{s_t2}")
        a(f"s_add_u32 s{s_yo}, s{s_yo}, {WS_YT}")
        a(f"s_mul_i32 s{s_fy}, s{s_hh}, {FS}")
        a(f"s_add_u32 s{s_fy}, s{s_fy}, {WS_FY}")
        emit(self.only_wave(s_fy, 0))
        emit(load_h())
        for q in range(4): a(f"v_mov_b32 v{Y+q}, 0")
        a(f"v_min_u32 v{t0}, 149, v0")
        a(f"v_lshlrev_b32 v{t0}, 4, v{t0}")
        for q in range(3): a(f"ds_write_b128 v{t0}, v[{Y}:{Y+3}] offset:{q*ASZ}")
        a(f"v_bfe_u32 v{t0}, v1, 1, 4")
        a(f"v_and_b32 v{t2}, 1, v1")
        a(f"v_mul_u32_u24 v{t0}, {CS}, v{t0}")
        a(f"v_lshl_add_u32 v{t0}, v{t2}, 4, v{t0}")
        a(f"v_add_u32 v{t0}, {HOFF}, v{t0}")
        a(f"ds_write_b128 v{t0}, v[{Y}:{Y+3}]")
        a.wait(vm="epoch")
        self.get_tag(vTAG, vTAG)
        if o.get("hpf", 0):
            for q in range(2):
                a(f"v_lshrrev_b32 v{t0}, 5, v1")
                a(f"s_mul_i32 s{s_t2}, s{s_hh}, 14")
                a(f"s_lshl_b32 s{s_t3}, s{s_w}, 2")
                a(f"s_add_u32 s{s_t2}, s{s_t2}, s{s_t3}")
                a(f"v_add3_u32 v{t0}, v{t0}, s{s_t2}, {2*q}")
                a(f"v_and_b32 v{t1}, 31, v{t0}")
                a(f"v_bfe_u32 v{t2}, v{t0}, 5, 1")
                a(f"v_lshl_add_u32 v{t1}, v{t1}, 1, v{t2}")
                a(f"v_and_b32 v{t0}, 0xffc0, v{t0}")
                a(f"v_add_u32 v{t0}, v{t0}, v{t1}")
                a(f"v_and_b32 v{t1}, 31, v1")
                a(f"v_lshlrev_b32 v{t1}, 7, v{t1}")
                a(f"v_lshl_add_u32 v{t0}, v{t0}, 12, v{t1}")
                a(f"buffer_load_dword v{Y+8+q}, v{t0}, {srd(sH)}, 0 offen", tag="pf")
        if o.get("w1pf", 1):
            a(f"s_and_b32 s{s_t2}, s{s_hh}, 3")
            a(f"s_lshl_b32 s{s_t2}, s{s_t2}, 2")
            a(f"s_add_u32 s{s_t2}, s{s_t2}, s{s_w}")
            a(f"s_mul_i32 s{s_t2}, s{s_t2}, {28*3584}")
            a(f"s_bfe_u32 s{s_t3}, s{s_hh}, 0x10002")
            a(f"s_mul_i32 s{s_t3}, s{s_t3}, 896")
            a(f"s_add_u32 s{s_t2}, s{s_t2}, s{s_t3}")
            a(f"v_lshrrev_b32 v{t0}, 3, v1")
            a(f"v_min_u32 v{t0}, 6, v{t0}")
            a(f"v_and_b32 v{t1}, 7, v1")
            a(f"v_min_u32 v{t1}, 6, v{t1}")
            a(f"v_mul_u32_u24 v{t0}, 3584, v{t0}")
            a(f"v_lshl_add_u32 v{t0}, v{t1}, 7, v{t0}")
            for q in range(4):
                a(f"buffer_load_dword v{Y+10+q}, v{t0}, {srd(sWIN)}, s{s_t2} offen", tag="pf")
                if q < 3: a(f"s_add_u32 s{s_t2}, s{s_t2}, {7*3584}")
        for q in range(5):
            a(f"v_add_u32 v{t0}, {64*q}, v1")
            a(f"v_mul_u32_u24 v{t1}, 13108, v{t0}")
            a(f"v_lshrrev_b32 v{t1}, 16, v{t1}")
            a(f"v_mul_u32_u24 v{t2}, {7168-80}, v{t1}")
            a(f"v_lshl_add_u32 v{vUD+q}, v{t0}, 4, v{t2}")
            if q & 3: a(f"v_subrev_u32 v{vUD+q}, {1024*(q&3)}, v{vUD+q}")
        a(f"v_and_b32 v{t0}, 15, v1")
        a(f"v_lshrrev_b32 v{t1}, 4, v1")
        a(f"v_lshlrev_b32 v{t2}, 3, v{t1}")
        a(f"v_sub_u32 v{t2}, v{t0}, v{t2}")
        a(f"v_add_u32 v{t2}, 25, v{t2}")
        a(f"v_sub_u32 v{vF}, 0, v{t2}")
        a(f"v_and_b32 v{vF}, 3, v{vF}")
        a(f"v_mul_u32_u24 v{vF}, {CS+2}, v{vF}")
        a(f"v_lshl_add_u32 v{vF}, v{t2}, 1, v{vF}")
        a(f"s_mul_i32 s{s_t2}, s{s_cw}, {2*HSZ}")
        a(f"s_add_u32 s{s_t2}, s{s_t2}, {HOFF}")
        a(f"s_lshl_b32 s{s_t3}, s{s_kh}, 8")
        a(f"s_add_u32 s{s_t3}, s{s_t3}, s{s_t2}")
        a(f"v_add_u32 v{vF}, s{s_t3}, v{vF}")
        a(f"s_add_u32 s{s_t2}, s{s_t2}, 32")
        a(f"v_add_u32 v{vHW}, s{s_t2}, v{vHL}")
        a(f"v_lshl_add_u32 v{t2}, v{t0}, 1, v{t1}")
        a(f"v_mul_u32_u24 v{vG0}, 80, v{t2}")
        a(f"s_xor_b32 s{s_t2}, s{s_kh}, 1")
        a(f"s_mul_i32 s{s_t2}, s{s_t2}, {16*80}")
        a(f"v_add_u32 v{vG0}, s{s_t2}, v{vG0}")
        a(f"s_lshl_b32 s{s_ch}, s{s_cw}, 4")
        a(f"v_add_u32 v{vG}, s{s_ch}, v{vG0}")
        a(f"s_lshl_b32 s{s_t2}, s{s_w}, 12")
        a(f"s_add_u32 s{s_t2}, s{s_t2}, {EXOFF}")
        a(f"v_add_u32 v{vEXW}, s{s_t2}, v{vLIN}")
        a(f"s_xor_b32 s{s_t2}, s{s_w}, 1")
        a(f"s_lshl_b32 s{s_t2}, s{s_t2}, 12")
        a(f"s_add_u32 s{s_t2}, s{s_t2}, {EXOFF}")
        a(f"v_add_u32 v{vEXR}, s{s_t2}, v{vLIN}")
        a(f"v_lshlrev_b32 v{vYS}, 5, v{t0}")
        a(f"v_bfe_u32 v{t2}, v1, 4, 1")
        a(f"v_lshl_add_u32 v{vYS}, v{t2}, 10, v{vYS}")
        a(f"v_lshrrev_b32 v{t2}, 5, v1")
        a(f"v_lshl_add_u32 v{vYS}, v{t2}, 4, v{vYS}")
        a(f"s_sub_u32 s{s_km}, 0, s{s_kh}")
        a(f"s_mov_b32 s{s_km+1}, s{s_km}")
        a.wait(vm="h")
        for rd in range(2):
            emit(h_valu(rd)); emit(h_writes(rd)); a("s_waitcnt lgkmcnt(0)")
        emit(load_h())
        a(f"s_mov_b32 s{s_buf}, {HSZ}")
        a(f"v_add_u32 v{vHW}, s{s_buf}, v{vHW}")
        a(f"s_mul_i32 s{s_t2}, s{s_hh}, 14")
        a(f"s_lshr_b32 s{s_t3}, s{s_t2}, 6")
        a(f"s_min_u32 s{s_t3}, s{s_t3}, 5")
        a(f"s_mul_i32 s{s_t3}, s{s_t3}, {32*FS}")
        a(f"s_add_u32 s{s_t3}, s{s_t3}, {WS_FKV}")
        a(f"v_mul_u32_u24 v{t1}, {FS}, v1")
        a(f"s_lshl_b32 s{s_t2}, s{s_t2}, 4")
        a(f"s_mul_i32 s{s_t1}, s{s_w}, {64*7168}")
        a(f"s_add_u32 s{s_t2}, s{s_t2}, s{s_t1}")
        a(f"s_add_u32 s{s_us}, s{s_t2}, {WS_KVT}")
        a(f"s_mul_i32 s{s_um}, s{s_w}, 5120")
        a(f"s_add_u32 s{s_um}, s{s_um}, {UOFF + 2400}")
        a(f"s_mov_b32 s{s_it}, 0")
        a(f"s_mov_b32 s{s_yp}, {WS_SIZE}")
        self.stamp("h_ready")
        self.poll([f"buffer_load_dword v{t2}, v{t1}, {srd(sWS)}, s{s_t3} offen sc1"], [t2], t0, wave=0)
        a("s_waitcnt lgkmcnt(0)")
        a("s_barrier")
        self.stamp("kv_got")
        def dma_u():
            for q in range(5):
                if (q & 3) == 0: a(f"s_add_u32 m0, s{s_um}, {1024*q}")
                a(f"buffer_load_dwordx4 v{vUD+q}, {srd(sWS)}, s{s_us} offen offset:{1024*(q&3)} sc1 lds")
            a(f"s_add_u32 s{s_um}, s{s_um}, {ASZ}")
        dma_u()
        a(f"s_add_u32 s{s_us}, s{s_us}, 80")
        a("s_waitcnt vmcnt(0)")
        a("s_barrier")
        self.stamp("u_got")

        def reads(rr):
            b = rr & 1; out = []
            for q in range(8):
                for h in range(2):
                    out.append((f"ds_read_b64 v[{FB[b]+4*q+2*h}:{FB[b]+4*q+2*h+1}], v{vF} offset:{512*q + 64*rr + 8*h}", f"c{rr}_{int(q>4)}"))
                out.append((f"ds_read_b128 v[{GB[b]+4*q}:{GB[b]+4*q+3}], v{vG} offset:{2560*q + 320*(3-rr)}", f"c{rr}_{int(q>4)}"))
            return out
        def copy_pair(x):
            out = []
            for r in range(4):
                ev, od = Y + 8 * x + r, Y + 8 * x + 4 + r
                out.append(f"v_cndmask_b32 v{SEND+4*x+r}, v{od}, v{ev}, s[{s_km}:{s_km+1}]")
                out.append(f"v_cndmask_b32 v{KEEP+4*x+r}, v{ev}, v{od}, s[{s_km}:{s_km+1}]")
            return out
        ex_w = sum((w128(vEXW, SEND + 4 * x, 1024 * x, "exw") for x in range(4)), [])
        ex_r = [(f"ds_read_b128 v[{SEND+4*x}:{SEND+4*x+3}], v{vEXR} offset:{1024*x}", "exr") for x in range(4)]
        adds = [f"v_add_f32 v{SEND+r}, v{SEND+r}, v{KEEP+r}" for r in range(16)]
        def outp(sreg):
            out = []
            for x in range(4):
                for p in range(2): out.append(f"v_cvt_pk_bf16_f32 v{O+2*x+p}, v{SEND+4*x+2*p}, v{SEND+4*x+2*p+1}")
            for x2 in range(2):
                for p in range(2): out.append(f"v_permlane16_swap_b32 v{O+4*x2+p}, v{O+4*x2+2+p}")
            for x2 in range(2):
                out.append((f"buffer_store_dwordx4 v[{O+4*x2}:{O+4*x2+3}], v{vYS}, {srd(sWS)}, s{sreg} offen offset:{2048*x2} sc1", "yst"))
            return out
        def flag_items(sreg):
            return [(f"buffer_store_dword v{vTAG}, v{vZ}, {srd(sWS)}, s{sreg} offen sc1", "flag")]
        def block(rr, lds, oth):
            b = rr & 1; m = 0
            hold = []
            for s in range(8):
                if s == 5: a.wait(lg=f"c{rr}_1")
                for q in range(s + 1):
                    e = s - q; d = Y + 4 * s
                    cin = "0" if (rr == 0 and q == 0) else f"v[{d}:{d+3}]"
                    a(f"v_mfma_f32_16x16x32_bf16 v[{d}:{d+3}], v[{FB[b]+4*q}:{FB[b]+4*q+3}], v[{GB[b]+4*e}:{GB[b]+4*e+3}], {cin}")
                    hold += oth.get(m, [])
                    n = 0
                    if lds:
                        it = lds.pop(0); self.put(it)
                        n += 2 if "write" in it[0] else 1
                    while hold and n < 2: self.put(hold.pop(0)); n += 1
                    m += 1
            assert not lds and not hold, (rr, lds, hold)
        emit(reads(0))
        a("s_waitcnt lgkmcnt(0)")
        a.fence()
        a("L_conv:")
        def cyc(n):
            if self.stamps and o.get("fine"):
                a("s_memtime s[4:5]"); a("s_waitcnt lgkmcnt(0)"); a(f"v_writelane_b32 v{vST}, s4, {16+n}")
        cyc(0)
        block(0, reads(1) + h_writes(0) + ex_w[:4], {0: ["s_waitcnt vmcnt(2)"] + h_valu(0) + copy_pair(3)})
        a.wait(lg="c1_1")
        cyc(1)
        block(1, ex_w[4:] + reads(2)[:14] + h_writes(1) + reads(2)[14:], {4: [wlg("hw")] + h_valu(1)})
        a.wait(lg=["hw", "exw", "c2_0"])
        a("s_barrier")
        Lu = a.label("L_nou")
        a(f"s_cmp_ge_u32 s{s_it}, 2")
        a(f"s_cbranch_scc1 {Lu}")
        dma_u()
        a(f"s_add_u32 s{s_us}, s{s_us}, 64")
        a(f"{Lu}:")
        cyc(2)
        upd = [f"v_add_u32 v{vF}, s{s_buf}, v{vF}", f"v_add_u32 v{vG}, s{s_t1}, v{vG0}", f"v_subrev_u32 v{vHW}, s{s_buf}, v{vHW}",
               f"s_sub_u32 s{s_buf}, 0, s{s_buf}"]
        nch = [f"s_add_u32 s{s_ch}, s{s_ch}, 32", f"s_cmp_ge_u32 s{s_ch}, 80", f"s_cselect_b32 s{s_t1}, {ASZ-80}, 0",
               f"s_cmp_ge_u32 s{s_ch}, 160", f"s_cselect_b32 s{s_t1}, {2*ASZ-144}, s{s_t1}", f"s_add_u32 s{s_t1}, s{s_t1}, s{s_ch}"]
        block(2, ex_r + reads(3), {0: load_h() + [wlg("exr")] + adds + nch, 30: upd})
        a.wait(lg="c3_1")
        cyc(3)
        block(3, reads(0), {0: outp(s_yp), 14: copy_pair(0) + copy_pair(1), 27: copy_pair(2)})
        cyc(4)
        a(f"s_mov_b32 s{s_yp}, s{s_yo}")
        a(f"s_add_u32 s{s_yo}, s{s_yo}, 8192")
        a(f"s_add_u32 s{s_it}, s{s_it}, 1")
        a(f"s_cmp_lt_u32 s{s_it}, 7")
        a("s_waitcnt lgkmcnt(0)")
        a("s_barrier")
        a("s_cbranch_scc1 L_conv")
        emit(copy_pair(3)); emit(ex_w)
        a("s_waitcnt lgkmcnt(0)")
        a("s_barrier")
        emit(ex_r)
        a("s_waitcnt lgkmcnt(0)")
        emit(adds); emit(outp(s_yp))
        a("s_waitcnt vmcnt(0)")
        a("s_barrier")
        self.flag(s_fy, vZ, vTAG)
        self.stamp("conv_done")
        self.dump_stamps()
        a(f"s_lshl_b32 s{s_t2}, s{s_hh}, 2")
        a(f"s_add_u32 s{s_t2}, s{s_t2}, s{s_w}")
        a(f"s_cmp_lg_u32 s{s_t2}, 0")
        a("s_cbranch_scc1 L_end")
        a(f"v_mul_u32_u24 v{t0}, {FS}, v1")
        loads = []
        for q in range(4):
            a(f"s_mov_b32 s{80+q}, {WS_FKV + 64*FS*q}")
            loads.append(f"buffer_load_dword v{96+q}, v{t0}, {srd(sWS)}, s{80+q} offen sc1")
        self.poll(loads, list(range(96, 100)), t1)
        a(f"s_mov_b32 s{s_t2}, {WS_EPOCH}")
        self.flag(s_t2, vZ, vTAG)
        a("L_end:")
        a("s_endpgm")
        a("L_codeend:")
        self.helper_names = self.names

    def build(self):
        a = self.a
        ref = open("gated_mix__ssm_conv_h3__mixer_gmlp__prompt.s.ref").read().split("\n")
        for l in ref:
            if l.startswith(";") and "@launch" not in l: a.raw(l)
            elif not l.startswith(";"): break
        a.raw(header(["@launch grid=(256,1,1) block=(256,1,1) lds=163840"]))
        a.raw(kstart(NAME))
        self.prologue()
        self.gemm_wg()
        self.helper_wg()
        a.raw(kdesc(NAME, 512, 256))
        return a.text()

if __name__ == "__main__":
    import argparse
    ap = argparse.ArgumentParser()
    ap.add_argument("-o", default="gated_mix__ssm_conv_h3__mixer_gmlp__prompt.s")
    ap.add_argument("--stamps", action="store_true")
    ap.add_argument("--npre", type=int, default=16)
    ap.add_argument("--opt", action="append", default=[])
    args = ap.parse_args()
    g = Gen(stamps=args.stamps, npre=args.npre, opts={o.split("=")[0]: int(o.split("=")[1]) for o in args.opt})
    t = g.build()
    open(args.o, "w").write(t)
    print("lines", t.count("\n"), "pad states", g.a.npad, "max vm", g.a.maxvm)
```

```python
import sys, struct
from asmlib import *

NAME = "gated_mix__ssm_conv_h3__mixer_gmlp__prompt_kernel"

WS_EPOCH = 0x0
FS       = 128
WS_FKV   = 0x1000
WS_FY    = WS_FKV + 224 * FS
WS_FZ2   = 0x10000
WS_FP    = 0x18000
WS_G     = 0x20000
WS_TS    = 0x40000
WS_STATS = 0x80000
WS_KVT   = 0x100000
WS_YT    = 0x300000
WS_Z2N   = 0x500000
WS_P     = 0x900000
WS_X     = 0xD00000
WS_SIZE  = 0x1400000

REGION = 40960
SPIN = 20000

def f2u(x): return struct.unpack("<I", struct.pack("<f", x))[0]

sQ, sK, sV, sSH, sWIN, sWSP, sWOUT, sWS, sOUT, sGW, sBSP, sH, sD = 8, 12, 16, 20, 24, 28, 32, 36, 40, 44, 48, 52, 56
s_i, s_j, s_th, s_dj, s_w, s_wb, s_tag = 60, 61, 62, 63, 64, 65, 66
s_t0, s_t1, s_t2, s_t3, s_cnt, s_so, s_so2 = 67, 68, 69, 70, 71, 72, 73
s_ts = 4
s_ca = 74
s_aw, s_ar, s_bw, s_br = 81, 85, 93, 97
s_jp, s_ff, s_xs, s_xr = sH, sH + 1, sH + 2, sK
vST = 31
s_sb = 3
def srd(b): return f"s[{b}:{b+3}]"

class Gen:
    def __init__(self, stamps=False, npre=16, opts=None):
        self.a = Asm()
        self.stamps = stamps
        self.nst = 0
        self.npre = npre
        self.o = opts or {}
        self.skip = set()
        self.waited = False

    def stamp(self, name):
        if self.o.get("probe_" + name):
            self.a("s_memrealtime s[6:7]"); self.a("s_waitcnt lgkmcnt(0)")
        if not self.stamps or name in self.skip: return
        a = self.a
        a(f"s_memrealtime s[{s_ts}:{s_ts+1}]")
        a("s_waitcnt lgkmcnt(0)")
        a(f"v_writelane_b32 v{vST}, s{s_ts}, {self.nst}")
        self.names.append(name)
        self.nst += 1
        assert self.nst <= 32

    def dump_stamps(self):
        if not self.stamps: return
        a = self.a
        a(f"s_lshl_b32 s{s_t0}, s2, 2")
        a(f"s_add_u32 s{s_t0}, s{s_t0}, s{s_w}")
        a(f"s_lshl_b32 s{s_t0}, s{s_t0}, 7")
        a(f"s_add_u32 s{s_t0}, s{s_t0}, {WS_TS}")
        a("v_lshlrev_b32 v30, 2, v1")
        a("s_mov_b32 exec_hi, 0")
        a(f"buffer_store_dword v{vST}, v30, {srd(sWS)}, s{s_t0} offen")
        a("s_mov_b64 exec, -1")

    def poll(self, loads, tagregs, vt, wave=None, issued=False, vtag=None, nap=0):
        a = self.a
        L = a.label("L_poll"); Ld = a.label("L_polld")
        if wave is not None:
            vm_before = list(a.vm)
            a(f"s_cmp_lg_u32 s{s_w}, {wave}")
            a(f"s_cbranch_scc1 {Ld}")
        a(f"s_mov_b32 s{s_cnt}, {SPIN}")
        a.fence()
        if issued:
            Lc = a.label("L_pollc")
            a.wait(vm=issued)
            if wave is None: vm_before = list(a.vm)
            a(f"s_branch {Lc}")
        a(f"{L}:")
        for l in loads: a(l)
        a("s_waitcnt vmcnt(0)")
        if issued: a(f"{Lc}:")
        if len(tagregs) == 1:
            a(f"v_cmp_ne_u32 vcc, s{s_tag}, v{tagregs[0]}")
        else:
            if vtag is None:
                a(f"v_xor_b32 v{vt}, s{s_tag}, v{tagregs[0]}")
                for r in tagregs[1:]:
                    a(f"v_bitop3_b32 v{vt}, v{vt}, v{r}, s{s_tag} bitop3:0xf6")
            else:
                for r in tagregs: a(f"v_xor_b32 v{r}, v{vtag}, v{r}")
                a(f"v_or_b32 v{vt}, v{tagregs[0]}, v{tagregs[1]}")
                for z in range(2, len(tagregs), 2): a(f"v_or3_b32 v{vt}, v{vt}, v{tagregs[z]}, v{tagregs[z+1]}")
                a(f"v_and_b32 v{vt}, 0xff, v{vt}")
            a(f"v_cmp_ne_u32 vcc, 0, v{vt}")
        a("s_cmp_eq_u64 vcc, 0")
        a(f"s_cbranch_scc1 {Ld}")
        if nap: a(f"s_sleep {nap}")
        a(f"s_sub_u32 s{s_cnt}, s{s_cnt}, 1")
        a(f"s_cmp_lg_u32 s{s_cnt}, 0")
        a(f"s_cbranch_scc1 {L}")
        a(f"{Ld}:")
        if wave is not None or issued: a.vm = vm_before

    def flag(self, soff_reg, vz, vtag):
        a = self.a
        a("s_mov_b32 exec_hi, 0")
        a(f"buffer_store_dword v{vtag}, v{vz}, {srd(sWS)}, s{soff_reg} offen sc1", tag="flag")
        a("s_mov_b32 exec_hi, -1")
    def only_wave(self, sreg, wave):
        return [f"s_cmp_eq_u32 s{s_w}, {wave}", f"s_cselect_b32 s{sreg}, s{sreg}, {WS_SIZE}"]

    def mk_srd(self, b, nbytes):
        a = self.a
        a(f"s_mov_b32 s{b+2}, {nbytes}")
        a(f"s_mov_b32 s{b+3}, 0x20000")

    def gelu(self, base, n, vt, vC0, vC1, vONE):
        o = []
        for b in range(base, base + n, 8):
            for p in range(4): o.append(f"v_pk_mul_f32 v[{vt+2*p}:{vt+2*p+1}], v[{b+2*p}:{b+2*p+1}], v[{b+2*p}:{b+2*p+1}]")
            for p in range(4): o.append(f"v_pk_fma_f32 v[{vt+2*p}:{vt+2*p+1}], v[{vt+2*p}:{vt+2*p+1}], v[{vC1}:{vC1+1}], v[{vC0}:{vC0+1}]")
            for p in range(4): o.append(f"v_pk_mul_f32 v[{vt+2*p}:{vt+2*p+1}], v[{vt+2*p}:{vt+2*p+1}], v[{b+2*p}:{b+2*p+1}]")
            for p in range(8): o.append(f"v_exp_f32 v{vt+p}, v{vt+p}")
            for p in range(4): o.append(f"v_pk_add_f32 v[{vt+2*p}:{vt+2*p+1}], v[{vt+2*p}:{vt+2*p+1}], v[{vONE}:{vONE+1}]")
            for p in range(8): o.append(f"v_rcp_f32 v{vt+p}, v{vt+p}")
            for p in range(4): o.append(f"v_pk_mul_f32 v[{b+2*p}:{b+2*p+1}], v[{b+2*p}:{b+2*p+1}], v[{vt+2*p}:{vt+2*p+1}]")
        return o

    def put(self, it):
        if callable(it): it()
        elif isinstance(it, tuple): self.a(it[0], tag=it[1])
        else: self.a(it)
    def emit(self, lst):
        for it in lst: self.put(it)
    def weave(self, fg, bg, every):
        acc = 0.0
        for it in fg:
            self.put(it)
            acc += 1.0 / every
            while acc >= 1.0 and bg:
                self.put(bg.pop(0)); acc -= 1.0
    def wvm(self, tags): return lambda: self.a.wait(vm=tags)
    def wlg(self, tags): return lambda: self.a.wait(lg=tags)

    def prologue(self):
        a = self.a
        a("s_cmp_ge_u32 s2, 256")
        a("s_cbranch_scc1 L_end")
        for b, off in ((sK, 8), (sV, 16), (sSH, 24), (sQ, 0), (sWIN, 56), (sWS, 112), (sWSP, 64), (sBSP, 72), (sWOUT, 80), (sGW, 88), (sOUT, 96), (sH, 32), (sD, 40)):
            a(f"s_load_dwordx2 s[{b}:{b+1}], s[0:1], {off}")
        if self.stamps:
            a(f"s_memrealtime s[{s_ts}:{s_ts+1}]")
        if self.o.get("padto"):
            a("s_memrealtime s[6:7]")
        a("v_lshrrev_b32 v2, 6, v0")
        a("v_and_b32 v1, 63, v0")
        a(f"v_readfirstlane_b32 s{s_w}, v2")
        for b, n in ((sK, 1835008), (sV, 1835008), (sSH, 3584), (sQ, 1835008), (sWIN, 1605632), (sWS, WS_SIZE), (sWSP, 8388608),
                     (sBSP, 4096), (sWOUT, 802816), (sGW, 896), (sOUT, 1835008), (sH, 1835008), (sD, 896)):
            self.mk_srd(b, n)
        a(f"s_lshr_b32 s{s_t0}, s2, 3")
        a(f"s_and_b32 s{s_t1}, s2, 7")
        a(f"s_cmp_ge_u32 s{s_t0}, 28")
        a("s_cbranch_scc1 L_helper")

    def get_tag(self, vt, vtag):
        a = self.a
        a(f"v_readfirstlane_b32 s{s_tag}, v{vt}")
        a(f"s_mul_i32 s{s_tag}, s{s_tag}, 0x9E3779B1")
        a(f"s_add_u32 s{s_tag}, s{s_tag}, 0x7F4A7C15")
        a(f"v_mov_b32 v{vtag}, s{s_tag}")

    def gemm_wg(self):
        a = self.a; o = self.o
        emit, weave, wvm, wlg = self.emit, self.weave, self.wvm, self.wlg
        self.names = []; self.nst = 0
        vZ, vTAG = 2, 3
        vXD = 4
        vWD = 8
        vTR = 10
        vXR = 14
        vLIN, vL8 = 16, 17
        vBS = 18
        vC0, vC1, vONE = 20, 22, 24
        vAD = 26
        vGW = 30
        vWD1 = 240
        vT = 248
        ACC2, ACC1, WF, XF = 32, 64, 96, 144
        acc = lambda base, ft, nt: base + (ft * 2 + nt) * 4
        pr = lambda b: f"v[{b}:{b+1}]"
        WOFF, GWOFF = 0, 14336
        ASLOT = [20480, 24576, 28672, 32768]
        XS5 = [ASLOT[3], 16384, ASLOT[0], ASLOT[1], ASLOT[2]]
        XSLOT = lambda c: XS5[c % 5]
        KVD, QOFF, GATE = 36864, 38912, 15360
        NB = 5
        BSLOT = lambda st: (st % NB) * 4096
        t0, t1, t2, t3 = vT + 3, vT + 4, vT + 5, vT + 6

        a(f"s_mul_i32 s{s_t2}, s{s_t0}, 37")
        a(f"s_lshr_b32 s{s_t2}, s{s_t2}, 8")
        a(f"s_mul_i32 s{s_t3}, s{s_t2}, 7")
        a(f"s_sub_u32 s{s_dj}, s{s_t0}, s{s_t3}")
        a(f"s_and_b32 s{s_th}, s{s_t1}, 1")
        a(f"s_lshr_b32 s{s_t1}, s{s_t1}, 1")
        a(f"s_lshl_b32 s{s_t1}, s{s_t1}, 2")
        a(f"s_add_u32 s{s_i}, s{s_t1}, s{s_t2}")
        a(f"s_mul_i32 s{s_j}, s{s_th}, 7")
        a(f"s_add_u32 s{s_j}, s{s_j}, s{s_dj}")
        a(f"s_mul_i32 s{s_wb}, s{s_w}, {REGION}")
        a(f"v_mov_b32 v{vZ}, 0")
        a(f"v_lshlrev_b32 v{vLIN}, 4, v1")
        a(f"s_lshl_b32 s{s_t2}, s{s_t2}, 1")
        a(f"s_add_u32 s{s_t2}, s{s_t2}, s{s_dj}")
        if o.get("norot1"): a(f"s_mov_b32 s{s_t2}, 0")
        a(f"s_lshl_b32 s{s_t2}, s{s_t2}, 7")
        a(f"s_sub_u32 s{s_t3}, s{s_t2}, 896")
        a(f"s_cmp_ge_u32 s{s_t2}, 896")
        a(f"s_cselect_b32 s{s_ca}, s{s_t3}, s{s_t2}")
        def next_ca(c):
            return [f"s_add_u32 s{s_ca+c}, s{s_ca+c-1}, 128", f"s_cmp_eq_u32 s{s_ca+c}, 896", f"s_cselect_b32 s{s_ca+c}, 0, s{s_ca+c}"]

        KR, VR, SKR, DR = 32, 44, 52, 43
        KU, VU, SU, KVR, KVP = 56, 78, 94, 102, 120
        vKO, vKO2, vSO = vT, vT + 1, vT + 2
        def kv_issue(pre_kv):
            a(f"s_lshl_b32 s{s_t0}, s{s_i}, 1")
            a(f"s_add_u32 s{s_t0}, s{s_t0}, s{s_th}")
            a(f"s_lshl_b32 s{s_t1}, s{s_t0}, 2")
            a(f"s_add_u32 s{s_t1}, s{s_t1}, s{s_w}")
            a(f"s_mul_i32 s{s_t2}, s{s_t1}, {16*896}")
            a(f"s_lshl_b32 s{s_cnt}, s{s_dj}, 7")
            a(f"s_add_u32 s{s_t2}, s{s_t2}, s{s_cnt}")
            a(f"v_lshrrev_b32 v{vKO}, 5, v1")
            a(f"v_and_b32 v{vSO}, 31, v1")
            a(f"v_mul_u32_u24 v{vKO}, {8*896}, v{vKO}")
            a(f"v_lshl_add_u32 v{vKO}, v{vSO}, 2, v{vKO}")
            a(f"v_add_u32 v{vKO}, s{s_t2}, v{vKO}")
            a(f"v_subrev_u32 v{vKO2}, {3*896}, v{vKO}")
            a(f"v_lshlrev_b32 v{vT+7}, 2, v{vSO}")
            a(f"s_lshl_b32 s{s_t3}, s{s_dj}, 9")
            a(f"v_lshl_add_u32 v{vSO}, v{vSO}, 4, s{s_t3}")
            a(f"s_mov_b32 s{s_so}, {4*896}")
            self.first_wait()
            emit(pre_kv)
            for r in range(3): a(f"buffer_load_dword v{KR+r}, v{vKO2}, {srd(sK)}, 0 offen offset:{896*r}", tag="kv")
            for r in range(8):
                so = "0" if r < 4 else f"s{s_so}"
                a(f"buffer_load_dword v{KR+3+r}, v{vKO}, {srd(sK)}, {so} offen offset:{896*(r&3)}", tag="kv")
                a(f"buffer_load_dword v{VR+r}, v{vKO}, {srd(sV)}, {so} offen offset:{896*(r&3)}", tag="kv")
            a(f"buffer_load_dwordx4 v[{SKR}:{SKR+3}], v{vSO}, {srd(sSH)}, 0 offen", tag="kv")
            a(f"buffer_load_dword v{DR}, v{vT+7}, {srd(sD)}, s{s_cnt} offen", tag="kv")
            a(f"buffer_load_dword v{vTAG}, v{vZ}, {srd(sWS)}, 0 offen sc1", tag="kv")

        def dma_addr():
            a(f"v_lshrrev_b32 v{t0}, 5, v1")
            a(f"v_bfe_u32 v{t1}, v1, 4, 1")
            a(f"v_lshl_or_b32 v{t0}, v{t1}, 1, v{t0}")
            a(f"v_and_b32 v{t1}, 7, v1")
            a(f"v_xor_b32 v{t1}, v{t1}, v{t0}")
            a(f"v_lshlrev_b32 v{t1}, 4, v{t1}")
            a(f"v_lshrrev_b32 v{t2}, 3, v1")
            a(f"s_lshl_b32 s{s_sb}, s{s_i}, 2")
            a(f"s_add_u32 s{s_sb}, s{s_sb}, s{s_w}")
            a(f"s_mul_i32 s{s_t2}, s{s_sb}, {32*896}")
            a(f"v_mul_u32_u24 v{vXD}, 896, v{t2}")
            a(f"v_add3_u32 v{vXD}, v{vXD}, v{t1}, s{s_t2}")
            a(f"v_xor_b32 v{vXD+1}, 64, v{vXD}")
            a(f"v_add_u32 v{vXD+1}, {8*896-1024}, v{vXD+1}")
            a(f"v_add_u32 v{vXD+2}, {16*896-2048}, v{vXD}")
            a(f"v_add_u32 v{vXD+3}, {16*896-2048}, v{vXD+1}")
            a(f"v_bfe_u32 v{t3}, v1, 4, 1")
            a(f"s_and_b32 s{s_t2}, s{s_w}, 2")
            a(f"v_or_b32 v{t3}, s{s_t2}, v{t3}")
            a(f"v_lshlrev_b32 v{t3}, 1, v{t3}")
            a(f"v_xor_b32 v{t3}, v{t3}, v1")
            a(f"v_and_b32 v{t3}, 7, v{t3}")
            a(f"v_lshlrev_b32 v{t3}, 4, v{t3}")
            a(f"s_mul_i32 s{s_t2}, s{s_w}, {8*3584}")
            a(f"s_lshl_b32 s{s_t3}, s{s_j}, 7")
            a(f"s_add_u32 s{s_t2}, s{s_t2}, s{s_t3}")
            a(f"s_add_u32 s{s_t2}, s{s_t2}, 1792")
            a(f"v_mul_u32_u24 v{vWD}, 3584, v{t2}")
            a(f"v_add3_u32 v{vWD}, v{vWD}, v{t3}, s{s_t2}")
            a(f"v_add_u32 v{vWD+1}, {32*3584-1024}, v{vWD}")

        def dma_x(c):
            out = [f"s_add_u32 m0, s{s_wb}, {XSLOT(c)}"]
            for q in range(4):
                out.append((f"buffer_load_dwordx4 v{vXD+q}, {srd(sQ)}, s{s_ca+c} offen offset:{q*1024} lds", f"x{c}"))
            return out
        def dma_w(c, half):
            out = [f"s_add_u32 m0, s{s_wb}, {WOFF + c*2048}", f"s_mul_i32 s{s_so2}, s{s_ca+c}, 1792"]
            for q in range(2):
                out.append((f"buffer_load_dwordx4 v{(vWD if half else vWD1)+q}, {srd(sWIN)}, s{s_so2} offen offset:{q*1024} lds", f"w{half}_{c}"))
            return out
        NIF = o.get("nif", 2)
        dma_addr()
        emit(next_ca(1))
        first = {0: dma_w(0, 1) + dma_w(1, 1) + dma_x(0), 1: dma_x(0) + dma_w(0, 1) + dma_w(1, 1)}[o.get("ford", 0)]
        kpre = o.get("kpre", 0)
        kv_issue(first[:kpre])
        if o.get("fine"): self.stamp("kv_iss")
        if o.get("kbar", 1): a("s_barrier")
        kpost = o.get("kpost", 8)
        emit(first[kpre:kpost])
        for c in range(2, 7): emit(next_ca(c))
        dma_xw = lambda c: dma_x(c) + (dma_w(c, 1) if c > 1 else [])

        a(f"s_lshl_b32 s{s_t2}, s{s_sb}, 17")
        a(f"v_lshlrev_b32 v{vAD}, 12, v{t2}")
        a(f"v_add3_u32 v{vAD}, v{vAD}, v{t1}, s{s_t2}")
        a(f"v_xor_b32 v{vAD+1}, 64, v{vAD}")
        a(f"v_add_u32 v{vAD+1}, {8*4096-1024}, v{vAD+1}")
        a(f"v_add_u32 v{vAD+2}, {16*4096-2048}, v{vAD}")
        a(f"v_add_u32 v{vAD+3}, {16*4096-2048}, v{vAD+1}")
        a(f"v_bfe_u32 v{t1}, v1, 1, 1")
        a(f"v_bfe_u32 v{t2}, v1, 2, 1")
        a(f"v_lshl_or_b32 v{t1}, v{t1}, 1, v{t2}")
        a(f"v_bfe_u32 v{t2}, v1, 3, 1")
        a(f"v_lshl_or_b32 v{t1}, v{t2}, 2, v{t1}")
        a(f"v_xor_b32 v{t1}, v{t1}, v{t0}")
        a(f"v_and_b32 v{t2}, 15, v1")
        a(f"v_lshlrev_b32 v{t2}, 7, v{t2}")
        a(f"v_lshl_add_u32 v{t1}, v{t1}, 4, v{t2}")
        a(f"v_add_u32 v{vXR}, s{s_wb}, v{t1}")
        a(f"v_xor_b32 v{vXR+1}, 64, v{vXR}")
        a(f"v_mul_u32_u24 v{t0}, {REGION}, v{t0}")
        a(f"v_bfe_u32 v{t1}, v1, 2, 2")
        a(f"v_lshl_add_u32 v{t0}, v{t1}, 7, v{t0}")
        a(f"v_and_b32 v{t1}, 3, v1")
        a(f"v_lshl_add_u32 v{t0}, v{t1}, 3, v{t0}")
        a(f"v_bfe_u32 v{t1}, v1, 3, 2")
        a(f"v_lshl_add_u32 v{vTR}, v{t1}, 5, v{t0}")
        for ft in range(1, 4): a(f"v_xor_b32 v{vTR+ft}, {32*ft}, v{vTR}")
        c0 = -2.0 * 0.7978845608028654 * 1.4426950408889634
        for r, val in ((vC0, c0), (vC1, c0 * 0.044715), (vONE, 1.0)):
            a(f"v_mov_b32 v{r}, {f2u(val):#x}"); a(f"v_mov_b32 v{r+1}, {f2u(val):#x}")
        a(f"v_lshlrev_b32 v{vL8}, 2, v1")
        for q in range(2): a(f"v_subrev_u32 v{vWD1+q}, 1792, v{vWD+q}")
        a(f"s_and_b32 s{s_t2}, s{s_i}, {0 if o.get('nobrot', 1) else 3}")
        a(f"s_add_u32 s{s_t2}, s{s_t2}, s{s_dj}")
        a(f"s_lshr_b32 s{s_t3}, s{s_dj}, 2")
        a(f"s_lshl_b32 s{s_cnt}, s{s_th}, 1")
        a(f"s_add_u32 s{s_t3}, s{s_t3}, s{s_cnt}")
        a(f"s_xor_b32 s{s_jp}, s{s_th}, 1")
        a(f"s_mul_i32 s{s_jp}, s{s_jp}, 7")
        a(f"s_add_u32 s{s_jp}, s{s_jp}, s{s_dj}")
        for n in range(4):
            if n in (0, 2):
                a(f"s_lshl_b32 s{s_so2}, s{s_jp if n == 0 else s_j}, 6")
                a(f"s_add_u32 s{s_so2}, s{s_so2}, s{s_w}")
                a(f"s_lshl_b32 s{s_so2}, s{s_so2}, 12")
                a(f"s_add_u32 s{s_so2}, s{s_so2}, {WS_Z2N}")
            a(f"s_xor_b32 s{s_cnt}, s{s_t3}, {n & 1}")
            if n < 2: a(f"s_lshl_b32 s{s_aw+n}, s{s_cnt}, 10")
            a(f"s_lshl_b32 s{s_cnt}, s{s_cnt}, 16")
            a(f"s_add_u32 s{s_bw+n}, s{s_cnt}, s{s_so2}")
            a(f"s_add_u32 s{s_cnt}, s{s_t2}, {n}")
            a(f"s_and_b32 s{s_cnt}, s{s_cnt}, 3")
            a(f"s_lshl_b32 s{s_ar+2*n}, s{s_cnt}, 8")
            a(f"s_add_u32 s{s_ar+2*n+1}, s{s_ar+2*n}, 128")
            a(f"s_lshl_b32 s{s_br+n}, s{s_cnt}, 14")
        for sr, sj in ((s_xs, s_jp), (s_xr, s_j)):
            a(f"s_mul_i32 s{sr}, s{s_i}, 14")
            a(f"s_add_u32 s{sr}, s{sr}, s{sj}")
            a(f"s_lshl_b32 s{sr}, s{sr}, 2")
            a(f"s_add_u32 s{sr}, s{sr}, s{s_w}")
            a(f"s_lshl_b32 s{sr}, s{sr}, 13")
            a(f"s_add_u32 s{sr}, s{sr}, {WS_X}")
            a(f"s_add_u32 s{sr+1}, s{sr}, 4096")
        a(f"s_movk_i32 s{s_ff}, 0xff")

        def unpack(dst, src):
            a(f"v_lshlrev_b32 v{dst}, 16, v{src}"); a(f"v_and_b32 v{dst+1}, 0xffff0000, v{src}")
        self.stamp("issued")
        a.wait(vm="kv")
        self.stamp("kv_loaded")
        emit(first[max(kpre, kpost):])
        self.get_tag(vTAG, vTAG)
        vTB = vGW
        a(f"v_lshlrev_b32 v{vTB}, 3, v1")
        a(f"v_bfe_u32 v{vTB}, v{vTAG}, v{vTB}, 8")
        real_a = a; fg = []
        class Rec:
            def __call__(self_, l, tag=None): fg.append((l, tag) if tag else l)
        a = Rec()
        for jj in range(4):
            for ch in range(2):
                src = SKR + 2 * ch + (jj >> 1)
                if jj & 1: a(f"v_and_b32 v{SU+2*jj+ch}, 0xffff0000, v{src}")
                else: a(f"v_lshlrev_b32 v{SU+2*jj+ch}, 16, v{src}")
        for r in range(11): unpack(KU + 2 * r, KR + r)
        for r in range(8): unpack(VU + 2 * r, VR + r)
        for jj in range(4):
            for r in range(8):
                kk = KU + 2 * (r + 3 - jj)
                if jj == 0: a(f"v_pk_mul_f32 {pr(KVR+2*r)}, {pr(kk)}, {pr(SU)}")
                else: a(f"v_pk_fma_f32 {pr(KVR+2*r)}, {pr(kk)}, {pr(SU+2*jj)}, {pr(KVR+2*r)}")
        for r in range(8): a(f"v_pk_mul_f32 {pr(KVR+2*r)}, {pr(KVR+2*r)}, {pr(VU+2*r)}")
        for ch in range(2):
            for d in range(4):
                a(f"v_cvt_pk_bf16_f32 v{KVP+4*ch+d}, v{KVR+2*(7-2*d)+ch}, v{KVR+2*(6-2*d)+ch}")
        a(f"s_mul_i32 s{s_t2}, s{s_t1}, {2*7168}")
        a(f"s_lshl_b32 s{s_t3}, s{s_dj}, 10")
        a(f"s_add_u32 s{s_t2}, s{s_t2}, s{s_t3}")
        a(f"s_add_u32 s{s_t2}, s{s_t2}, {WS_KVT}")
        a(f"v_lshrrev_b32 v{t0}, 5, v1")
        a(f"v_mul_u32_u24 v{t1}, {7168-512}, v{t0}")
        a(f"v_add_u32 v{t1}, v{t1}, v{vLIN}")
        for ch in range(2):
            a(f"buffer_store_dwordx4 v[{KVP+4*ch}:{KVP+4*ch+3}], v{t1}, {srd(sWS)}, s{s_t2} offen offset:{512*ch} sc1", tag="kvst")
        a(f"s_lshl_b32 s{s_t3}, s{s_dj}, 5")
        a(f"s_add_u32 s{s_t1}, s{s_t0}, s{s_t3}")
        a(f"s_mul_i32 s{s_t1}, s{s_t1}, {FS}")
        a(f"s_add_u32 s{s_so}, s{s_t1}, {WS_FKV}")
        fg += self.only_wave(s_so, 0)
        unpack(SU, DR)
        for r in range(8): a(f"v_pk_mul_f32 {pr(KVR+2*r)}, {pr(KVR+2*r)}, {pr(SU)}")
        a(f"v_bfe_u32 v{t1}, v1, 3, 2")
        a(f"v_mul_u32_u24 v{t1}, {REGION}, v{t1}")
        a(f"v_lshl_add_u32 v{t1}, v{t0}, 4, v{t1}")
        a(f"v_and_b32 v{t0}, 7, v1")
        a(f"v_lshl_add_u32 v{t1}, v{t0}, 8, v{t1}")
        a(f"v_and_b32 v{t0}, 3, v1")
        a(f"v_xor_b32 v{t0}, s{s_w}, v{t0}")
        a(f"v_lshl_add_u32 v{t1}, v{t0}, 5, v{t1}")
        for ch in range(2):
            for d in range(4):
                a(f"v_cvt_pk_bf16_f32 v{KU+4*ch+d}, v{KVR+4*d+ch}, v{KVR+4*d+2+ch}")
            a(f"ds_write_b128 v{t1}, v[{KU+4*ch}:{KU+4*ch+3}] offset:{KVD + 128*ch}", tag="kvd")
        a = real_a
        fg2 = []
        for it in fg:
            if isinstance(it, str) and it.startswith("s_cselect"): fg2[-1] = fg2[-1] + "\n" + it
            else: fg2.append(it)
        cutp = max(z for z, it in enumerate(fg2) if isinstance(it, tuple) and it[1] == "kvst") + 1
        n1 = o.get("n1", 2)
        bg = []
        for c in range(1, n1): bg += dma_xw(c)
        weave(fg2[:cutp], bg, o.get("wv0", 8)); emit(bg)
        self.stamp("kv_st")
        bg = []
        for c in range(n1, NIF): bg += dma_xw(c)
        weave(fg2[cutp:], bg, o.get("wv0b", 3)); emit(bg)
        self.stamp("kv_done")

        def read_x(c):
            out = []
            for uu in range(2):
                for nt in range(2):
                    r = XF + ((2 * c + uu) * 2 + nt) * 4
                    out.append((f"ds_read_b128 a[{r}:{r+3}], v{vXR+uu} offset:{XSLOT(c) + nt*2048}", f"xr{2*c+uu}"))
            return out
        def tr_w(u, buf, h=2):
            out = []
            for ft in range(4):
                for hh in range(2):
                    r = WF + buf * 16 + ft * 4 + hh * 2
                    out.append((f"ds_read_b64_tr_b16 v[{r}:{r+1}], v{vTR+ft} offset:{WOFF + u*1024 + hh*512}", f"wr{h}_{u}_{ft}"))
            return out
        def mfma1(base, u, buf, gaps, waits=(0, 2)):
            for ft in range(4):
                if ft in waits:
                    upto = min([x for x in waits if x > ft] + [4])
                    a.wait(lg=[f"wr{2 if base == ACC2 else 1}_{u}_{x}" for x in range(upto)] + [f"xr{u}"])
                for nt in range(2):
                    d = acc(base, ft, nt); wr = WF + buf * 16 + ft * 4; xr = XF + (u * 2 + nt) * 4
                    cin = "0" if u == 0 else f"v[{d}:{d+3}]"
                    a(f"v_mfma_f32_16x16x32_bf16 v[{d}:{d+3}], v[{wr}:{wr+3}], a[{xr}:{xr+3}], {cin}")
                    emit(gaps[2 * ft + nt])
        isvm = lambda it: isinstance(it, tuple) and it[0].startswith("buffer_")
        def spread(items, ngaps):
            gaps = [[] for _ in range(ngaps)]
            nv = sum(map(isvm, items)); k = 0; pend = []; last = -1
            for it in items:
                if isvm(it):
                    m = ((k + 1) * ngaps) // nv - 1; k += 1
                    for z, x in enumerate(pend): gaps[min(max(last + 1, m - len(pend) + z), m)].append(x)
                    pend = []; gaps[m].append(it); last = m
                else: pend.append(it)
            for z, x in enumerate(pend): gaps[min(last + 1 + z, ngaps - 1)].append(x)
            return gaps
        def small_loads():
            out = [f"v_add_u32 v{t0}, s{s_ca}, v{vLIN}", f"v_subrev_u32 v{t1}, 896, v{t0}", f"v_min_u32 v{t0}, v{t0}, v{t1}",
                   f"s_add_u32 m0, s{s_wb}, {GWOFF}", f"v_and_b32 v{t1}, 15, v1",
                   (f"buffer_load_dwordx4 v{t0}, {srd(sGW)}, 0 offen lds", "gw"),
                   f"v_lshlrev_b32 v{t1}, 1, v{t1}", f"s_lshl_b32 s{s_t2}, s{s_sb}, 6"]
            for nt in range(2):
                out.append((f"buffer_load_ushort v{vBS+nt}, v{t1}, {srd(sBSP)}, s{s_t2} offen offset:{32*nt}", "gw"))
            out += [f"v_lshrrev_b32 v{t0}, 3, v1", f"v_xor_b32 v{t1}, v{t0}, v1", f"v_and_b32 v{t1}, 7, v{t1}", f"v_mul_u32_u24 v{t0}, 896, v{t0}",
                    f"v_lshl_add_u32 v{t0}, v{t1}, 4, v{t0}", f"v_add_u32 v{t1}, {8*896-1024}, v{t0}",
                    f"s_lshl_b32 s{s_t2}, s{s_t0}, 2", f"s_add_u32 s{s_t2}, s{s_t2}, s{s_w}", f"s_mul_i32 s{s_t2}, s{s_t2}, {16*896}",
                    f"s_lshl_b32 s{s_t3}, s{s_dj}, 7", f"s_add_u32 m0, s{s_wb}, {QOFF}", f"s_add_u32 s{s_t2}, s{s_t2}, s{s_t3}"]
            for q, r in enumerate((t0, t1)): out.append((f"buffer_load_dwordx4 v{r}, {srd(sQ)}, s{s_t2} offen offset:{1024*q} lds", "gw"))
            return out
        NA = 16
        def areg(c): return ("a", 16 * (c & 15))
        def dma_a(c):
            out = []
            if c >= 4: out.append(wlg(f"ar{c-4}"))
            out += [f"s_add_u32 m0, s{s_wb}, {ASLOT[c % 4]}", f"s_add_u32 s{s_so2}, s{s_aw + (c>>3)}, s{s_ar + (c&7)}"]
            for q in range(4):
                out.append((f"buffer_load_dwordx4 v{vAD+q}, {srd(sWSP)}, s{s_so2} offen offset:{q*1024} lds", f"a{c}"))
            return out
        def read_a(c):
            out = [wvm(f"a{c}")]
            k, b = areg(c)
            for uu in range(2):
                for nt in range(2):
                    r = b + (uu * 2 + nt) * 4
                    out.append((f"ds_read_b128 {k}[{r}:{r+3}], v{vXR+uu} offset:{ASLOT[c % 4] + nt*2048}", f"ar{c}"))
            return out

        w1_done = 0
        kvflag = o.get("kvflag", 2)
        nae = o.get("nae", 2)
        NZ1 = o.get("nz1", 0)
        pairs = []
        for c in range(7):
            if c >= 7 - NZ1: pairs.append((1, c - (7 - NZ1)))
            pairs.append((2, c))
        def pair_reads(p):
            h, c = pairs[p]; b = 2 * (p & 1)
            rx = read_x(c) if h == 2 else [None] * 4
            return [x for x in rx[:2] + tr_w(2 * c, b, h) + rx[2:] + tr_w(2 * c + 1, b + 1, h) if x is not None]
        seen = set()
        def need(p): return [f"x{pairs[p][1]}", f"w1_{pairs[p][1]}"] if pairs[p][0] == 2 else [f"w0_{pairs[p][1]}"]
        def enter(p):
            if all(t in seen for t in need(p)): return False
            tags = need(p)
            if p + 1 < len(pairs) and pairs[p + 1][0] == 1 and pairs[p + 1][1] > 0: tags = tags + need(p + 1)
            kf = pairs[p] == (2, kvflag)
            a.wait(vm=tags + (["kvst"] if kf else []), lg="kvd")
            a("s_barrier")
            seen.update(tags)
            if kf and not o.get("kvlate", 1): self.flag(s_so, vL8, vTAG)
            if o.get("fine"): self.stamp(f"c{pairs[p][0]}{pairs[p][1]}")
            return True
        enter(0)
        emit(pair_reads(0))
        nxt = NIF; na_done = 0; small = False
        w2_free = 0
        z2_done = 0
        for p, (h, c) in enumerate(pairs):
            if p + 1 < len(pairs) and enter(p + 1): w2_free = z2_done
            ex = []
            if NZ1 and w1_done < min(w2_free, o.get("w1in", NZ1 + 1)): ex += dma_w(w1_done, 0); w1_done += 1
            while not NZ1 and nxt == 7 and w1_done < min(w2_free, o.get("w1in", 0)): ex += dma_w(w1_done, 0); w1_done += 1
            if nxt < 7:
                for _ in range(2 if p < o.get("dbl", 1) else 1):
                    if nxt < 7:
                        assert nxt - z2_done < 5
                        ex += dma_xw(nxt); nxt += 1
                if nxt >= o.get("smallat", 6) and not small: ex += small_loads(); small = True
            elif not small: ex += small_loads(); small = True
            elif na_done < nae:
                assert z2_done >= 3 + na_done
                ex += dma_a(na_done); na_done += 1
            gp = spread(ex, 16)
            rd = [[] for _ in range(16)]
            if p + 1 < len(pairs):
                cr = pair_reads(p + 1)
                for z, it in enumerate(cr): rd[(z * 14) // len(cr)].append(it)
            for hf in range(2):
                mfma1(ACC2 if h == 2 else ACC1, 2 * c + hf, 2 * (p & 1) + hf, [rd[8 * hf + m] + gp[8 * hf + m] for m in range(8)], waits=(0,))
            if h == 2: z2_done = c + 1
            if p + 1 < len(pairs) and pairs[p + 1] == (2, kvflag) and o.get("kvlate", 1): self.flag(s_so, vL8, vTAG)
        self.stamp("z2_gemm")
        w1in = w1_done
        if not NZ1: w1in = 0
        if w1in: a.wait(vm=f"w0_{w1in-1}")
        a("s_barrier")
        bg0 = []
        while w1_done < 7: bg0 += dma_w(w1_done, 0); w1_done += 1

        na0 = o.get("na0", 2)
        bg = bg0
        na0 = max(na0, na_done)
        for c in range(na_done, na0): bg += dma_a(c)
        nw1 = o.get("w1g", 0)
        bg0 = bg[nw1:]; bg = bg[:nw1]
        weave(self.gelu(ACC2, 32, vT, vC0, vC1, vONE), bg, o.get("wvg", 6)); emit(bg)
        S = WF
        for nt in range(2):
            first = True
            for ft in range(4):
                for p in range(2):
                    z = pr(acc(ACC2, ft, nt) + 2 * p)
                    if first:
                        a(f"v_pk_mul_f32 {pr(S+4*nt+2)}, {z}, {z}")
                        z0 = z; first = False
                    else:
                        a(f"v_pk_add_f32 {pr(S+4*nt)}, {z}, {z0 if z0 else pr(S+4*nt)}"); z0 = None
                        a(f"v_pk_fma_f32 {pr(S+4*nt+2)}, {z}, {z}, {pr(S+4*nt+2)}")
        for q in range(4): a(f"v_add_f32 v{S+8+q}, v{S+2*q}, v{S+2*q+1}")
        A_, B_, C_, D_ = S + 8, S + 9, S + 10, S + 11
        a(f"s_mul_i32 s{s_t2}, s{s_sb}, {14*256}")
        a(f"v_permlane32_swap_b32 v{A_}, v{C_}")
        a(f"v_permlane32_swap_b32 v{B_}, v{D_}")
        a(f"v_add_f32 v{A_}, v{A_}, v{C_}")
        a(f"v_add_f32 v{B_}, v{B_}, v{D_}")
        a(f"s_add_u32 s{s_so}, s{s_t2}, {WS_STATS}")
        a(f"s_lshl_b32 s{s_t3}, s{s_j}, 8")
        a(f"v_permlane16_swap_b32 v{A_}, v{B_}")
        a(f"s_add_u32 s{s_t2}, s{s_so}, s{s_t3}")
        a(f"v_add_f32 v{S+12}, v{A_}, v{B_}")
        a(f"v_bfi_b32 v{S+12}, s{s_ff}, v{vTB}, v{S+12}")
        a(f"buffer_store_dword v{S+12}, v{vL8}, {srd(sWS)}, s{s_t2} offen sc1", tag="stst")
        self.stamp("stats_pub")
        if o.get("diag_st"):
            a("s_waitcnt vmcnt(1)"); self.stamp("older_done")
            a("s_waitcnt vmcnt(0)"); self.stamp("st_done")

        na1 = max(na0, o.get("na1", 2))
        u0 = 2 * NZ1
        u2, u3 = o.get("u2", 0), o.get("u3", 3)
        def z1_steps(ua, ub, bg, per=o.get("z1per", 6), vper=o.get("z1v", 2)):
            for u in range(ua, ub):
                ex = tr_w(u + 2, (u + 2) % 3, 1) if u < 12 else []
                take = []
                while bg and len(take) < per and sum(map(isvm, take)) + isvm(bg[0]) <= vper: take.append(bg.pop(0))
                gp = spread(take, 8)
                mfma1(ACC1, u, u % 3, [ex[m:m+1] + gp[m] for m in range(8)], waits=(0,))
        def z1_start():
            a.wait(vm=["w0_6", "gw"])
            a("s_barrier")
            if w1in <= NZ1: emit(tr_w(u0, u0 % 3, 1) + tr_w(u0 + 1, (u0 + 1) % 3, 1))
        PS = 144
        bg = [f"s_lshl_b32 s{s_t1}, s{s_j}, 6", f"s_add_u32 s{s_t1}, s{s_t1}, s{s_sb}",
              f"s_lshl_b32 s{s_t3}, s{s_t1}, 12", f"s_add_u32 s{s_t3}, s{s_t3}, {WS_Z2N}", f"s_lshr_b32 s{s_t1}, s{s_t1}, 2",
              f"s_mul_i32 s{s_t1}, s{s_t1}, {FS}", f"s_add_u32 s{s_t1}, s{s_t1}, {WS_FZ2}", "\n".join(self.only_wave(s_t1, 1)),
              f"v_bfe_u32 v{t0}, v1, 2, 2", f"v_lshrrev_b32 v{t1}, 4, v1", f"v_lshlrev_b32 v{t0}, 8, v{t0}",
              f"v_lshl_add_u32 v{t0}, v{t1}, 6, v{t0}", f"v_and_b32 v{t1}, 3, v1", f"v_lshl_add_u32 v{t0}, v{t1}, 4, v{t0}"]
        loads = [f"buffer_load_dword v{PS+jj}, v{vL8}, {srd(sWS)}, s{s_so} offen offset:{jj*256} sc1" for jj in range(14)]
        GF, GACC = 176, 232
        gpos = o.get('gpos', 0 if u2 == 0 else 1)
        def gate(bg):
            a(f"v_lshrrev_b32 v{t1}, 5, v1")
            a(f"v_bfe_u32 v{t2}, v1, 4, 1")
            a(f"v_lshl_or_b32 v{t1}, v{t2}, 1, v{t1}")
            a(f"v_lshl_add_u32 v{t1}, v{t1}, 4, s{s_wb}")
            a.wait(vm="gw")
            for u in range(14): a(f"ds_read_b128 v[{GF+4*u}:{GF+4*u+3}], v{t1} offset:{GWOFF + 64*u}", tag=f"gr{u>>2}g")
            gp = spread(bg, 28)
            for u in range(14):
                a.wait(lg=f"gr{u>>2}g")
                for nt in range(2):
                    d = GACC + 4 * nt; xr = XF + (u * 2 + nt) * 4
                    a(f"v_mfma_f32_16x16x32_bf16 v[{d}:{d+3}], v[{GF+4*u}:{GF+4*u+3}], a[{xr}:{xr+3}], {'0' if u == 0 else f'v[{d}:{d+3}]'}")
                    emit(gp[2 * u + nt])
        def take(bg, nv):
            out = []
            while bg and sum(map(isvm, out)) + isvm(bg[0]) <= nv and len(out) < 3 * nv: out.append(bg.pop(0))
            return out
        npre = self.npre
        nd = na0; nr = 0; ast = []
        while nr < npre:
            while nd < min(nr + 3, NA): ast += dma_a(nd); nd += 1
            ast += read_a(nr); nr += 1
        k9 = min([z for z, x in enumerate(ast) if isinstance(x, tuple) and x[1] == "ar9"] + [len(ast) + 1]) - 1
        ast, ast2 = ast[:k9], ast[k9:]
        emit(bg)
        if w1in > NZ1: emit(tr_w(u0, u0 % 3, 1) + tr_w(u0 + 1, (u0 + 1) % 3, 1))
        if o.get("ldfirst"):
            for _ in range(o.get("ldfirst") - 1): a("s_nop 15")
            emit([(l, "st") for l in loads]); gate(bg0 if o.get("w1gate", 1) else [])
            if not o.get("w1gate", 1): ast = bg0 + ast
        else:
            gate(bg0)
            emit([(l, "st") for l in loads])
        for nt in range(2):
            d = GACC + 4 * nt
            emit([f"v_mul_f32 v{d}, {f2u(-1.4426950408889634):#x}, v{d}", f"v_exp_f32 v{d}, v{d}", f"v_add_f32 v{d}, 1.0, v{d}", f"v_rcp_f32 v{d}, v{d}"])
        emit([f"v_and_b32 v{GACC+2}, 15, v1", f"v_lshl_add_u32 v{GACC+1}, v{GACC+2}, 2, s{s_wb}"])
        for nt in range(2): a(f"ds_write_b32 v{GACC+1}, v{GACC+4*nt} offset:{GATE + 64*nt}", tag="gtw")
        emit([f"s_and_b32 s{s_t2}, s{s_w}, 1", f"s_lshl_b32 s{s_cnt}, s{s_th}, 1", f"s_add_u32 s{s_t2}, s{s_t2}, s{s_cnt}", f"s_mul_i32 s{s_t2}, s{s_t2}, {REGION}",
              f"v_lshl_add_u32 v{GACC+2}, v{GACC+2}, 2, s{s_t2}"])
        GV = 244
        if u2:
            emit(take(ast, o.get("apre", 0)))
            z1_start()
            z1_steps(u0, min(u0 + u2, 14), ast if o.get("ast0", 1) else [])
        self.stamp("z1_part")
        self.poll(loads, [PS + jj for jj in range(14)], vT, issued="st", vtag=vTB)
        self.stamp("stats_got")
        if self.stamps and o.get("diag_n"):
            a(f"s_sub_u32 s4, {SPIN}, s{s_cnt}"); a("s_mul_i32 s4, s4, 100"); a(f"v_readlane_b32 s5, v{vST}, 0"); a("s_add_u32 s4, s4, s5")
            a(f"v_writelane_b32 v{vST}, s4, {self.nst}"); self.names.append("retries"); self.nst += 1
        vals = [PS + jj for jj in range(14)]
        while len(vals) > 1:
            nv = []
            for q in range(0, len(vals) - 1, 2):
                a(f"v_add_f32 v{vals[q]}, v{vals[q]}, v{vals[q+1]}"); nv.append(vals[q])
            if len(vals) & 1: nv.append(vals[-1])
            vals = nv
        T_, U_ = PS, PS + 1
        a(f"v_mul_f32 v{T_}, {f2u(1/896):#x}, v{T_}")
        a(f"v_mov_b32 v{U_}, v{T_}")
        a(f"v_permlane16_swap_b32 v{T_}, v{U_}")
        a(f"v_fma_f32 v{U_}, -v{T_}, v{T_}, v{U_}")
        a(f"v_max_f32 v{U_}, 0, v{U_}")
        a(f"v_add_f32 v{U_}, {f2u(1e-5):#x}, v{U_}")
        R0, M0_, R1, M1_ = PS + 4, PS + 6, PS + 8, PS + 10
        a(f"v_rsq_f32 v{R0}, v{U_}")
        a(f"v_mul_f32 v{M0_}, v{T_}, v{R0}")
        a(f"v_mov_b32 v{R1}, v{R0}")
        a(f"v_mov_b32 v{M1_}, v{M0_}")
        a(f"v_permlane32_swap_b32 v{R0}, v{R1}")
        a(f"v_permlane32_swap_b32 v{M0_}, v{M1_}")
        ZP = PS + 16
        for ft in range(4):
            for nt in range(2):
                z = acc(ACC2, ft, nt); R, M = (R0, M0_) if nt == 0 else (R1, M1_)
                for p in range(2):
                    a(f"v_pk_fma_f32 {pr(z+2*p)}, {pr(z+2*p)}, {pr(R)}, {pr(M)} op_sel_hi:[1,0,0] neg_lo:[0,0,1] neg_hi:[0,0,1]")
                for p in range(2):
                    a(f"v_cvt_pk_bf16_f32 v{ZP+4*ft+2*nt+p}, v{z+2*p}, v{z+2*p+1}")
            a(f"buffer_store_dwordx4 v[{ZP+4*ft}:{ZP+4*ft+3}], v{t0}, {srd(sWS)}, s{s_t3} offen offset:{1024*ft} sc1", tag="zst")
        if u2 == 0:
            while any(isinstance(x, tuple) and x[1] == "w0_6" for x in ast): self.put(ast.pop(0))
            z1_start()
        u2 = min(u0 + u2, 14); u3 = min(max(u2, u0 + u3), 14)
        z1_steps(u2, u3, ast)
        g1 = self.gelu(ACC1, 32, vT, vC0, vC1, vONE)
        cut = o.get("g1cut", 0) if u3 == 14 else 0
        if cut: ast += ast2; ast2 = []
        weave(g1[:cut], ast, o.get("wv1", 3))
        a.wait(vm="zst", lg="gtw")
        a("s_barrier")
        self.flag(s_t1, vL8, vTAG)
        for nt in range(2): a(f"ds_read_b32 v{GV+2*nt}, v{GACC+2} offset:{GATE + 64*nt}", tag="gtr")
        self.stamp("z2n_pub")
        vq = 240
        zfl = f"buffer_load_dword v{vq+1}, v{vq}, {srd(sWS)}, s{s_t1} offen sc1"
        emit([f"s_lshl_b32 s{s_t1}, s{s_dj}, 1", f"s_add_u32 s{s_t1}, s{s_t1}, s{s_th}", f"s_mul_i32 s{s_t1}, s{s_t1}, {8*FS}", f"s_add_u32 s{s_t1}, s{s_t1}, {WS_FZ2}",
              f"v_bfe_u32 v{vq}, v1, 3, 1", f"v_mul_u32_u24 v{vq}, {7*16}, v{vq}", f"v_and_or_b32 v{vq}, v1, 7, v{vq}", f"v_mul_u32_u24 v{vq}, {FS}, v{vq}"])
        emit(self.only_wave(s_t1, 0))
        u4 = o.get("u4", 14)
        z1_steps(u3, max(u3, u4), ast)
        if u4 < 14: a(zfl, tag="zf")
        z1_steps(max(u3, u4), 14, ast)
        bg = ast + ast2
        self.stamp("z1_done")
        fg = g1[cut:]
        for nt in range(2): fg.append(f"v_lshlrev_b32 v{vBS+nt}, 16, v{vBS+nt}")
        BI = 244
        for nt in range(2):
            for r in range(4): fg.append(f"v_mov_b32 v{acc(ACC2, 3, nt)+r}, v{vBS+nt}")
        fg += [f"v_lshrrev_b32 v{t0}, 5, v1", f"v_and_b32 v{t1}, 3, v1", f"v_lshlrev_b32 v{t0}, 9, v{t0}", f"v_lshl_add_u32 v{t0}, v{t1}, 6, v{t0}",
               f"v_bfe_u32 v{t1}, v1, 2, 2", f"v_lshl_add_u32 v{t0}, v{t1}, 4, v{t0}", f"v_bfe_u32 v{t1}, v1, 4, 1",
               f"v_lshl_add_u32 v{vTR}, v{t1}, 3, v{t0}", f"v_add_u32 v{vTR+1}, {2*REGION}, v{vTR}"]
        vOD, vSW = vXD, vWD
        fg += [f"v_lshrrev_b32 v{t0}, 4, v1", f"v_lshlrev_b32 v{t0}, 1, v{t0}", f"v_xor_b32 v{t0}, v{t0}, v1", f"v_and_b32 v{t0}, 7, v{t0}",
               f"v_lshlrev_b32 v{vSW}, 4, v{t0}", f"v_lshrrev_b32 v{t2}, 3, v1", f"s_mul_i32 s{s_t0}, s{s_w}, {8*896}", f"s_lshl_b32 s{s_t3}, s{s_dj}, 7",
               f"s_add_u32 s{s_t0}, s{s_t0}, s{s_t3}", f"v_mul_u32_u24 v{vOD}, 896, v{t2}", f"v_add3_u32 v{vOD}, v{vOD}, v{vSW}, s{s_t0}"]
        for q in range(1, 4): fg.append(f"v_add_u32 v{vOD+q}, {q*(32*896-1024)}, v{vOD}")
        vWT = 243
        fg += [f"v_mov_b32 v{t0}, s{s_ca}", f"v_mov_b32 v{t1}, s{s_ca+1}", f"v_cmp_gt_u32 vcc, 32, v1", f"v_bfe_u32 v{t2}, v1, 3, 2",
               f"v_cndmask_b32 v{t0}, v{t1}, v{t0}, vcc", f"v_lshl_add_u32 v{t0}, v{t2}, 5, v{t0}", f"v_and_b32 v{t1}, 7, v1", f"v_add_u32 v{t0}, v{t0}, v{t1}",
               f"v_mul_u32_u24 v{t0}, 896, v{t0}", f"v_add_u32 v{vWT}, s{s_t0}, v{t0}"]
        vYF = 245
        fg += [f"s_mul_i32 s{s_t3}, s{s_dj}, 293", f"s_lshr_b32 s{s_t3}, s{s_t3}, 6", f"v_min_u32 v{vYF}, 5, v1", f"v_add_u32 v{vYF}, s{s_t3}, v{vYF}",
               f"v_min_u32 v{vYF}, 31, v{vYF}",
               f"v_mul_u32_u24 v{vYF}, {FS}, v{vYF}", f"v_add_u32 v{vYF}, {WS_FY}, v{vYF}"]
        yfl = f"buffer_load_dword v{vBS}, v{vYF}, {srd(sWS)}, 0 offen sc1"
        BF = 96
        def dma_b(st):
            out = [f"s_add_u32 m0, s{s_wb}, {BSLOT(st)}", f"s_add_u32 s{s_so2}, s{s_bw + (st>>2)}, s{s_br + (st&3)}"]
            for q in range(4):
                out.append((f"buffer_load_dwordx4 v{vLIN}, {srd(sWS)}, s{s_so2} offen offset:{q*1024} sc1 lds", f"b{st}"))
            return out
        def tr_b(sb):
            out = []
            st, wv = sb >> 2, sb & 3
            for ft in range(4):
                for hh in range(2):
                    r = BF + (sb % 3) * 16 + ft * 4 + hh * 2
                    off = (wv & 1) * REGION + BSLOT(st) + ft * 1024 + hh * 256
                    out.append((f"ds_read_b64_tr_b16 v[{r}:{r+1}], v{vTR+(wv>>1)} offset:{off}", f"br{sb}"))
            return out
        WOSLOT = ASLOT + [BSLOT(11), BSLOT(12), BSLOT(13)]
        def dma_wo(g4):
            out = [f"s_add_u32 m0, s{s_wb}, {WOSLOT[g4]}", f"s_mul_i32 s{s_so2}, s{s_ca+g4}, 896"]
            for q in range(4):
                out.append((f"buffer_load_dwordx4 v{vOD+q}, {srd(sWOUT)}, s{s_so2} offen offset:{q*1024} lds", "wo"))
            return out
        nb0 = o.get("nb0", 3)
        pc = min(o.get("pollat", 60), len(fg)); pe = max(pc - o.get("pollead", 60), 0)
        weave(fg[:pe], bg, o.get("wv1", 3))
        if u4 >= 14: a(zfl, tag="zf")
        weave(fg[pe:pc], bg, o.get("wv1", 3))
        while bg and isvm(bg[0]): self.put(bg.pop(0))
        while bg and isinstance(bg[0], str) and not bg[0].startswith("s_add_u32 m0"):
            self.put(bg.pop(0))
            while bg and isvm(bg[0]): self.put(bg.pop(0))
        self.stamp("pre_poll")
        self.poll([zfl], [vq + 1], vq + 2, wave=0, issued="zf")
        a.wait(lg="gtr")
        a("s_barrier")
        self.stamp("z2n_got")
        bb = []
        for st in range(nb0): bb += dma_b(st)
        if o.get("cutst", 1):
            done = lambda pre, c: not any(isinstance(x, tuple) and x[1] == f"{pre}{c}" for x in bg)
            while bg and isinstance(bg[0], tuple) and bg[0][1].startswith("ar"): self.put(bg.pop(0))
            nd = max(c for c in range(nd) if done("a", c)) + 1
            nr = max([c for c in range(nr) if done("ar", c)] + [-1]) + 1
            bg = list(bb)
            for c in range(nr, nd): bg += read_a(c)
            nr = nd
            for _ in range(o.get("apost", 3)):
                if nd < NA: bg += dma_a(nd); nd += 1
        else: bg = bb + bg
        weave(fg[pc:], bg, o.get("wv2", 4)); emit(bg)
        self.stamp("pre_done")
        if o.get("rdall", 0):
            while nr < nd and nr < 22: emit(read_a(nr)); nr += 1
        a.wait(vm="b0")
        a("s_barrier")
        emit(tr_b(0)); emit(tr_b(1))
        self.stamp("b0_got")
        LAT = o.get("lat", 6); wo_in = o.get("wo_in", 7); wo_last = o.get("wo_last", 58)
        def plan(dps):
            issue = [[] for _ in range(64)]; rd_at = {}
            qb, qa, qw, qs, qr = nb0, nd, 0, 0, 0
            rdstep = {c: -2 for c in range(nr)}
            def place(c, at):
                while at in rd_at: at += 1
                rd_at[at] = c; rdstep[c] = at
                return at <= 2 * c - 2
            ok = True
            for c in range(nr, nd): ok &= place(c, o.get('rd0', 2))
            cur = None; budget = 0.0; xq = []
            def ready_a(sb): return qa < NA and (qa < 4 or (qa - 4 in rdstep and sb >= rdstep[qa - 4] + 2))
            def ready_w(sb):
                return qa == NA and qw < wo_in and o.get('wo_first', 0) + qw * o.get('wogap', 0) <= sb < wo_last and (
                    (qw < 4 and 12 + qw in rdstep and sb >= rdstep[12 + qw] + 2) or (qw >= 4 and sb >= 4 * (qw + 8) + 2))
            def ready_b(sb): return qb < 16 and (qb < NB - 1 or sb >= 4 * (qb - NB + 1) + 2)
            for sb in range(64):
                budget = min(budget + dps, dps + 0.99)
                if sb == 33: xq += [("s", g, q) for g in range(2) for q in range(4)]; qs = 2
                if sb == o.get("xr", 47): xq += [("r", g, q) for g in range(2) for q in range(4)]; qr = 2
                nx = 0 if not xq else (1 if (cur or ready_b(sb) or ready_a(sb) or ready_w(sb)) else 2)
                budget -= nx
                n = 0
                while budget >= 1.0:
                    if cur is None:
                        if ready_b(sb): cur = ["b", qb, 0]; qb += 1
                        elif ready_a(sb): cur = ["a", qa, 0]; qa += 1
                        elif ready_w(sb): cur = ["w", qw, 0]; qw += 1
                        else: break
                    if n >= 1 and cur[0] == "b" and o.get("smooth", 1) and not (ready_a(sb + 2) or ready_w(sb + 2) or ready_b(sb)): break
                    issue[sb].append(tuple(cur)); cur[2] += 1; budget -= 1.0; n += 1
                    if cur[2] == 4:
                        if cur[0] == "a": ok &= place(cur[1], sb + LAT)
                        if cur[0] == "b": ok &= sb + LAT - 2 <= 4 * (cur[1] - 1) + 1 or cur[1] < NB - 1
                        cur = None
                for _ in range(min(nx, len(xq))): issue[sb].append(xq.pop(0))
            ok &= not xq
            return ok and qa == NA and qs == 2 and qr == 2 and qb == 16 and cur is None, issue, rd_at, qw
        dps = o.get("dps", 20) / 10
        while True:
            ok, issue, rd_at, wo_done = plan(dps)
            if ok: break
            dps += 0.1
            assert dps < 4.1
        self.info = f"P2: nr={nr} nd={nd} dps={dps:.1f} wo_in_p2={wo_done} last A read at {max(rd_at) if rd_at else -1}"
        lastr = max(sb for sb in range(64) if any(x[0] == "r" for x in issue[sb]))
        assert lastr < o.get("xv", 59), lastr
        self.info += f" lastr={lastr}"
        if o.get("show"): print(" ".join("".join(x[0] for x in st_) or "." for st_ in issue))
        groups = {}
        ACCP, RECV = 144, 176
        def x_send(g):
            return [f"v_bfi_b32 v{ACCP+16*g+4*z}, s{s_ff}, v{vTB}, v{ACCP+16*g+4*z}" for z in range(4)] + \
                   [(f"buffer_store_dwordx4 v[{ACCP+16*g+4*z}:{ACCP+16*g+4*z+3}], v{vLIN}, {srd(sWS)}, s{s_xs+g} offen offset:{1024*z} sc1", "xs") for z in range(4)]
        XT = 208
        xr8 = [RECV + 4 * z for z in range(8)]
        xchk = [f"v_xor_b32 v{r}, v{vTB}, v{r}" for r in xr8] + [f"v_or3_b32 v{vT}, v{xr8[0]}, v{xr8[1]}, v{xr8[2]}", f"v_or3_b32 v{vT}, v{vT}, v{xr8[3]}, v{xr8[4]}",
                f"v_or3_b32 v{vT}, v{vT}, v{xr8[5]}, v{xr8[6]}", f"v_or_b32 v{vT}, v{vT}, v{xr8[7]}", f"v_and_b32 v{vT}, 0xff, v{vT}", f"v_cmp_ne_u32 vcc, 0, v{vT}"]
        xmul = [f"v_mul_f32 v{XT+z}, v{RECV+z}, v{ACC1+z}" for z in range(32)]
        paddr = [f"s_mul_i32 s{s_t2}, s{s_sb}, {2*28}", f"s_lshl_b32 s{s_t3}, s{s_j}, 1", f"s_add_u32 s{s_t2}, s{s_t2}, s{s_t3}", f"s_lshl_b32 s{s_t2}, s{s_t2}, 10",
                 f"s_add_u32 s{s_t2}, s{s_t2}, {WS_P}", f"s_add_u32 s{s_t3}, s{s_t2}, {28*1024}"]
        xv = [wvm("xr")] + xchk + xmul; xlast = [0]
        def x_recv(g):
            return [(f"buffer_load_dwordx4 v[{RECV+16*g+4*z}:{RECV+16*g+4*z+3}], v{vLIN}, {srd(sWS)}, s{s_xr+g} offen offset:{1024*z} sc1", "xr") for z in range(4)]
        for sb in range(64):
            c, uu = sb >> 1, sb & 1
            gaps = [[] for _ in range(8)]
            if sb + 2 < 64:
                for m, x in enumerate(tr_b(sb + 2)): gaps[m].append(x)
            a.wait(lg=[f"br{sb}", f"ar{c}"])
            if sb in rd_at:
                rd = read_a(rd_at[sb])
                self.put(rd[0])
                for m, x in enumerate(rd[1:]): gaps[2 * m].append(x)
            n = len(issue[sb])
            st = sb >> 2
            barr = (sb & 3) == 1 and st + 1 < 16
            pos = {0: [], 1: [2], 2: [2, 6], 3: [1, 4, 6], 4: [0, 2, 4, 6]}[n]
            prev = -1
            for (kind, idx, q), m in zip(issue[sb], pos):
                if kind in "sr":
                    grp = {"s": x_send, "r": x_recv}[kind](idx)
                    if kind == "s": gaps[max(m - 1, 0)].append(grp[q])
                    gaps[m].append(grp[-4:][q]); prev = m
                    continue
                if q == 0:
                    grp = {"a": dma_a, "b": dma_b, "w": dma_wo}[kind](idx)
                    if kind == "w" and idx < 4: grp = [wlg(f"ar{12+idx}")] + grp
                    setup, groups[(kind, idx)] = grp[:-4], grp[-4:]
                    for z, it in enumerate(setup): gaps[min(max(prev + 1, m - len(setup) + z), m)].append(it)
                gaps[m].append(groups[(kind, idx)][q]); prev = m
            if barr:
                assert not any(kd == "b" and ix == st + 1 for x in issue[sb:] for kd, ix, _ in x)
                bm = o.get("barm", 4)
                gaps[bm - 1].append(wvm(f"b{st+1}")); gaps[bm].append("s_barrier")
            while xv and sb >= o.get("xv", 59):
                free = [m for m in range(7) if len(gaps[m]) < 2]
                if not free: break
                gaps[min(m for m in free if m >= xlast[0]) if any(m >= xlast[0] for m in free) else 7].append(xv.pop(0))
                xlast[0] = min([m for m in free if m >= xlast[0]] + [7])
                if xlast[0] == 7: break
            xlast[0] = 0
            if sb == o.get("wot", 99): gaps[5].append((f"buffer_load_dword v{vWT}, v{vWT}, {srd(sWOUT)}, 0 offen", "wt"))
            k, b = areg(c)
            for m in range(8):
                ft, nt = m >> 1, m & 1
                d = acc(ACC2 if sb >= 32 else ACCP, ft, nt); br = BF + (sb % 3) * 16 + ft * 4; ar = b + (uu * 2 + nt) * 4
                ci = d if sb != 32 else acc(ACC2, 3, nt)
                a(f"v_mfma_f32_16x16x32_bf16 v[{d}:{d+3}], v[{br}:{br+3}], {k}[{ar}:{ar+3}], {f'v[{ci}:{ci+3}]' if sb else '0'}")
                emit(gaps[m])
            if self.stamps and o.get("p2fine") and sb % 6 == 5:
                rg = [16, 18, 20, 22, 24, 26, 44, 46, 48, 50][sb // 6]
                a(f"s_memrealtime s[{rg}:{rg+1}]")
        if self.stamps and o.get("p2fine"):
            a("s_waitcnt lgkmcnt(0)")
            for z, rg in enumerate([16, 18, 20, 22, 24, 26, 44, 46, 48, 50]):
                a(f"v_writelane_b32 v{vST}, s{rg}, {self.nst}"); self.names.append(f"s{6*z+6}"); self.nst += 1
        self.stamp("p2_done")
        emit(xv); emit(paddr)
        Lx = a.label("L_xok")
        a("s_cmp_eq_u64 vcc, 0")
        a(f"s_cbranch_scc1 {Lx}")
        vm0, h0 = list(a.vm), list(a.hist)
        self.poll([x[0] for g in range(2) for x in x_recv(g)], xr8, vT, vtag=vTB)
        emit(xmul)
        a(f"{Lx}:")
        a.vm, a.hist = vm0, h0
        self.stamp("x_got")

        PP = 96
        for nt in range(2):
            for q in range(2):
                r = PP + (nt * 2 + q) * 4
                for h in range(2):
                    z = acc(ACC2, 2 * q + h, nt); z1 = acc(ACC1, 2 * q + h, nt)
                    for p in range(2): a(f"v_pk_fma_f32 {pr(z+2*p)}, {pr(z+2*p)}, {pr(z1+2*p)}, {pr(acc(XT, 2*q+h, nt)+2*p)}")
                    for p in range(2): a(f"v_cvt_pk_bf16_f32 v{r+2*h+p}, v{z+2*p}, v{z+2*p+1}")
                a(f"buffer_store_dwordx4 v[{r}:{r+3}], v{vLIN}, {srd(sWS)}, s{s_t2 if nt == 0 else s_t3} offen offset:{1024*q} sc1", tag="pst")
        a(f"s_lshl_b32 s{s_t1}, s{s_i}, 4")
        a(f"s_add_u32 s{s_t1}, s{s_t1}, s{s_j}")
        a(f"s_mul_i32 s{s_t1}, s{s_t1}, {FS}")
        a(f"s_add_u32 s{s_t1}, s{s_t1}, {WS_FP}")
        emit(self.only_wave(s_t1, 1))
        a("s_barrier")
        bg = []
        for _ in range(o.get("wo_pre", 3)):
            if wo_done < 7: bg += dma_wo(wo_done); wo_done += 1
        s_pa, s_pb = s_ar, s_ar + 7
        fg = []; a = Rec()
        s_o2 = s_aw + 2
        QF, YF, KF, AP = 112, 120, 64, 128
        a(f"s_lshl_b32 s{s_t0}, s{s_i}, 1")
        a(f"s_add_u32 s{s_t0}, s{s_t0}, s{s_th}")
        a(f"s_and_b32 s{s_t2}, s{s_w}, 1")
        a(f"s_lshl_b32 s{s_t3}, s{s_t0}, 1")
        a(f"s_add_u32 s{s_t3}, s{s_t3}, s{s_t2}")
        a(f"s_mul_i32 s{s_t3}, s{s_t3}, {32*896}")
        a(f"s_lshl_b32 s{s_so}, s{s_dj}, 7")
        a(f"s_add_u32 s{s_t3}, s{s_t3}, s{s_so}")
        a(f"s_lshr_b32 s{s_so}, s{s_w}, 1")
        a(f"s_lshl_b32 s{s_so}, s{s_so}, 6")
        a(f"s_add_u32 s{s_so}, s{s_t3}, s{s_so}")
        a(f"s_add_u32 s{s_o2}, s{s_so}, {16*896}")
        vRW = vAD
        a(f"v_and_b32 v{t1}, 15, v1")
        a(f"v_mul_u32_u24 v{vRW}, 896, v{t1}")
        vQR = vONE
        a(f"v_lshrrev_b32 v{t0}, 5, v1")
        a(f"s_and_b32 s{s_t3}, s{s_w}, 2")
        a(f"s_lshl_b32 s{s_t3}, s{s_t3}, 1")
        a(f"v_add_u32 v{t0}, s{s_t3}, v{t0}")
        a(f"v_xor_b32 v{t0}, v{t0}, v1")
        a(f"v_and_b32 v{t0}, 7, v{t0}")
        a(f"v_lshlrev_b32 v{t0}, 4, v{t0}")
        a(f"v_lshl_add_u32 v{t0}, v{t1}, 7, v{t0}")
        a(f"v_bfe_u32 v{t2}, v1, 4, 1")
        a(f"v_lshl_add_u32 v{t0}, v{t2}, 3, v{t0}")
        a(f"s_mul_i32 s{s_t3}, s{s_t2}, {2*REGION}")
        a(f"s_add_u32 s{s_t3}, s{s_t3}, {QOFF}")
        a(f"v_add_u32 v{vQR}, s{s_t3}, v{t0}")
        a(f"v_xor_b32 v{vQR+1}, 32, v{vQR}")
        a(f"v_lshrrev_b32 v{t0}, 5, v1")
        a(f"v_bfe_u32 v{t1}, v1, 2, 3")
        a(f"v_lshlrev_b32 v{t2}, 7, v{t1}")
        a(f"v_and_b32 v{t3}, 3, v1")
        a(f"v_lshl_add_u32 v{t2}, v{t3}, 3, v{t2}")
        a(f"v_bfe_u32 v{t3}, v1, 3, 2")
        a(f"v_lshl_add_u32 v{t2}, v{t3}, 5, v{t2}")
        a(f"s_and_b32 s{s_t3}, s{s_w}, 2")
        a(f"s_lshl_b32 s{s_t3}, s{s_t3}, 5")
        a(f"v_xor_b32 v{t3}, s{s_t3}, v{t2}")
        a(f"v_mul_u32_u24 v{t1}, {REGION}, v{t0}")
        vW3 = 72
        a(f"s_lshl_b32 s{s_t3}, s{s_t3}, 5")
        a(f"v_add3_u32 v{vW3}, v{t1}, v{t3}, s{s_t3}")
        for dtr in range(1, 4): a(f"v_xor_b32 v{vW3+dtr}, {32*dtr}, v{vW3}")
        for dtr in range(4): a(f"v_add_u32 v{vW3+4+dtr}, {2*REGION}, v{vW3+dtr}")
        YOFF = BSLOT(14)
        vYA = vXR
        a(f"s_lshl_b32 s{s_t3}, s{s_t2}, 6")
        a(f"v_xor_b32 v{t3}, s{s_t3}, v{t2}")
        a(f"v_lshl_add_u32 v{t3}, v{t0}, 10, v{t3}")
        a(f"s_and_b32 s{s_t3}, s{s_w}, 2")
        a(f"s_mul_i32 s{s_t3}, s{s_t3}, {REGION}")
        a(f"s_add_u32 s{s_t3}, s{s_t3}, {YOFF}")
        a(f"v_add_u32 v{vYA}, s{s_t3}, v{t3}")
        a(f"v_xor_b32 v{vYA+1}, 32, v{vYA}")
        for dt2 in range(2):
            for nt in range(2):
                r = KF + (dt2 * 2 + nt) * 2
                a(f"ds_read_b64_tr_b16 v[{r}:{r+1}], v{vYA+nt} offset:{dt2*REGION + KVD - YOFF}", tag="kr")
        vYD = vC0
        a(f"v_bfe_u32 v{t1}, v1, 3, 1")
        a(f"v_lshrrev_b32 v{t2}, 4, v1")
        a(f"v_lshl_add_u32 v{t1}, v{t1}, 5, v{t2}")
        a(f"v_lshl_add_u32 v{vYD}, v{t1}, 12, v{vSW}")
        a(f"v_add_u32 v{vYD+1}, {4*4096-1024}, v{vYD}")
        s_y, s_y2 = s_aw, s_aw + 1
        a(f"s_lshl_b32 s{s_y}, s{s_dj}, 3")
        a(f"s_add_u32 s{s_y}, s{s_y}, s{s_w}")
        a(f"s_lshl_b32 s{s_y}, s{s_y}, 15")
        a(f"s_lshl_b32 s{s_cnt}, s{s_t0}, 7")
        a(f"s_add_u32 s{s_y}, s{s_y}, s{s_cnt}")
        a(f"s_add_u32 s{s_y}, s{s_y}, {WS_YT}")
        a(f"s_mul_i32 s{s_t3}, s{s_i}, {16*FS}")
        a(f"s_add_u32 s{s_t3}, s{s_t3}, {WS_FP}")
        a(f"v_min_u32 v{t1}, 13, v1")
        a(f"v_mul_u32_u24 v{t1}, {FS}, v{t1}")
        a(f"s_lshl_b32 s{s_pb}, s{s_t0}, 1")
        a(f"s_add_u32 s{s_pb}, s{s_pb}, s{s_t2}")
        a(f"s_mul_i32 s{s_pb}, s{s_pb}, {56*1024}")
        a(f"s_and_b32 s{s_cnt}, s{s_w}, 2")
        a(f"s_lshl_b32 s{s_cnt}, s{s_cnt}, 10")
        a(f"s_add_u32 s{s_pb}, s{s_pb}, s{s_cnt}")
        a(f"s_add_u32 s{s_pb}, s{s_pb}, {WS_P}")
        for g4 in range(7):
            a(f"s_lshl_b32 s{s_pa+g4}, s{s_ca+g4}, 5")
            a(f"s_add_u32 s{s_pa+g4}, s{s_pa+g4}, s{s_pb}")
        vP1, vEW, vER = vAD + 2, vAD + 3, vAD + 1
        a(f"v_add_u32 v{vP1}, {28*1024}, v{vLIN}")
        EXO = BSLOT(15)
        a(f"s_add_u32 s{s_cnt}, s{s_wb}, {EXO}")
        a(f"v_add_u32 v{vEW}, s{s_cnt}, v{vLIN}")
        a(f"s_xor_b32 s{s_cnt}, s{s_w}, 2")
        a(f"s_mul_i32 s{s_cnt}, s{s_cnt}, {REGION}")
        a(f"s_add_u32 s{s_cnt}, s{s_cnt}, {EXO}")
        a(f"v_add_u32 v{vER}, s{s_cnt}, v{vLIN}")
        a(f"v_bfe_u32 v{t0}, v1, 4, 1")
        a(f"v_lshrrev_b32 v{t2}, 5, v1")
        a(f"v_lshl_add_u32 v{vRW}, v{t0}, 5, v{vRW}")
        a(f"v_lshl_add_u32 v{vRW}, v{t2}, 4, v{vRW}")
        a = real_a
        weave(fg, bg, max(1.0, len(fg) / max(len(bg), 1))); emit(bg)
        def y_dma(sreg):
            a(f"s_add_u32 m0, s{s_wb}, {YOFF}")
            a(f"buffer_load_dwordx4 v{vYD}, {srd(sWS)}, s{sreg} offen sc1 lds", tag="y")
            a(f"buffer_load_dwordx4 v{vYD+1}, {srd(sWS)}, s{sreg} offen offset:1024 sc1 lds", tag="y")
        a.wait(vm="pst")
        a("s_barrier")
        self.flag(s_t1, vL8, vTAG)
        self.stamp("p_pub")
        while wo_done < 7: emit(dma_wo(wo_done)); wo_done += 1
        ylate = o.get("ylate", 1)
        for dt2 in range(2):
            for nt in range(2):
                r = QF + (dt2 * 2 + nt) * 2
                a(f"ds_read_b64 v[{r}:{r+1}], v{vQR+dt2} offset:{nt*REGION}", tag="qr")
        TK, TY = 208, 224
        a.wait(lg="kr")
        for x in range(4):
            for p in range(2): unpack(TK + 4 * x + 2 * p, KF + 2 * x + p)
        a.wait(lg="qr")
        for x in range(4):
            for p in range(2): unpack(AP + 4 * x + 2 * p, QF + 2 * x + p)
            for p in range(2): a(f"v_pk_mul_f32 {pr(AP+4*x+2*p)}, {pr(AP+4*x+2*p)}, {pr(GV+2*(x&1))} op_sel_hi:[1,0]")
        for nt in range(2): a(f"v_sub_f32 v{GV+2*nt}, 1.0, v{GV+2*nt}")
        if ylate:
            for z in range(8): a(f"v_pk_mul_f32 {pr(TK+2*z)}, {pr(TK+2*z)}, {pr(AP+2*z)}")
        for _ in range(o.get("pdelay", 0)): a("s_nop 15")
        self.stamp("wo_iss")
        self.poll([f"buffer_load_dword v{t3}, v{t1}, {srd(sWS)}, s{s_t3} offen sc1"], [t3], vT, wave=0)
        ylate = o.get("ylate", 1)
        if not ylate: self.poll([yfl], [vBS], vT, wave=2, nap=o.get("ynap", 2))
        a("s_waitcnt vmcnt(0) lgkmcnt(0)")
        a("s_barrier")
        self.stamp("p_got")
        def ld_p(ks):
            return [(f"buffer_load_dwordx4 a[{(ks*2+nt)*4}:{(ks*2+nt)*4+3}], v{vP1 if nt else vLIN}, {srd(sWS)}, s{s_pa+(ks>>1)} offen offset:{(ks&1)*1024} sc1", f"p{ks}") for nt in range(2)]
        W3F = 160
        def tr_o(ks):
            out = []
            for dtr in range(4):
                for hh in range(2):
                    r = W3F + (ks % 3) * 16 + dtr * 4 + hh * 2
                    out.append((f"ds_read_b64_tr_b16 v[{r}:{r+1}], v{vW3+4*hh+dtr} offset:{WOSLOT[ks>>1] + (ks&1)*1024}", f"or{ks}"))
            return out
        np0 = o.get("np0", 5)
        for ks in range(np0):
            emit(ld_p(ks))
            if ks == 1 and not ylate: y_dma(s_y)
        emit(tr_o(0) + tr_o(1))
        yv = [(f"ds_read_b64_tr_b16 v[{YF+2*x}:{YF+2*x+1}], v{vYA+(x&1)} offset:{(x>>1)*REGION}", "yr") for x in range(4)] + [None] * 6 + [wlg("yr")]
        for z in range(8): yv += [f"v_lshlrev_b32 v{TY+2*z}, 16, v{YF+z}", f"v_and_b32 v{TY+2*z+1}, s{s_cnt}, v{YF+z}"]
        yv += [f"v_add_f32 v{TY+z}, v{TY+z}, v{TK+z}" for z in range(16)]
        yv += [f"v_mul_f32 v{AP+z}, v{AP+z}, v{TY+z}" for z in range(16)]
        a(f"s_mov_b32 s{s_cnt}, 0xffff0000")
        ACC3 = 32
        for ks in range(14):
            ex = tr_o(ks + 2) if ks < 12 else []
            lp = ld_p(ks + np0) if ks + np0 < 14 else []
            a.wait(vm=f"p{ks}", lg=f"or{ks}")
            if ks == 3 and not ylate: a("s_barrier")
            if ylate and ks == o.get("yf", 4): a(yfl, tag="yf")
            if ylate and ks == o.get("yc", 9):
                self.poll([yfl], [vBS], vT, issued="yf", nap=o.get("ynap", 2))
                y_dma(s_y)
            for m, dtr in enumerate((2, 2, 3, 3, 0, 0, 1, 1)):
                nt = m & 1
                d = ACC3 + (dtr * 2 + nt) * 4; wr = W3F + (ks % 3) * 16 + dtr * 4; r = (ks * 2 + nt) * 4
                cin = "0" if ks == 0 else f"v[{d}:{d+3}]"
                a(f"v_mfma_f32_16x16x32_bf16 v[{d}:{d+3}], v[{wr}:{wr+3}], a[{r}:{r+3}], {cin}")
                if ex: self.put(ex.pop(0))
                if lp and m in (1, 5): self.put(lp.pop(0))
                elif ks >= 3 and yv and not ylate:
                    it = yv.pop(0)
                    if it is not None: self.put(it)
        assert ylate or not yv
        self.stamp("p3_done")
        RV = 160
        for x in range(4): a(f"ds_write_b128 v{vEW}, v[{ACC3+16+4*x}:{ACC3+19+4*x}] offset:{1024*x}")
        A0 = TK if ylate else AP
        for x in range(4):
            for p in range(2):
                a(f"v_pk_fma_f32 {pr(A0+4*x+2*p)}, {pr(ACC3+4*x+2*p)}, {pr(GV+2*(x&1))}, {pr(A0+4*x+2*p)} op_sel_hi:[1,0,1]")
        a("s_waitcnt vmcnt(0) lgkmcnt(0)")
        a("s_barrier")
        if ylate: emit(yv[:4])
        for x in (0, 2, 1, 3): a(f"ds_read_b128 v[{RV+4*x}:{RV+4*x+3}], v{vER} offset:{1024*x}", tag=f"rv{x&1}")
        if ylate:
            a.wait(lg="yr")
            for z in range(8): unpack(TY + 2 * z, YF + z)
            for z in range(8): a(f"v_pk_fma_f32 {pr(AP+2*z)}, {pr(AP+2*z)}, {pr(TY+2*z)}, {pr(TK+2*z)}")
        OP = 64
        for nt in range(2):
            a.wait(lg=f"rv{nt}")
            for dt2 in range(2):
                x = dt2 * 2 + nt; d = RV + 4 * x
                for p in range(2):
                    a(f"v_pk_fma_f32 {pr(d+2*p)}, {pr(d+2*p)}, {pr(GV+2*nt)}, {pr(AP+4*x+2*p)} op_sel_hi:[1,0,1]")
                for p in range(2):
                    a(f"v_cvt_pk_bf16_f32 v{OP+4*nt+2*dt2+p}, v{d+2*p}, v{d+2*p+1}")
            for p in range(2): a(f"v_permlane16_swap_b32 v{OP+4*nt+p}, v{OP+4*nt+2+p}")
            a(f"buffer_store_dwordx4 v[{OP+4*nt}:{OP+4*nt+3}], v{vRW}, {srd(sOUT)}, s{s_so if nt == 0 else s_o2} offen")
        if self.stamps:
            a("s_waitcnt vmcnt(0)")
            self.stamp("end")
            self.dump_stamps()
        if self.o.get("padto"):
            a("L_padto:")
            a("s_memrealtime s[4:5]")
            a("s_waitcnt lgkmcnt(0)")
            a("s_sub_u32 s4, s4, s6")
            a(f"s_cmp_lt_u32 s4, {self.o['padto']*100}")
            a("s_cbranch_scc1 L_padto")
        a("s_endpgm")
        self.gemm_names = self.names

    def first_wait(self):
        if self.waited: return
        self.waited = True
        a = self.a
        a("s_waitcnt lgkmcnt(0)")
        if self.stamps:
            a(f"v_writelane_b32 v{vST}, s{s_ts}, 0"); self.names.append("start"); self.nst = 1
            if self.o.get("fine"): self.stamp("karg")

    def helper_wg(self):
        a = self.a; o = self.o
        emit, wvm, wlg = self.emit, self.wvm, self.wlg
        a.hist = []; a.vm = []; a.lg = []
        self.names = []; self.nst = 0; self.waited = False
        a("L_helper:")
        UOFF, CS, HSZ = 1024, 4160, 4 * 4160
        ASZ = 288 * 64
        HOFF = UOFF + 3 * ASZ
        EXOFF = HOFF + 4 * HSZ
        assert EXOFF + 4 * 5120 <= 163840
        s_hh, s_kh, s_it, s_fy = s_i, s_j, s_dj, s_th
        s_h, s_g, s_y, s_f = 74, 78, 82, 86
        s_yp, s_um, s_us, s_pf, s_pfs, s_pf2 = 90, 91, 92, 93, 94, 95
        s_x = 96
        vZ, vTAG, vLIN, vF, vHL, vHL2, vEXW, vEXR, vYS, vHW, vDUM = 2, 3, 4, 5, 8, 9, 10, 11, 12, 13, 6
        vG = 14
        vPF = 7
        vUD = 18
        t0, t1, t2 = 24, 25, 26
        HD = 32
        Y = 64
        O = 96
        HTS = [112, 118, 24, O + 8]
        FB = [192, 224]; GB = [128, 160]
        gk = "a" if o.get("gagpr", 0) else "v"
        a(f"s_lshl_b32 s{s_hh}, s{s_t1}, 2")
        a(f"s_add_u32 s{s_hh}, s{s_hh}, s{s_t0}")
        a(f"s_sub_u32 s{s_hh}, s{s_hh}, 28")
        a(f"s_and_b32 s{s_so}, s{s_hh}, 3")
        a(f"s_lshl_b32 s{s_so2}, s{s_so}, 2")
        a(f"s_add_u32 s{s_so2}, s{s_so2}, s{s_w}")
        if o.get("cpf", 1):
            a(f"s_getpc_b64 s[100:101]")
            a("L_pc:")
            a(f"v_lshl_add_u32 v{t0}, v1, 4, s{s_so2}")
            a(f"v_lshlrev_b32 v{t0}, 7, v{t0}")
            a.raw(f"    v_min_u32 v{t0}, L_codeend-{NAME}-4, v{t0}")
            a.raw(f"    s_sub_u32 s100, s100, L_pc-{NAME}")
            a("s_subb_u32 s101, s101, 0")
            a("s_mov_b32 exec_hi, 0")
            a(f"global_load_dword v{vDUM}, v{t0}, s[100:101]")
            a("s_mov_b32 exec_hi, -1")
        a(f"s_and_b32 s{s_kh}, s{s_w}, 1")
        a(f"v_mov_b32 v{vZ}, 0")
        a(f"v_lshlrev_b32 v{vLIN}, 4, v1")
        a(f"v_lshrrev_b32 v{t1}, 4, v1")
        a(f"v_and_b32 v{t0}, 15, v1")
        a(f"v_lshlrev_b32 v{vHL}, 9, v{t1}")
        a(f"v_lshl_add_u32 v{vHL}, v{t0}, 3, v{vHL}")
        a(f"v_subrev_u32 v{vHL2}, 8, v{vHL}")
        s_c0 = s_pf2
        a(f"s_and_b32 s{s_c0}, s{s_hh}, 1")
        a(f"s_lshl_b32 s{s_c0}, s{s_c0}, 1")
        def chan(k):
            if k < 3:
                a(f"s_add_u32 s{s_t0}, s{s_w}, {4*k}"); a(f"s_add_u32 s{s_t0}, s{s_t0}, s{s_c0}")
            else:
                a(f"s_lshr_b32 s{s_t0}, s{s_w}, 1")
                a(f"s_add_u32 s{s_x+3}, s{s_t0}, s{s_c0}"); a(f"s_xor_b32 s{s_x+3}, s{s_x+3}, s{s_w}"); a(f"s_lshl_b32 s{s_x+3}, s{s_x+3}, 4")
                a(f"s_mul_i32 s{s_t1}, s{s_c0}, 6"); a(f"s_sub_u32 s{s_t0}, s{s_t0}, s{s_t1}"); a(f"s_add_u32 s{s_t0}, s{s_t0}, 12")
            a(f"s_mul_i32 s{s_t1}, s{s_hh}, 14")
            a(f"s_add_u32 s{s_t1}, s{s_t1}, s{s_t0}")
            a(f"s_and_b32 s{s_t2}, s{s_t1}, 31")
            a(f"s_lshl_b32 s{s_t2}, s{s_t2}, 1")
            a(f"s_bfe_u32 s{s_t3}, s{s_t1}, 0x10005")
            a(f"s_add_u32 s{s_t2}, s{s_t2}, s{s_t3}")
            a(f"s_andn2_b32 s{s_t3}, s{s_t1}, 63")
            a(f"s_add_u32 s{s_t2}, s{s_t2}, s{s_t3}")
            a(f"s_lshl_b32 s{s_h+k}, s{s_t2}, 12")
            a(f"s_lshl_b32 s{s_y+k}, s{s_t1}, 12")
            a(f"s_add_u32 s{s_y+k}, s{s_y+k}, {WS_YT}")
        def h_loads(g, sreg):
            d = HD + 4 * g; off = 2048 * (g & 1) + 128 * (g >> 1)
            return [(f"buffer_load_dwordx2 v[{d}:{d+1}], v{vHL2 if g == 0 else vHL}, {srd(sH)}, s{sreg} offen offset:{max(off-8, 0)}", f"h{g}"),
                    (f"buffer_load_dwordx2 v[{d+2}:{d+3}], v{vHL}, {srd(sH)}, s{sreg} offen offset:{off}", f"h{g}")]
        def h_valu(g):
            d = HD + 4 * g; t = HTS[g & 3]
            return [wvm(f"h{g}"), f"v_alignbit_b32 v{t}, v{d+2}, v{d+1}, 16", f"v_alignbit_b32 v{t+1}, v{d+3}, v{d+2}, 16",
                    f"v_mov_b32 v{t+2}, v{d+1}", f"v_mov_b32 v{t+3}, v{d+2}",
                    f"v_alignbit_b32 v{t+4}, v{d+1}, v{d}, 16", f"v_mov_b32 v{t+5}, v{t}"]
        def h_writes(g):
            d = HD + 4 * g; t = HTS[g & 3]; off = 2048 * (g & 1) + 128 * (g >> 1)
            return [(f"ds_write_b64 v{vHW}, v[{r}:{r+1}] offset:{off + c*CS}", f"hw{g}") for c, r in enumerate((d + 2, t, t + 2, t + 4))]
        chan(0)
        self.first_wait()
        a(f"buffer_load_dword v{vTAG}, v{vZ}, {srd(sWS)}, 0 offen sc1", tag="epoch")
        for g in range(8): emit(h_loads(g, s_h))
        a(f"s_lshr_b32 s{s_t0}, s{s_hh}, 3")
        a(f"s_lshl_b32 s{s_t0}, s{s_t0}, 2")
        a(f"s_add_u32 s{s_sb}, s{s_t0}, s{s_so}")
        for k in range(1, 4): chan(k)
        a(f"s_mov_b32 s{s_g+1}, {ASZ}")
        a(f"s_mov_b32 s{s_g+2}, {ASZ}")
        a(f"s_lshl_b32 s{s_t2}, s{s_kh}, 10")
        a(f"s_sub_u32 s{s_g+3}, {(-2*ASZ) & 0xffffffff}, s{s_t2}")
        a(f"s_mov_b32 s{s_x+1}, 0")
        a(f"s_mov_b32 s{s_x+2}, 0")
        a(f"s_lshl_b32 s{s_t2}, s{s_kh}, 11")
        a(f"s_add_u32 s{s_y+3}, s{s_y+3}, s{s_t2}")
        a(f"s_mov_b32 s{s_f+1}, 0")
        a(f"s_mov_b32 s{s_f+2}, 0")
        a(f"s_lshl_b32 s{s_f+3}, s{s_kh}, 8")
        a(f"s_mul_i32 s{s_fy}, s{s_hh}, {FS}")
        a(f"s_add_u32 s{s_fy}, s{s_fy}, {WS_FY}")
        emit(self.only_wave(s_fy, 0))
        a(f"v_lshlrev_b32 v{t2}, 3, v{t1}")
        a(f"v_sub_u32 v{t2}, v{t0}, v{t2}")
        a(f"v_add_u32 v{t2}, 25, v{t2}")
        a(f"v_sub_u32 v{vF}, 0, v{t2}")
        a(f"v_and_b32 v{vF}, 3, v{vF}")
        a(f"v_mul_u32_u24 v{vF}, {CS+2}, v{vF}")
        a(f"v_lshl_add_u32 v{vF}, v{t2}, 1, v{vF}")
        a(f"s_mul_i32 s{s_t2}, s{s_w}, {HSZ}")
        a(f"s_add_u32 s{s_t2}, s{s_t2}, {HOFF}")
        a(f"v_add_u32 v{vF}, s{s_t2}, v{vF}")
        a(f"s_add_u32 s{s_t2}, s{s_t2}, 32")
        a(f"v_add_u32 v{vHW}, s{s_t2}, v{vHL}")
        a(f"v_lshl_add_u32 v{t2}, v{t0}, 1, v{t1}")
        a(f"v_add_u32 v{t2}, 2, v{t2}")
        for k in range(4):
            a(f"v_lshrrev_b32 v{vG+k}, 2, v{t2}")
            a(f"v_add_u32 v{vG+k}, {3-k}, v{vG+k}")
            a(f"v_xor_b32 v{vG+k}, s{s_w}, v{vG+k}")
            a(f"v_and_b32 v{vG+k}, 3, v{vG+k}")
            a(f"v_lshlrev_b32 v{vG+k}, 4, v{vG+k}")
            a(f"v_lshl_add_u32 v{vG+k}, v{t2}, 6, v{vG+k}")
            a(f"v_add_u32 v{vG+k}, {UOFF}, v{vG+k}")
        a(f"v_lshlrev_b32 v{vYS}, 5, v{t0}")
        a(f"v_bfe_u32 v{t2}, v1, 4, 1")
        a(f"v_lshl_add_u32 v{vYS}, v{t2}, 9, v{vYS}")
        a(f"v_lshrrev_b32 v{t2}, 5, v1")
        a(f"v_lshl_add_u32 v{vYS}, v{t2}, 4, v{vYS}")
        a(f"v_xor_b32 v{t0}, v{t1}, v1")
        a(f"v_and_b32 v{t0}, 3, v{t0}")
        a(f"v_lshrrev_b32 v{t2}, 2, v1")
        a(f"v_mul_u32_u24 v{t2}, 7168, v{t2}")
        a(f"v_lshl_add_u32 v{vUD}, v{t0}, 4, v{t2}")
        for q in range(1, 4): a(f"v_add_u32 v{vUD+q}, {q*(16*7168-1024)}, v{vUD}")
        for q in range(4): a(f"v_mov_b32 v{O+q}, 0")
        a(f"v_bfe_u32 v{t0}, v1, 1, 4")
        a(f"v_and_b32 v{t2}, 1, v1")
        a(f"v_mul_u32_u24 v{t0}, {CS}, v{t0}")
        a(f"v_lshl_add_u32 v{t0}, v{t2}, 4, v{t0}")
        a(f"v_add_u32 v{t0}, {HOFF}, v{t0}")
        a(f"ds_write_b128 v{t0}, v[{O}:{O+3}]")
        a(f"v_and_b32 v{t0}, 127, v0")
        a(f"v_lshlrev_b32 v{t0}, 4, v{t0}")
        for q in range(3): a(f"ds_write_b128 v{t0}, v[{O}:{O+3}] offset:{UOFF + q*ASZ}")
        a.wait(vm="epoch")
        self.get_tag(vTAG, vTAG)
        for g in range(8):
            if g == 4: a("s_waitcnt lgkmcnt(0)")
            emit(h_valu(g)); emit(h_writes(g))
        a("s_waitcnt lgkmcnt(0)")
        for g in range(4): emit(h_loads(g, s_h + 1))
        if o.get("w1pf", 0):
            a(f"s_mul_i32 s{s_t2}, s{s_so2}, {28*3584}")
            a(f"s_bfe_u32 s{s_t3}, s{s_hh}, 0x10002")
            a(f"s_mul_i32 s{s_t3}, s{s_t3}, 896")
            a(f"s_add_u32 s{s_t2}, s{s_t2}, s{s_t3}")
            a(f"v_lshrrev_b32 v{t0}, 3, v1")
            a(f"v_min_u32 v{t0}, 6, v{t0}")
            a(f"v_and_b32 v{t1}, 7, v1")
            a(f"v_min_u32 v{t1}, 6, v{t1}")
            a(f"v_mul_u32_u24 v{t0}, 3584, v{t0}")
            a(f"v_lshl_add_u32 v{t0}, v{t1}, 7, v{t0}")
            for q in range(o.get("w1n", 4)):
                a(f"buffer_load_dword v{vDUM}, v{t0}, {srd(sWIN)}, s{s_t2} offen", tag="pf")
                if q < 3: a(f"s_add_u32 s{s_t2}, s{s_t2}, {7*3584}")
        if o.get("opf", 1):
            a(f"s_lshl_b32 s{s_t2}, s{s_hh}, 2")
            a(f"s_add_u32 s{s_t2}, s{s_t2}, s{s_w}")
            a(f"s_mul_i32 s{s_pfs}, s{s_t2}, {49*128}")
            a(f"v_min_u32 v{vPF}, 48, v1")
            a(f"v_lshlrev_b32 v{vPF}, 7, v{vPF}")
            a(f"buffer_load_dword v{vDUM}, v{vPF}, {srd(sWOUT)}, s{s_pfs} offen", tag="pf")
        a(f"s_lshl_b32 s{s_t2}, s{s_w}, 12")
        a(f"s_add_u32 s{s_t2}, s{s_t2}, {EXOFF}")
        a(f"v_add_u32 v{vEXW}, s{s_t2}, v{vLIN}")
        a(f"s_xor_b32 s{s_t2}, s{s_w}, 1")
        a(f"s_lshl_b32 s{s_t2}, s{s_t2}, 12")
        a(f"s_add_u32 s{s_t2}, s{s_t2}, {EXOFF}")
        a(f"v_add_u32 v{vEXR}, s{s_t2}, v{vLIN}")
        a(f"s_mul_i32 s{s_t2}, s{s_hh}, 14")
        a(f"s_lshr_b32 s{s_t3}, s{s_t2}, 6")
        a(f"s_min_u32 s{s_t3}, s{s_t3}, 5")
        a(f"s_mul_i32 s{s_t3}, s{s_t3}, {32*FS}")
        a(f"s_add_u32 s{s_t3}, s{s_t3}, {WS_FKV}")
        a(f"v_mul_u32_u24 v{t1}, {FS}, v1")
        a(f"s_add_u32 s{s_t2}, s{s_t2}, s{s_c0}")
        a(f"s_lshl_b32 s{s_t2}, s{s_t2}, 4")
        a(f"s_mul_i32 s{s_t1}, s{s_w}, {64*7168}")
        a(f"s_add_u32 s{s_t2}, s{s_t2}, s{s_t1}")
        a(f"s_add_u32 s{s_us}, s{s_t2}, {WS_KVT}")
        a(f"s_lshl_b32 s{s_um}, s{s_w}, 12")
        a(f"s_add_u32 s{s_um}, s{s_um}, {UOFF + 2048}")
        a(f"s_mov_b32 s{s_so}, s{s_um}")
        a(f"s_lshl_b32 s{s_pf}, s{s_c0}, 7")
        a(f"s_sub_u32 s{s_pf}, 64, s{s_pf}")
        a(f"s_mov_b32 s{s_it}, 0")
        a(f"s_mov_b32 s{s_yp}, {WS_SIZE}")
        self.stamp("h_ready")
        self.poll([f"buffer_load_dword v{t2}, v{t1}, {srd(sWS)}, s{s_t3} offen sc1"], [t2], t0, wave=0, nap=o.get("knap", 0))
        a("s_barrier")
        self.stamp("kv_got")
        def u_items():
            out = [f"s_mov_b32 m0, s{s_um}"]
            for q in range(4):
                out.append((f"buffer_load_dwordx4 v{vUD+q}, {srd(sWS)}, s{s_us} offen offset:{1024*(q&3)} sc1 lds", "u"))
            return out
        emit(u_items())
        a(f"s_add_u32 s{s_um}, s{s_um}, {ASZ}")
        a(f"s_add_u32 s{s_us}, s{s_us}, 64")
        a(f"s_sub_u32 vcc_lo, 0, s{s_kh}")
        a(f"s_mov_b32 vcc_hi, vcc_lo")
        a("s_waitcnt vmcnt(0) lgkmcnt(0)")
        a("s_barrier")
        self.stamp("u_got")

        def rdF(r):
            b = r & 1
            return [(f"ds_read_b64 v[{FB[b]+4*q+2*h}:{FB[b]+4*q+2*h+1}], v{vF} offset:{512*q + 64*r + 8*h}", f"c{r}_{int(q>4)}") for q in range(8) for h in range(2)]
        def rdG(r):
            b = r & 1
            return [(f"ds_read_b128 {gk}[{GB[b]+4*q}:{GB[b]+4*q+3}], v{vG+(r&3)} offset:{2048*q + 256*(7-r)}", f"c{r}_{int(q>4)}") for q in range(8)]
        def reads(r):
            F, G = rdF(r), rdG(r); out = []
            for q in range(8): out += F[2*q:2*q+2] + [G[q]]
            return out
        def cvt(tiles, src):
            return [f"v_cvt_pk_bf16_f32 v{O+2*x+p}, v{src+4*x+2*p}, v{src+4*x+2*p+1}" for x in tiles for p in range(2)]
        def swaps(x2): return [f"v_permlane16_swap_b32 v{O+4*x2+p}, v{O+4*x2+2+p}" for p in range(2)]
        def store(x2, sreg): return (f"buffer_store_dwordx4 v[{O+4*x2}:{O+4*x2+3}], v{vYS}, {srd(sWS)}, s{sreg} offen offset:{1024*x2} sc1", "yst")
        isvm = lambda it: isinstance(it, tuple) and it[0].startswith("buffer_")
        ORD = [(q + e, q) for q in range(8) for e in range(8 - q)]
        def block(r, lds, oth):
            a = self.a
            b = r & 1; m = 0; hold = []
            lds = list(lds); assert len(lds) <= 36
            a.wait(lg=f"c{r}_{o.get('cw1', 0)}")
            for s0 in range(8):
                if s0 == 5: a.wait(lg=f"c{r}_1")
                for q0 in range(s0 + 1):
                    s, q = s0, q0
                    if o.get("cord", 0) and r not in (0, 7): s, q = ORD[m]
                    e = s - q; d = Y + 4 * s
                    cin = "0" if (r == 0 and q == 0) else f"v[{d}:{d+3}]"
                    a(f"v_mfma_f32_16x16x32_bf16 v[{d}:{d+3}], v[{FB[b]+4*q}:{FB[b]+4*q+3}], {gk}[{GB[b]+4*e}:{GB[b]+4*e+3}], {cin}")
                    hold += oth.get(m, [])
                    n = 0
                    it = lds.pop(0) if lds else None
                    if it is not None:
                        self.put(it); n += 1 if isinstance(it, str) or "read" in it[0] else 2
                    while hold and n < 2: self.put(hold.pop(0)); n += 1
                    m += 1
            assert not hold, (r, hold)
        def lace(rd, extra, first, step):
            out = list(rd)
            for z, it in enumerate(extra):
                p = first + z * step
                while len(out) < p: out.append(None)
                out.insert(p, it)
            return out
        def prev_out(r, sreg):
            if r == 0: return {3: cvt((4, 5), Y) + swaps(0) + swaps(1) + cvt((6, 7), Y) + swaps(2) + swaps(3)}
            return {}
        def cyc(n):
            if self.stamps and o.get("fine"):
                self.a("s_memtime s[4:5]"); self.a(f"s_add_u32 m0, s{s_it}, {16+n}"); self.a("s_waitcnt lgkmcnt(0)"); self.a(f"v_writelane_b32 v{vST}, s4, m0")
        def trip():
            a = self.a
            ui = u_items()
            st = [store(x, s_yp) for x in range(4)]
            block(0, lace(reads(1), h_loads(4, s_h+1) + h_loads(5, s_h+1) + [None] + st[:2], 2, 5), prev_out(0, s_yp))
            block(1, lace(reads(2), st[2:] + h_loads(6, s_h+1) + h_loads(7, s_h+1), 2, 5), {20: h_valu(0)})
            block(2, lace(reads(3), h_writes(0) + ui[:3], 2, 4), {20: h_valu(1)})
            nx = [f"s_add_u32 s{s_um}, s{s_um}, {ASZ}", f"s_cmp_eq_u32 s{s_it}, 0", f"s_cselect_b32 s{s_um}, s{s_um}, s{s_so}",
                  f"s_cselect_b32 s{s_t0}, 64, s{s_pf}", f"s_add_u32 s{s_us}, s{s_us}, s{s_t0}"]
            block(3, lace(reads(4), h_writes(1) + ui[3:], 2, 4), {16: h_valu(2)})
            block(4, lace(reads(5), h_writes(2) + h_loads(0, s_h+2), 2, 5), {4: nx, 20: h_valu(3)})
            block(5, lace(reads(6), h_writes(3) + h_loads(1, s_h+2), 2, 5), {8: h_valu(4) + h_valu(5)})
            gup = lambda k: [f"v_xor_b32 v{vG+k}, s{s_x+1}, v{vG+k}", f"v_add_u32 v{vG+k}, s{s_g+1}, v{vG+k}"]
            upd = [f"v_add_u32 v{vF}, s{s_f+1}, v{vF}"] + gup(3)
            block(6, lace(reads(7), h_writes(4) + h_writes(5), 2, 4) + h_loads(2, s_h+2), {0: gup(0) + gup(1), 4: h_valu(6) + h_valu(7) + gup(2), 34: upd})
            a.wait(vm="u")
            a("s_barrier")
            w = h_writes(6) + h_writes(7); G = rdG(0); l7 = []
            for z in range(8): l7 += [w[z], G[z]]
            rot = [f"s_mov_b32 s{s_yp}, s{s_y}"]
            for base in (s_y, s_g, s_f, s_x):
                rot += [f"s_mov_b32 s{base+k}, s{base+k+1}" for k in range(0 if base == s_y else 1, 3)]
            fin = [f"s_mov_b32 s{s_h+1}, s{s_h+2}", f"s_add_u32 s{s_it}, s{s_it}, 1", f"s_cmp_lt_u32 s{s_it}, 3"]
            block(7, l7 + rdF(0) + h_loads(3, s_h+2), {1: rot[:8], 16: cvt((0, 1, 2, 3), Y) + rot[8:] + fin,
                                                       34: [f"s_mov_b32 s{s_h+2}, s{s_h+3}", f"s_mov_b32 s{s_h+3}, 0x7fff0000"]})
        emit(reads(0))
        a("s_waitcnt lgkmcnt(0)")
        import copy
        real = self.a
        self.a = copy.deepcopy(real); trip(); vm1, lg1 = list(self.a.vm), list(self.a.lg)
        self.a = real; a.vm, a.lg = list(vm1), list(lg1)
        a("L_conv:")
        cyc(0)
        if self.stamps and o.get("fine"): a.lg = list(lg1)
        trip()
        assert (a.vm, a.lg) == (vm1, lg1)
        a("s_cbranch_scc1 L_conv")
        cyc(0)
        st = [store(x, s_yp) for x in range(4)]
        block(0, lace(reads(1), st[:2], 24, 5), prev_out(0, s_yp))
        block(1, lace(reads(2), st[2:], 2, 5), {})
        block(2, reads(3), {})
        block(3, [], {})
        cyc(1)
        SEND, KEEP = 128, 144
        for r in range(16): a(f"v_cndmask_b32 v{SEND+r}, v{Y+16+r}, v{Y+r}, vcc")
        for x in range(4): a(f"ds_write_b128 v{vEXW}, v[{SEND+4*x}:{SEND+4*x+3}] offset:{1024*x}")
        for r in range(16): a(f"v_cndmask_b32 v{KEEP+r}, v{Y+r}, v{Y+16+r}, vcc")
        a("s_waitcnt lgkmcnt(0)")
        a("s_barrier")
        for x in range(4): a(f"ds_read_b128 v[{SEND+4*x}:{SEND+4*x+3}], v{vEXR} offset:{1024*x}")
        a("s_waitcnt lgkmcnt(0)")
        for p in range(8): a(f"v_pk_add_f32 v[{SEND+2*p}:{SEND+2*p+1}], v[{SEND+2*p}:{SEND+2*p+1}], v[{KEEP+2*p}:{KEEP+2*p+1}]")
        emit(cvt((0, 1, 2, 3), SEND) + swaps(0) + swaps(1) + [store(0, s_y), store(1, s_y)])
        a("s_waitcnt vmcnt(0)")
        a("s_barrier")
        a(f"v_lshlrev_b32 v{vDUM}, 2, v1")
        self.flag(s_fy, vDUM, vTAG)
        self.stamp("conv_done")
        self.dump_stamps()
        a(f"s_lshl_b32 s{s_t2}, s{s_hh}, 2")
        a(f"s_add_u32 s{s_t2}, s{s_t2}, s{s_w}")
        a(f"s_cmp_lg_u32 s{s_t2}, 0")
        a("s_cbranch_scc1 L_end")
        a(f"v_mul_u32_u24 v{t0}, {FS}, v1")
        loads = []
        for q in range(4):
            a(f"s_mov_b32 s{80+q}, {WS_FKV + 64*FS*q}")
            loads.append(f"buffer_load_dword v{96+q}, v{t0}, {srd(sWS)}, s{80+q} offen sc1")
        self.poll(loads, list(range(96, 100)), t1)
        a(f"s_mov_b32 s{s_t2}, {WS_EPOCH}")
        self.flag(s_t2, vDUM, vTAG)
        a("L_end:")
        a("s_endpgm")
        a("L_codeend:")
        self.helper_names = self.names

    def build(self):
        a = self.a
        ref = open("gated_mix__ssm_conv_h3__mixer_gmlp__prompt.s.ref").read().split("\n")
        for l in ref:
            if l.startswith(";") and "@launch" not in l: a.raw(l)
            elif not l.startswith(";"): break
        a.raw(header(["@launch grid=(256,1,1) block=(256,1,1) lds=163840"]))
        a.raw(kstart(NAME))
        self.prologue()
        self.gemm_wg()
        self.helper_wg()
        a.raw(kdesc(NAME, 512, 256))
        return a.text()

if __name__ == "__main__":
    import argparse
    ap = argparse.ArgumentParser()
    ap.add_argument("-o", default="gated_mix__ssm_conv_h3__mixer_gmlp__prompt.s")
    ap.add_argument("--stamps", action="store_true")
    ap.add_argument("--npre", type=int, default=16)
    ap.add_argument("--opt", action="append", default=[])
    args = ap.parse_args()
    g = Gen(stamps=args.stamps, npre=args.npre, opts={o.split("=")[0]: int(o.split("=")[1]) for o in args.opt})
    t = g.build()
    open(args.o, "w").write(t)
    print("lines", t.count("\n"), "pad states", g.a.npad, "max vm", g.a.maxvm, g.info)
```

```python
import sys, struct
from asmlib import *

NAME = "gated_mix__ssm_conv_h3__mixer_gmlp__prompt_kernel"

WS_EPOCH = 0x0
FS       = 128
WS_FKV   = 0x1000
WS_FY    = WS_FKV + 224 * FS
WS_FZ2   = 0x10000
WS_FP    = 0x18000
WS_G     = 0x20000
WS_TS    = 0x40000
WS_STATS = 0x80000
WS_KVT   = 0x100000
WS_YT    = 0x300000
WS_Z2N   = 0x500000
WS_P     = 0x900000
WS_X     = 0xD00000
WS_SIZE  = 0x1400000

ENTRY_OFF = 0x300
REGION = 40960
SPIN = 20000

def f2u(x): return struct.unpack("<I", struct.pack("<f", x))[0]

sQ, sK, sV, sSH, sWIN, sWSP, sWOUT, sWS, sOUT, sGW, sBSP, sH, sD = 8, 12, 16, 20, 24, 28, 32, 36, 40, 44, 48, 52, 56
s_i, s_j, s_th, s_dj, s_w, s_wb, s_tag = 60, 61, 62, 63, 64, 65, 66
s_t0, s_t1, s_t2, s_t3, s_cnt, s_so, s_so2 = 67, 68, 69, 70, 71, 72, 73
s_ts = 4
s_ca = 74
s_aw, s_ar, s_bw, s_br = 81, 85, 93, 97
s_jp, s_ff, s_xs, s_xr = sH, sH + 1, sH + 2, sK
vST = 31
s_sb = 3
def srd(b): return f"s[{b}:{b+3}]"

class Gen:
    def __init__(self, stamps=False, npre=16, opts=None):
        self.a = Asm()
        self.stamps = stamps
        self.nst = 0
        self.npre = npre
        self.o = opts or {}
        self.skip = set()
        self.waited = False
        self.pads = {}

    def stamp(self, name):
        if self.o.get("probe_" + name):
            self.a("s_memrealtime s[6:7]"); self.a("s_waitcnt lgkmcnt(0)")
        if not self.stamps or name in self.skip: return
        a = self.a
        a(f"s_memrealtime s[{s_ts}:{s_ts+1}]")
        a("s_waitcnt lgkmcnt(0)")
        a(f"v_writelane_b32 v{vST}, s{s_ts}, {self.nst}")
        self.names.append(name)
        self.nst += 1
        assert self.nst <= 32

    def dump_stamps(self):
        if not self.stamps: return
        a = self.a
        a(f"s_lshl_b32 s{s_t0}, s2, 2")
        a(f"s_add_u32 s{s_t0}, s{s_t0}, s{s_w}")
        a(f"s_lshl_b32 s{s_t0}, s{s_t0}, 7")
        a(f"s_add_u32 s{s_t0}, s{s_t0}, {WS_TS}")
        a("v_lshlrev_b32 v30, 2, v1")
        a("s_mov_b32 exec_hi, 0")
        a(f"buffer_store_dword v{vST}, v30, {srd(sWS)}, s{s_t0} offen")
        a("s_mov_b64 exec, -1")

    def poll(self, loads, tagregs, vt, wave=None, issued=False, vtag=None, nap=0):
        a = self.a
        L = a.label("L_poll"); Ld = a.label("L_polld")
        if wave is not None:
            vm_before = list(a.vm)
            a(f"s_cmp_lg_u32 s{s_w}, {wave}")
            a(f"s_cbranch_scc1 {Ld}")
        a(f"s_mov_b32 s{s_cnt}, {SPIN}")
        a.fence()
        if issued:
            Lc = a.label("L_pollc")
            a.wait(vm=issued)
            if wave is None: vm_before = list(a.vm)
            a(f"s_branch {Lc}")
        a(f"{L}:")
        for l in loads: a(l)
        a("s_waitcnt vmcnt(0)")
        if issued: a(f"{Lc}:")
        if len(tagregs) == 1:
            a(f"v_cmp_ne_u32 vcc, s{s_tag}, v{tagregs[0]}")
        else:
            if vtag is None:
                a(f"v_xor_b32 v{vt}, s{s_tag}, v{tagregs[0]}")
                for r in tagregs[1:]:
                    a(f"v_bitop3_b32 v{vt}, v{vt}, v{r}, s{s_tag} bitop3:0xf6")
            else:
                for r in tagregs: a(f"v_xor_b32 v{r}, v{vtag}, v{r}")
                a(f"v_or_b32 v{vt}, v{tagregs[0]}, v{tagregs[1]}")
                for z in range(2, len(tagregs), 2): a(f"v_or3_b32 v{vt}, v{vt}, v{tagregs[z]}, v{tagregs[z+1]}")
                a(f"v_and_b32 v{vt}, 0xff, v{vt}")
            a(f"v_cmp_ne_u32 vcc, 0, v{vt}")
        a("s_cmp_eq_u64 vcc, 0")
        a(f"s_cbranch_scc1 {Ld}")
        if nap: a(f"s_sleep {nap}")
        a(f"s_sub_u32 s{s_cnt}, s{s_cnt}, 1")
        a(f"s_cmp_lg_u32 s{s_cnt}, 0")
        a(f"s_cbranch_scc1 {L}")
        a(f"{Ld}:")
        if wave is not None or issued: a.vm = vm_before

    def flag(self, soff_reg, vz, vtag):
        a = self.a
        a("s_mov_b32 exec_hi, 0")
        a(f"buffer_store_dword v{vtag}, v{vz}, {srd(sWS)}, s{soff_reg} offen sc1", tag="flag")
        a("s_mov_b32 exec_hi, -1")
    def only_wave(self, sreg, wave):
        return [f"s_cmp_eq_u32 s{s_w}, {wave}", f"s_cselect_b32 s{sreg}, s{sreg}, {WS_SIZE}"]

    def hop(self, pages, name):
        if not self.o.get("hop", 1): return
        a = self.a
        a("s_mov_b64 exec, 0")
        for wv, k in enumerate(pages):
            self.pads[k] = name
            a(f"s_cmp_eq_u32 s{s_w}, {wv}")
            a(f"s_cbranch_scc1 L_pad{k}")
        a(f"{name}:")
        a("s_mov_b64 exec, -1")

    def mk_srd(self, b, nbytes):
        a = self.a
        a(f"s_mov_b32 s{b+2}, {nbytes}")
        a(f"s_mov_b32 s{b+3}, 0x20000")

    def gelu(self, base, n, vt, vC0, vC1, vONE):
        o = []
        for b in range(base, base + n, 8):
            for p in range(4): o.append(f"v_pk_mul_f32 v[{vt+2*p}:{vt+2*p+1}], v[{b+2*p}:{b+2*p+1}], v[{b+2*p}:{b+2*p+1}]")
            for p in range(4): o.append(f"v_pk_fma_f32 v[{vt+2*p}:{vt+2*p+1}], v[{vt+2*p}:{vt+2*p+1}], v[{vC1}:{vC1+1}], v[{vC0}:{vC0+1}]")
            for p in range(4): o.append(f"v_pk_mul_f32 v[{vt+2*p}:{vt+2*p+1}], v[{vt+2*p}:{vt+2*p+1}], v[{b+2*p}:{b+2*p+1}]")
            for p in range(8): o.append(f"v_exp_f32 v{vt+p}, v{vt+p}")
            for p in range(4): o.append(f"v_pk_add_f32 v[{vt+2*p}:{vt+2*p+1}], v[{vt+2*p}:{vt+2*p+1}], v[{vONE}:{vONE+1}]")
            for p in range(8): o.append(f"v_rcp_f32 v{vt+p}, v{vt+p}")
            for p in range(4): o.append(f"v_pk_mul_f32 v[{b+2*p}:{b+2*p+1}], v[{b+2*p}:{b+2*p+1}], v[{vt+2*p}:{vt+2*p+1}]")
        return o

    def put(self, it):
        if callable(it): it()
        elif isinstance(it, tuple): self.a(it[0], tag=it[1])
        else: self.a(it)
    def emit(self, lst):
        for it in lst: self.put(it)
    def weave(self, fg, bg, every):
        acc = 0.0
        for it in fg:
            self.put(it)
            acc += 1.0 / every
            while acc >= 1.0 and bg:
                self.put(bg.pop(0)); acc -= 1.0
    def wvm(self, tags): return lambda: self.a.wait(vm=tags)
    def wlg(self, tags): return lambda: self.a.wait(lg=tags)

    def prologue(self):
        a = self.a
        a("s_cmp_ge_u32 s2, 256")
        a("s_cbranch_scc1 L_end")
        for b, off in ((sK, 8), (sV, 16), (sSH, 24), (sQ, 0), (sWIN, 56), (sWS, 112), (sWSP, 64), (sBSP, 72), (sWOUT, 80), (sGW, 88), (sOUT, 96), (sH, 32), (sD, 40)):
            a(f"s_load_dwordx2 s[{b}:{b+1}], s[0:1], {off}")
        if self.stamps:
            a(f"s_memrealtime s[{s_ts}:{s_ts+1}]")
        if self.o.get("padto"):
            a("s_memrealtime s[6:7]")
        a("v_lshrrev_b32 v2, 6, v0")
        a("v_and_b32 v1, 63, v0")
        if self.o.get("cpf", 2) == 2:
            a("s_getpc_b64 s[100:101]")
            a("L_pc:")
            a("s_lshr_b32 s3, s2, 3")
            a("v_lshl_add_u32 v3, s3, 2, v2")
            a("v_lshl_add_u32 v3, v1, 7, v3")
            a("v_lshlrev_b32 v3, 7, v3")
            a.raw(f"    s_sub_u32 s100, s100, L_pc-{NAME}")
            a("s_subb_u32 s101, s101, 0")
            a.raw(f"    v_min_u32 v3, L_codeend-{NAME}-4, v3")
            a("s_mov_b64 exec, 7")
            a("global_load_dword v255, v3, s[100:101]")
            a("s_mov_b64 exec, -1")
        a(f"v_readfirstlane_b32 s{s_w}, v2")
        for b, n in ((sK, 1835008), (sV, 1835008), (sSH, 3584), (sQ, 1835008), (sWIN, 1605632), (sWS, WS_SIZE), (sWSP, 8388608),
                     (sBSP, 4096), (sWOUT, 802816), (sGW, 896), (sOUT, 1835008), (sH, 1835008), (sD, 896)):
            self.mk_srd(b, n)
        a(f"s_lshr_b32 s{s_t0}, s2, 3")
        a(f"s_and_b32 s{s_t1}, s2, 7")
        a(f"s_cmp_ge_u32 s{s_t0}, 28")
        a("s_cbranch_scc1 L_helper")

    def get_tag(self, vt, vtag):
        a = self.a
        a(f"v_readfirstlane_b32 s{s_tag}, v{vt}")
        a(f"s_mul_i32 s{s_tag}, s{s_tag}, 0x9E3779B1")
        a(f"s_add_u32 s{s_tag}, s{s_tag}, 0x7F4A7C15")
        a(f"v_mov_b32 v{vtag}, s{s_tag}")

    def gemm_wg(self):
        a = self.a; o = self.o
        emit, weave, wvm, wlg = self.emit, self.weave, self.wvm, self.wlg
        self.names = []; self.nst = 0
        vZ, vTAG = 2, 3
        vXD = 4
        vWD = 8
        vTR = 10
        vXR = 14
        vLIN, vL8 = 16, 17
        vBS = 18
        vC0, vC1, vONE = 20, 22, 24
        vAD = 26
        vGW = 30
        vWD1 = 240
        vT = 248
        ACC2, ACC1, WF, XF = 32, 64, 96, 144
        acc = lambda base, ft, nt: base + (ft * 2 + nt) * 4
        pr = lambda b: f"v[{b}:{b+1}]"
        WOFF, GWOFF = 0, 14336
        ASLOT = [20480, 24576, 28672, 32768]
        XS5 = [ASLOT[3], 16384, ASLOT[0], ASLOT[1], ASLOT[2]]
        XSLOT = lambda c: XS5[c % 5]
        KVD, QOFF, GATE = 36864, 38912, 15360
        NB = 5
        BSLOT = lambda st: (st % NB) * 4096
        t0, t1, t2, t3 = vT + 3, vT + 4, vT + 5, vT + 6

        a(f"s_mul_i32 s{s_t2}, s{s_t0}, 37")
        a(f"s_lshr_b32 s{s_t2}, s{s_t2}, 8")
        a(f"s_mul_i32 s{s_t3}, s{s_t2}, 7")
        a(f"s_sub_u32 s{s_dj}, s{s_t0}, s{s_t3}")
        a(f"s_and_b32 s{s_th}, s{s_t1}, 1")
        a(f"s_lshr_b32 s{s_t1}, s{s_t1}, 1")
        a(f"s_lshl_b32 s{s_t1}, s{s_t1}, 2")
        a(f"s_add_u32 s{s_i}, s{s_t1}, s{s_t2}")
        a(f"s_mul_i32 s{s_j}, s{s_th}, 7")
        a(f"s_add_u32 s{s_j}, s{s_j}, s{s_dj}")
        a(f"s_mul_i32 s{s_wb}, s{s_w}, {REGION}")
        a(f"v_mov_b32 v{vZ}, 0")
        a(f"v_lshlrev_b32 v{vLIN}, 4, v1")
        a(f"s_lshl_b32 s{s_t2}, s{s_t2}, 1")
        a(f"s_add_u32 s{s_t2}, s{s_t2}, s{s_dj}")
        if o.get("norot1"): a(f"s_mov_b32 s{s_t2}, 0")
        a(f"s_lshl_b32 s{s_t2}, s{s_t2}, 7")
        a(f"s_sub_u32 s{s_t3}, s{s_t2}, 896")
        a(f"s_cmp_ge_u32 s{s_t2}, 896")
        a(f"s_cselect_b32 s{s_ca}, s{s_t3}, s{s_t2}")
        def next_ca(c):
            return [f"s_add_u32 s{s_ca+c}, s{s_ca+c-1}, 128", f"s_cmp_eq_u32 s{s_ca+c}, 896", f"s_cselect_b32 s{s_ca+c}, 0, s{s_ca+c}"]

        KR, VR, SKR, DR = 32, 44, 52, 43
        KU, VU, SU, KVR, KVP = 56, 78, 94, 102, 120
        vKO, vKO2, vSO = vT, vT + 1, vT + 2
        def kv_issue(pre_kv):
            a(f"s_lshl_b32 s{s_t0}, s{s_i}, 1")
            a(f"s_add_u32 s{s_t0}, s{s_t0}, s{s_th}")
            a(f"s_lshl_b32 s{s_t1}, s{s_t0}, 2")
            a(f"s_add_u32 s{s_t1}, s{s_t1}, s{s_w}")
            a(f"s_mul_i32 s{s_t2}, s{s_t1}, {16*896}")
            a(f"s_lshl_b32 s{s_cnt}, s{s_dj}, 7")
            a(f"s_add_u32 s{s_t2}, s{s_t2}, s{s_cnt}")
            a(f"v_lshrrev_b32 v{vKO}, 5, v1")
            a(f"v_and_b32 v{vSO}, 31, v1")
            a(f"v_mul_u32_u24 v{vKO}, {8*896}, v{vKO}")
            a(f"v_lshl_add_u32 v{vKO}, v{vSO}, 2, v{vKO}")
            a(f"v_add_u32 v{vKO}, s{s_t2}, v{vKO}")
            a(f"v_subrev_u32 v{vKO2}, {3*896}, v{vKO}")
            a(f"v_lshlrev_b32 v{vT-1}, 2, v{vSO}")
            a(f"s_lshl_b32 s{s_t3}, s{s_dj}, 9")
            a(f"v_lshl_add_u32 v{vSO}, v{vSO}, 4, s{s_t3}")
            a(f"s_mov_b32 s{s_so}, {4*896}")
            self.first_wait()
            emit(pre_kv)
            for r in range(3): a(f"buffer_load_dword v{KR+r}, v{vKO2}, {srd(sK)}, 0 offen offset:{896*r}", tag="kv")
            for r in range(8):
                so = "0" if r < 4 else f"s{s_so}"
                a(f"buffer_load_dword v{KR+3+r}, v{vKO}, {srd(sK)}, {so} offen offset:{896*(r&3)}", tag="kv")
                a(f"buffer_load_dword v{VR+r}, v{vKO}, {srd(sV)}, {so} offen offset:{896*(r&3)}", tag="kv")
            a(f"buffer_load_dwordx4 v[{SKR}:{SKR+3}], v{vSO}, {srd(sSH)}, 0 offen", tag="kv")
            a(f"buffer_load_dword v{DR}, v{vT-1}, {srd(sD)}, s{s_cnt} offen", tag="kv")
            a(f"buffer_load_dword v{vTAG}, v{vZ}, {srd(sWS)}, 0 offen sc1", tag="kv")

        def dma_addr():
            a(f"v_lshrrev_b32 v{t0}, 5, v1")
            a(f"v_bfe_u32 v{t1}, v1, 4, 1")
            a(f"v_lshl_or_b32 v{t0}, v{t1}, 1, v{t0}")
            a(f"v_and_b32 v{t1}, 7, v1")
            a(f"v_xor_b32 v{t1}, v{t1}, v{t0}")
            a(f"v_lshlrev_b32 v{t1}, 4, v{t1}")
            a(f"v_lshrrev_b32 v{t2}, 3, v1")
            a(f"s_lshl_b32 s{s_sb}, s{s_i}, 2")
            a(f"s_add_u32 s{s_sb}, s{s_sb}, s{s_w}")
            a(f"s_mul_i32 s{s_t2}, s{s_sb}, {32*896}")
            a(f"v_mul_u32_u24 v{vXD}, 896, v{t2}")
            a(f"v_add3_u32 v{vXD}, v{vXD}, v{t1}, s{s_t2}")
            a(f"v_xor_b32 v{vXD+1}, 64, v{vXD}")
            a(f"v_add_u32 v{vXD+1}, {8*896-1024}, v{vXD+1}")
            a(f"v_add_u32 v{vXD+2}, {16*896-2048}, v{vXD}")
            a(f"v_add_u32 v{vXD+3}, {16*896-2048}, v{vXD+1}")
            a(f"v_bfe_u32 v{t3}, v1, 4, 1")
            a(f"s_and_b32 s{s_t2}, s{s_w}, 2")
            a(f"v_or_b32 v{t3}, s{s_t2}, v{t3}")
            a(f"v_lshlrev_b32 v{t3}, 1, v{t3}")
            a(f"v_xor_b32 v{t3}, v{t3}, v1")
            a(f"v_and_b32 v{t3}, 7, v{t3}")
            a(f"v_lshlrev_b32 v{t3}, 4, v{t3}")
            a(f"s_mul_i32 s{s_t2}, s{s_w}, {8*3584}")
            a(f"s_lshl_b32 s{s_t3}, s{s_j}, 7")
            a(f"s_add_u32 s{s_t2}, s{s_t2}, s{s_t3}")
            a(f"s_add_u32 s{s_t2}, s{s_t2}, 1792")
            a(f"v_mul_u32_u24 v{vWD}, 3584, v{t2}")
            a(f"v_add3_u32 v{vWD}, v{vWD}, v{t3}, s{s_t2}")
            a(f"v_add_u32 v{vWD+1}, {32*3584-1024}, v{vWD}")

        def dma_x(c):
            out = [f"s_add_u32 m0, s{s_wb}, {XSLOT(c)}"]
            for q in range(4):
                out.append((f"buffer_load_dwordx4 v{vXD+q}, {srd(sQ)}, s{s_ca+c} offen offset:{q*1024} lds", f"x{c}"))
            return out
        def dma_w(c, half):
            out = [f"s_add_u32 m0, s{s_wb}, {WOFF + c*2048}", f"s_mul_i32 s{s_so2}, s{s_ca+c}, 1792"]
            for q in range(2):
                out.append((f"buffer_load_dwordx4 v{(vWD if half else vWD1)+q}, {srd(sWIN)}, s{s_so2} offen offset:{q*1024} lds", f"w{half}_{c}"))
            return out
        NIF = o.get("nif", 3)
        dma_addr()
        emit(next_ca(1))
        first = {0: dma_w(0, 1) + dma_w(1, 1) + dma_x(0), 1: dma_x(0) + dma_w(0, 1) + dma_w(1, 1)}[o.get("ford", 0)]
        kpre = o.get("kpre", 0)
        kv_issue(first[:kpre])
        if o.get("fine"): self.stamp("kv_iss")
        if o.get("kbar", 1): a("s_barrier")
        kpost = o.get("kpost", 8)
        emit(first[kpre:kpost])
        for c in range(2, 7): emit(next_ca(c))
        dma_xw = lambda c: dma_x(c) + (dma_w(c, 1) if c > 1 else [])

        a(f"s_lshl_b32 s{s_t2}, s{s_sb}, 17")
        a(f"v_lshlrev_b32 v{vAD}, 12, v{t2}")
        a(f"v_add3_u32 v{vAD}, v{vAD}, v{t1}, s{s_t2}")
        a(f"v_xor_b32 v{vAD+1}, 64, v{vAD}")
        a(f"v_add_u32 v{vAD+1}, {8*4096-1024}, v{vAD+1}")
        a(f"v_add_u32 v{vAD+2}, {16*4096-2048}, v{vAD}")
        a(f"v_add_u32 v{vAD+3}, {16*4096-2048}, v{vAD+1}")
        a(f"v_bfe_u32 v{t1}, v1, 1, 1")
        a(f"v_bfe_u32 v{t2}, v1, 2, 1")
        a(f"v_lshl_or_b32 v{t1}, v{t1}, 1, v{t2}")
        a(f"v_bfe_u32 v{t2}, v1, 3, 1")
        a(f"v_lshl_or_b32 v{t1}, v{t2}, 2, v{t1}")
        a(f"v_xor_b32 v{t1}, v{t1}, v{t0}")
        a(f"v_and_b32 v{t2}, 15, v1")
        a(f"v_lshlrev_b32 v{t2}, 7, v{t2}")
        a(f"v_lshl_add_u32 v{t1}, v{t1}, 4, v{t2}")
        a(f"v_add_u32 v{vXR}, s{s_wb}, v{t1}")
        a(f"v_xor_b32 v{vXR+1}, 64, v{vXR}")
        a(f"v_mul_u32_u24 v{t0}, {REGION}, v{t0}")
        a(f"v_bfe_u32 v{t1}, v1, 2, 2")
        a(f"v_lshl_add_u32 v{t0}, v{t1}, 7, v{t0}")
        a(f"v_and_b32 v{t1}, 3, v1")
        a(f"v_lshl_add_u32 v{t0}, v{t1}, 3, v{t0}")
        a(f"v_bfe_u32 v{t1}, v1, 3, 2")
        a(f"v_lshl_add_u32 v{vTR}, v{t1}, 5, v{t0}")
        for ft in range(1, 4): a(f"v_xor_b32 v{vTR+ft}, {32*ft}, v{vTR}")
        c0 = -2.0 * 0.7978845608028654 * 1.4426950408889634
        for r, val in ((vC0, c0), (vC1, c0 * 0.044715), (vONE, 1.0)):
            a(f"v_mov_b32 v{r}, {f2u(val):#x}"); a(f"v_mov_b32 v{r+1}, {f2u(val):#x}")
        a(f"v_lshlrev_b32 v{vL8}, 2, v1")
        for q in range(2): a(f"v_subrev_u32 v{vWD1+q}, 1792, v{vWD+q}")
        a(f"s_and_b32 s{s_t2}, s{s_i}, {0 if o.get('nobrot', 1) else 3}")
        a(f"s_add_u32 s{s_t2}, s{s_t2}, s{s_dj}")
        a(f"s_lshr_b32 s{s_t3}, s{s_dj}, 2")
        a(f"s_lshl_b32 s{s_cnt}, s{s_th}, 1")
        a(f"s_add_u32 s{s_t3}, s{s_t3}, s{s_cnt}")
        a(f"s_xor_b32 s{s_jp}, s{s_th}, 1")
        a(f"s_mul_i32 s{s_jp}, s{s_jp}, 7")
        a(f"s_add_u32 s{s_jp}, s{s_jp}, s{s_dj}")
        for n in range(4):
            if n in (0, 2):
                a(f"s_lshl_b32 s{s_so2}, s{s_jp if n == 0 else s_j}, 6")
                a(f"s_add_u32 s{s_so2}, s{s_so2}, s{s_w}")
                a(f"s_lshl_b32 s{s_so2}, s{s_so2}, 12")
                a(f"s_add_u32 s{s_so2}, s{s_so2}, {WS_Z2N}")
            a(f"s_xor_b32 s{s_cnt}, s{s_t3}, {n & 1}")
            if n < 2: a(f"s_lshl_b32 s{s_aw+n}, s{s_cnt}, 10")
            a(f"s_lshl_b32 s{s_cnt}, s{s_cnt}, 16")
            a(f"s_add_u32 s{s_bw+n}, s{s_cnt}, s{s_so2}")
            a(f"s_add_u32 s{s_cnt}, s{s_t2}, {n}")
            a(f"s_and_b32 s{s_cnt}, s{s_cnt}, 3")
            a(f"s_lshl_b32 s{s_ar+2*n}, s{s_cnt}, 8")
            a(f"s_add_u32 s{s_ar+2*n+1}, s{s_ar+2*n}, 128")
            a(f"s_lshl_b32 s{s_br+n}, s{s_cnt}, 14")
        for sr, sj in ((s_xs, s_jp), (s_xr, s_j)):
            a(f"s_mul_i32 s{sr}, s{s_i}, 14")
            a(f"s_add_u32 s{sr}, s{sr}, s{sj}")
            a(f"s_lshl_b32 s{sr}, s{sr}, 2")
            a(f"s_add_u32 s{sr}, s{sr}, s{s_w}")
            a(f"s_lshl_b32 s{sr}, s{sr}, 13")
            a(f"s_add_u32 s{sr}, s{sr}, {WS_X}")
            a(f"s_add_u32 s{sr+1}, s{sr}, 4096")
        a(f"s_movk_i32 s{s_ff}, 0xff")

        def unpack(dst, src):
            a(f"v_lshlrev_b32 v{dst}, 16, v{src}"); a(f"v_and_b32 v{dst+1}, 0xffff0000, v{src}")
        if o.get("hopa", 0): self.hop([1, 2, 3, 4], "L_hop1")
        self.stamp("issued")
        a.wait(vm="kv")
        self.stamp("kv_loaded")
        emit(first[max(kpre, kpost):])
        self.get_tag(vTAG, vTAG)
        vTB = vGW
        a(f"v_lshlrev_b32 v{vTB}, 3, v1")
        a(f"v_bfe_u32 v{vTB}, v{vTAG}, v{vTB}, 8")
        real_a = a; fg = []
        class Rec:
            def __call__(self_, l, tag=None): fg.append((l, tag) if tag else l)
        a = Rec()
        for jj in range(4):
            for ch in range(2):
                src = SKR + 2 * ch + (jj >> 1)
                if jj & 1: a(f"v_and_b32 v{SU+2*jj+ch}, 0xffff0000, v{src}")
                else: a(f"v_lshlrev_b32 v{SU+2*jj+ch}, 16, v{src}")
        for r in range(11): unpack(KU + 2 * r, KR + r)
        for r in range(8): unpack(VU + 2 * r, VR + r)
        for jj in range(4):
            for r in range(8):
                kk = KU + 2 * (r + 3 - jj)
                if jj == 0: a(f"v_pk_mul_f32 {pr(KVR+2*r)}, {pr(kk)}, {pr(SU)}")
                else: a(f"v_pk_fma_f32 {pr(KVR+2*r)}, {pr(kk)}, {pr(SU+2*jj)}, {pr(KVR+2*r)}")
        for r in range(8): a(f"v_pk_mul_f32 {pr(KVR+2*r)}, {pr(KVR+2*r)}, {pr(VU+2*r)}")
        for ch in range(2):
            for d in range(4):
                a(f"v_cvt_pk_bf16_f32 v{KVP+4*ch+d}, v{KVR+2*(7-2*d)+ch}, v{KVR+2*(6-2*d)+ch}")
        a(f"s_mul_i32 s{s_t2}, s{s_t1}, {2*7168}")
        a(f"s_lshl_b32 s{s_t3}, s{s_dj}, 10")
        a(f"s_add_u32 s{s_t2}, s{s_t2}, s{s_t3}")
        a(f"s_add_u32 s{s_t2}, s{s_t2}, {WS_KVT}")
        a(f"v_lshrrev_b32 v{t0}, 5, v1")
        a(f"v_mul_u32_u24 v{t1}, {7168-512}, v{t0}")
        a(f"v_add_u32 v{t1}, v{t1}, v{vLIN}")
        for ch in range(2):
            a(f"buffer_store_dwordx4 v[{KVP+4*ch}:{KVP+4*ch+3}], v{t1}, {srd(sWS)}, s{s_t2} offen offset:{512*ch} sc1", tag="kvst")
        a(f"s_lshl_b32 s{s_t3}, s{s_dj}, 5")
        a(f"s_add_u32 s{s_t1}, s{s_t0}, s{s_t3}")
        a(f"s_mul_i32 s{s_t1}, s{s_t1}, {FS}")
        a(f"s_add_u32 s{s_so}, s{s_t1}, {WS_FKV}")
        fg += self.only_wave(s_so, 0)
        unpack(SU, DR)
        for r in range(8): a(f"v_pk_mul_f32 {pr(KVR+2*r)}, {pr(KVR+2*r)}, {pr(SU)}")
        a(f"v_bfe_u32 v{t1}, v1, 3, 2")
        a(f"v_mul_u32_u24 v{t1}, {REGION}, v{t1}")
        a(f"v_lshl_add_u32 v{t1}, v{t0}, 4, v{t1}")
        a(f"v_and_b32 v{t0}, 7, v1")
        a(f"v_lshl_add_u32 v{t1}, v{t0}, 8, v{t1}")
        a(f"v_and_b32 v{t0}, 3, v1")
        a(f"v_xor_b32 v{t0}, s{s_w}, v{t0}")
        a(f"v_lshl_add_u32 v{t1}, v{t0}, 5, v{t1}")
        for ch in range(2):
            for d in range(4):
                a(f"v_cvt_pk_bf16_f32 v{KU+4*ch+d}, v{KVR+4*d+ch}, v{KVR+4*d+2+ch}")
            a(f"ds_write_b128 v{t1}, v[{KU+4*ch}:{KU+4*ch+3}] offset:{KVD + 128*ch}", tag="kvd")
        a = real_a
        fg2 = []
        for it in fg:
            if isinstance(it, str) and it.startswith("s_cselect"): fg2[-1] = fg2[-1] + "\n" + it
            else: fg2.append(it)
        cutp = max(z for z, it in enumerate(fg2) if isinstance(it, tuple) and it[1] == "kvst") + 1
        n1 = o.get("n1", 2)
        bg = []
        for c in range(1, n1): bg += dma_xw(c)
        weave(fg2[:cutp], bg, o.get("wv0", 8)); emit(bg)
        self.stamp("kv_st")
        bg = []
        for c in range(n1, NIF): bg += dma_xw(c)
        weave(fg2[cutp:], bg, o.get("wv0b", 3)); emit(bg)
        if not o.get("hopa", 0): self.hop([1, 2, 3, 4], "L_hop1")
        self.hop([5, 6], "L_hop2")
        self.stamp("kv_done")

        def read_x(c):
            out = []
            for uu in range(2):
                for nt in range(2):
                    r = XF + ((2 * c + uu) * 2 + nt) * 4
                    out.append((f"ds_read_b128 a[{r}:{r+3}], v{vXR+uu} offset:{XSLOT(c) + nt*2048}", f"xr{2*c+uu}"))
            return out
        def tr_w(u, buf, h=2):
            out = []
            for ft in range(4):
                for hh in range(2):
                    r = WF + buf * 16 + ft * 4 + hh * 2
                    out.append((f"ds_read_b64_tr_b16 v[{r}:{r+1}], v{vTR+ft} offset:{WOFF + u*1024 + hh*512}", f"wr{h}_{u}_{ft}"))
            return out
        def mfma1(base, u, buf, gaps, waits=(0, 2)):
            for ft in range(4):
                if ft in waits:
                    upto = min([x for x in waits if x > ft] + [4])
                    a.wait(lg=[f"wr{2 if base == ACC2 else 1}_{u}_{x}" for x in range(upto)] + [f"xr{u}"])
                for nt in range(2):
                    d = acc(base, ft, nt); wr = WF + buf * 16 + ft * 4; xr = XF + (u * 2 + nt) * 4
                    cin = "0" if u == 0 else f"v[{d}:{d+3}]"
                    a(f"v_mfma_f32_16x16x32_bf16 v[{d}:{d+3}], v[{wr}:{wr+3}], a[{xr}:{xr+3}], {cin}")
                    emit(gaps[2 * ft + nt])
        isvm = lambda it: isinstance(it, tuple) and it[0].startswith("buffer_")
        def spread(items, ngaps):
            gaps = [[] for _ in range(ngaps)]
            nv = sum(map(isvm, items)); k = 0; pend = []; last = -1
            for it in items:
                if isvm(it):
                    m = max(((k + 1) * ngaps) // nv - 1, 0); k += 1
                    for z, x in enumerate(pend): gaps[min(max(last + 1, m - len(pend) + z), m)].append(x)
                    pend = []; gaps[m].append(it); last = m
                else: pend.append(it)
            for z, x in enumerate(pend): gaps[min(last + 1 + z, ngaps - 1)].append(x)
            return gaps
        def gw_load():
            return [f"v_add_u32 v{t0}, s{s_ca}, v{vLIN}", f"v_subrev_u32 v{t1}, 896, v{t0}", f"v_min_u32 v{t0}, v{t0}, v{t1}",
                    f"s_add_u32 m0, s{s_wb}, {GWOFF}", (f"buffer_load_dwordx4 v{t0}, {srd(sGW)}, 0 offen lds", "gw")]
        vSM, vB2, vOD, vSW, vq, vGR = 208, 212, 214, 218, 219, 221
        s_zf = sV
        def early_addr():
            emit([f"v_and_b32 v{t2}, 15, v1", f"s_lshl_b32 s{s_t2}, s{s_sb}, 6", f"v_lshl_add_u32 v{vSM}, v{t2}, 1, s{s_t2}"])
            emit([f"v_lshl_add_u32 v{vGR}, v{t2}, 2, s{s_wb}", f"s_and_b32 s{s_t2}, s{s_w}, 1", f"s_lshl_b32 s{s_t3}, s{s_th}, 1", f"s_add_u32 s{s_t2}, s{s_t2}, s{s_t3}",
                  f"s_mul_i32 s{s_t2}, s{s_t2}, {REGION}", f"v_lshl_add_u32 v{vGR+1}, v{t2}, 2, s{s_t2}"])
            emit([f"v_lshrrev_b32 v{t2}, 3, v1", f"v_xor_b32 v{t1}, v{t2}, v1", f"v_and_b32 v{t1}, 7, v{t1}", f"v_mul_u32_u24 v{t3}, 896, v{t2}",
                  f"v_lshlrev_b32 v{t1}, 4, v{t1}",
                  f"s_lshl_b32 s{s_t2}, s{s_t0}, 2", f"s_add_u32 s{s_t2}, s{s_t2}, s{s_w}", f"s_mul_i32 s{s_t2}, s{s_t2}, {16*896}",
                  f"s_lshl_b32 s{s_t3}, s{s_dj}, 7", f"s_add_u32 s{s_t2}, s{s_t2}, s{s_t3}",
                  f"v_add3_u32 v{vSM+1}, v{t3}, v{t1}, s{s_t2}", f"v_add_u32 v{vSM+2}, {8*896-1024}, v{vSM+1}"])
            emit([f"v_lshrrev_b32 v{t0}, 4, v1", f"v_lshlrev_b32 v{t0}, 1, v{t0}", f"v_xor_b32 v{t0}, v{t0}, v1", f"v_and_b32 v{t0}, 7, v{t0}",
                  f"v_lshlrev_b32 v{vSW}, 4, v{t0}", f"s_mul_i32 s{s_t2}, s{s_w}, {8*896}",
                  f"s_add_u32 s{s_t2}, s{s_t2}, s{s_t3}", f"v_add3_u32 v{vOD}, v{t3}, v{vSW}, s{s_t2}"])
            for q in range(1, 4): a(f"v_add_u32 v{vOD+q}, {q*(32*896-1024)}, v{vOD}")
            emit([f"v_lshrrev_b32 v{t0}, 5, v1", f"v_and_b32 v{t1}, 3, v1", f"v_lshlrev_b32 v{t0}, 9, v{t0}", f"v_lshl_add_u32 v{t0}, v{t1}, 6, v{t0}",
                  f"v_bfe_u32 v{t1}, v1, 2, 2", f"v_lshl_add_u32 v{t0}, v{t1}, 4, v{t0}", f"v_bfe_u32 v{t1}, v1, 4, 1",
                  f"v_lshl_add_u32 v{vB2}, v{t1}, 3, v{t0}", f"v_add_u32 v{vB2+1}, {2*REGION}, v{vB2}"])
            emit([f"s_lshl_b32 s{s_zf}, s{s_dj}, 1", f"s_add_u32 s{s_zf}, s{s_zf}, s{s_th}", f"s_mul_i32 s{s_zf}, s{s_zf}, {8*FS}", f"s_add_u32 s{s_zf}, s{s_zf}, {WS_FZ2}",
                  f"v_bfe_u32 v{vq}, v1, 3, 1", f"v_mul_u32_u24 v{vq}, {7*16}, v{vq}", f"v_and_or_b32 v{vq}, v1, 7, v{vq}", f"v_mul_u32_u24 v{vq}, {FS}, v{vq}"])
            emit(self.only_wave(s_zf, 0))
        def small_loads():
            out = [(f"buffer_load_ushort v{vBS+nt}, v{vSM}, {srd(sBSP)}, 0 offen offset:{32*nt}", "sm") for nt in range(2)]
            out.append(f"s_add_u32 m0, s{s_wb}, {QOFF}")
            for q in range(2): out.append((f"buffer_load_dwordx4 v{vSM+1+q}, {srd(sQ)}, 0 offen offset:{1024*q} lds", "sm"))
            return out
        NA = 16
        def areg(c): return ("a", 16 * (c & 15))
        def dma_a(c):
            out = []
            if c >= 4: out.append(wlg(f"ar{c-4}"))
            out += [f"s_add_u32 m0, s{s_wb}, {ASLOT[c % 4]}", f"s_add_u32 s{s_so2}, s{s_aw + (c>>3)}, s{s_ar + (c&7)}"]
            for q in range(4):
                out.append((f"buffer_load_dwordx4 v{vAD+q}, {srd(sWSP)}, s{s_so2} offen offset:{q*1024} lds", f"a{c}"))
            return out
        def read_a(c):
            out = [wvm(f"a{c}")]
            k, b = areg(c)
            for uu in range(2):
                for nt in range(2):
                    r = b + (uu * 2 + nt) * 4
                    out.append((f"ds_read_b128 {k}[{r}:{r+3}], v{vXR+uu} offset:{ASLOT[c % 4] + nt*2048}", f"ar{c}"))
            return out

        w1_done = 0
        kvflag = o.get("kvflag", 0)
        nae = o.get("nae", 2)
        NZ1 = o.get("nz1", 0)
        pairs = []
        for c in range(7):
            if c >= 7 - NZ1: pairs.append((1, c - (7 - NZ1)))
            pairs.append((2, c))
        def pair_reads(p):
            h, c = pairs[p]; b = 2 * (p & 1)
            rx = read_x(c) if h == 2 else [None] * 4
            return [x for x in rx[:2] + tr_w(2 * c, b, h) + rx[2:] + tr_w(2 * c + 1, b + 1, h) if x is not None]
        seen = set()
        def need(p): return [f"x{pairs[p][1]}", f"w1_{pairs[p][1]}"] if pairs[p][0] == 2 else [f"w0_{pairs[p][1]}"]
        def enter(p):
            if all(t in seen for t in need(p)): return False
            tags = need(p)
            if p + 1 < len(pairs) and pairs[p + 1][0] == 1 and pairs[p + 1][1] > 0: tags = tags + need(p + 1)
            kf = pairs[p] == (2, kvflag)
            a.wait(vm=tags + (["kvst"] if kf else []), lg="kvd")
            a("s_barrier")
            seen.update(tags)
            if kf and not o.get("kvlate", 0): self.flag(s_so, vL8, vTAG)
            if o.get("fine"): self.stamp(f"c{pairs[p][0]}{pairs[p][1]}")
            return True
        GIN = o.get("gin", 1)
        GF, GACC, vGA, GRING = 176, 232, 243, 8
        emit(gw_load())
        emit([f"v_lshrrev_b32 v{t1}, 5, v1", f"v_bfe_u32 v{t2}, v1, 4, 1", f"v_lshl_or_b32 v{t1}, v{t2}, 1, v{t1}", f"v_lshl_add_u32 v{vGA}, v{t1}, 4, s{s_wb}"])
        def gate_rd(u): return (f"ds_read_b128 v[{GF+4*(u%GRING)}:{GF+4*(u%GRING)+3}], v{vGA} offset:{GWOFF + 64*u}", f"gr{u>>1}g")
        def gate_mm(u, nt):
            d = GACC + 4 * nt; xr = XF + (u * 2 + nt) * 4
            return f"v_mfma_f32_16x16x32_bf16 v[{d}:{d+3}], v[{GF+4*(u%GRING)}:{GF+4*(u%GRING)+3}], a[{xr}:{xr+3}], {'0' if u == 0 else f'v[{d}:{d+3}]'}"
        g_done = 0
        early_addr()
        enter(0)
        emit(pair_reads(0))
        nxt = NIF; na_done = 0; small = False
        w2_free = 0
        z2_done = 0
        for p, (h, c) in enumerate(pairs):
            if p + 1 < len(pairs) and enter(p + 1): w2_free = z2_done
            ex = []
            if NZ1 and w1_done < min(w2_free, o.get("w1in", NZ1 + 1)): ex += dma_w(w1_done, 0); w1_done += 1
            while not NZ1 and nxt == 7 and w1_done < min(w2_free, o.get("w1in", 0)): ex += dma_w(w1_done, 0); w1_done += 1
            if nxt < 7:
                for _ in range(2 if p < o.get("dbl", 0) else 1):
                    if nxt < 7:
                        assert nxt - z2_done < 5
                        ex += dma_xw(nxt); nxt += 1
                if nxt >= o.get("smallat", 99) and not small: ex += small_loads(); small = True
            elif na_done < nae and not (o.get("plan2", 0) and sum(map(isvm, ex)) > o.get("p2room", 2)):
                assert z2_done >= 3 + na_done
                if na_done == 0 and o.get("utch", 1):
                    assert o.get('nobrot', 1)
                    ex += [f"v_min_u32 v{t0}, 9, v1", f"s_mul_i32 s{s_t2}, s{s_dj}, 10", f"v_add_u32 v{t0}, s{s_t2}, v{t0}", f"v_min_u32 v{t0}, 63, v{t0}",
                           f"v_and_b32 v{t1}, 1, v{t0}", f"v_lshrrev_b32 v{t0}, 1, v{t0}", f"v_lshlrev_b32 v{t0}, 12, v{t0}", f"v_lshl_add_u32 v{t0}, v{t1}, 7, v{t0}",
                           f"s_lshl_b32 s{s_t2}, s{s_sb}, 6", f"s_add_u32 s{s_t2}, s{s_t2}, s{s_th}", f"s_lshl_b32 s{s_t2}, s{s_t2}, 11",
                           (f"buffer_load_dword v242, v{t0}, {srd(sWSP)}, s{s_t2} offen offset:{1024+768}", "ut")]
                ex += dma_a(na_done); na_done += 1
            gm = []
            if GIN and h == 2 and 1 <= p <= o.get("gupto", 5):
                if g_done == 0: a.wait(vm="gw")
                ug = [u for cc in range(g_done, min(c + 1, g_done + 2)) for u in (2 * cc, 2 * cc + 1)]
                emit([gate_rd(u) for u in ug]); g_done = min(c + 1, g_done + 2)
                gm = [gate_mm(u, nt) for u in ug for nt in range(2)]
            gp = spread(ex, 16 + len(gm))
            rd = [[] for _ in range(16)]
            if p + 1 < len(pairs):
                cr = pair_reads(p + 1)
                for z, it in enumerate(cr): rd[(z * 14) // len(cr)].append(it)
            for hf in range(2):
                mfma1(ACC2 if h == 2 else ACC1, 2 * c + hf, 2 * (p & 1) + hf, [rd[8 * hf + m] + gp[8 * hf + m] for m in range(8)], waits=(0,))
            if gm: a.wait(lg=f"gr{g_done-1}g")
            for z, it in enumerate(gm): a(it); emit(gp[16 + z])
            if h == 2: z2_done = c + 1
            if p + 1 < len(pairs) and pairs[p + 1] == (2, max(kvflag, 1)) and o.get("kvlate", 0): self.flag(s_so, vL8, vTAG)
        self.stamp("z2_gemm")
        w1in = w1_done
        if not NZ1 and not o.get("plan2", 0): w1in = 0
        if w1in: a.wait(vm=f"w0_{w1in-1}")
        a("s_barrier")
        bg0 = []
        while w1_done < 7: bg0 += dma_w(w1_done, 0); w1_done += 1

        na0 = o.get("na0", 2)
        bg = bg0
        na0 = max(na0, na_done)
        for c in range(na_done, na0): bg += dma_a(c)
        nw1 = o.get("w1g", 0)
        bg0 = bg[nw1:]; bg = bg[:nw1]
        weave(self.gelu(ACC2, 32, vT, vC0, vC1, vONE), bg, o.get("wvg", 6)); emit(bg)
        S = WF
        for nt in range(2):
            first = True
            for ft in range(4):
                for p in range(2):
                    z = pr(acc(ACC2, ft, nt) + 2 * p)
                    if first:
                        a(f"v_pk_mul_f32 {pr(S+4*nt+2)}, {z}, {z}")
                        z0 = z; first = False
                    else:
                        a(f"v_pk_add_f32 {pr(S+4*nt)}, {z}, {z0 if z0 else pr(S+4*nt)}"); z0 = None
                        a(f"v_pk_fma_f32 {pr(S+4*nt+2)}, {z}, {z}, {pr(S+4*nt+2)}")
        for q in range(4): a(f"v_add_f32 v{S+8+q}, v{S+2*q}, v{S+2*q+1}")
        A_, B_, C_, D_ = S + 8, S + 9, S + 10, S + 11
        a(f"s_mul_i32 s{s_t2}, s{s_sb}, {14*256}")
        a(f"v_permlane32_swap_b32 v{A_}, v{C_}")
        a(f"v_permlane32_swap_b32 v{B_}, v{D_}")
        a(f"v_add_f32 v{A_}, v{A_}, v{C_}")
        a(f"v_add_f32 v{B_}, v{B_}, v{D_}")
        a(f"s_add_u32 s{s_so}, s{s_t2}, {WS_STATS}")
        a(f"s_lshl_b32 s{s_t3}, s{s_j}, 8")
        a(f"v_permlane16_swap_b32 v{A_}, v{B_}")
        a(f"s_add_u32 s{s_t2}, s{s_so}, s{s_t3}")
        a(f"v_add_f32 v{S+12}, v{A_}, v{B_}")
        a(f"v_bfi_b32 v{S+12}, s{s_ff}, v{vTB}, v{S+12}")
        a(f"buffer_store_dword v{S+12}, v{vL8}, {srd(sWS)}, s{s_t2} offen sc1", tag="stst")
        self.stamp("stats_pub")
        if o.get("diag_st"):
            a("s_waitcnt vmcnt(1)"); self.stamp("older_done")
            a("s_waitcnt vmcnt(0)"); self.stamp("st_done")

        na1 = max(na0, o.get("na1", 2))
        u0 = 2 * NZ1
        u2, u3 = o.get("u2", 0), o.get("u3", 3)
        def z1_steps(ua, ub, bg, per=o.get("z1per", 8), vper=o.get("z1v", 3)):
            for u in range(ua, ub):
                ex = tr_w(u + 2, (u + 2) % 3, 1) if u < 12 else []
                take = []
                early = lambda x: isinstance(x, tuple) and x[1].startswith("ar") and u <= 2 * (int(x[1][2:]) - 9) + 1
                while bg and len(take) < per and sum(map(isvm, take)) + isvm(bg[0]) <= vper and not early(bg[0]): take.append(bg.pop(0))
                gp = spread(take, 8)
                mfma1(ACC1, u, u % 3, [ex[m:m+1] + gp[m] for m in range(8)], waits=(0,))
        def z1_start():
            a.wait(vm=["w0_6", "gw"])
            a("s_barrier")
            if w1in <= NZ1: emit(tr_w(u0, u0 % 3, 1) + tr_w(u0 + 1, (u0 + 1) % 3, 1))
        PS = 144
        bg = [f"s_lshl_b32 s{s_t1}, s{s_j}, 6", f"s_add_u32 s{s_t1}, s{s_t1}, s{s_sb}",
              f"s_lshl_b32 s{s_t3}, s{s_t1}, 12", f"s_add_u32 s{s_t3}, s{s_t3}, {WS_Z2N}", f"s_lshr_b32 s{s_t1}, s{s_t1}, 2",
              f"s_mul_i32 s{s_t1}, s{s_t1}, {FS}", f"s_add_u32 s{s_t1}, s{s_t1}, {WS_FZ2}", "\n".join(self.only_wave(s_t1, 1)),
              f"v_bfe_u32 v{t0}, v1, 2, 2", f"v_lshrrev_b32 v{t1}, 4, v1", f"v_lshlrev_b32 v{t0}, 8, v{t0}",
              f"v_lshl_add_u32 v{t0}, v{t1}, 6, v{t0}", f"v_and_b32 v{t1}, 3, v1", f"v_lshl_add_u32 v{t0}, v{t1}, 4, v{t0}"]
        loads = [f"buffer_load_dword v{PS+jj}, v{vL8}, {srd(sWS)}, s{s_so} offen offset:{jj*256} sc1" for jj in range(14)]
        gpos = o.get('gpos', 2 if o.get('plan2', 0) else 0)
        def gate(bg):
            a.wait(vm="gw")
            us = list(range(2 * g_done, 14)); assert len(us) <= GRING
            emit([gate_rd(u) for u in us])
            gp = spread(bg, max(2 * len(us), 1))
            for z, u in enumerate(us):
                a.wait(lg=f"gr{u>>1}g")
                for nt in range(2):
                    a(gate_mm(u, nt)); emit(gp[2 * z + nt])
        def gate_fin():
            for nt in range(2):
                d = GACC + 4 * nt
                emit([f"v_mul_f32 v{d}, {f2u(-1.4426950408889634):#x}, v{d}", f"v_exp_f32 v{d}, v{d}", f"v_add_f32 v{d}, 1.0, v{d}", f"v_rcp_f32 v{d}, v{d}"])
            for nt in range(2): a(f"ds_write_b32 v{vGR}, v{GACC+4*nt} offset:{GATE + 64*nt}", tag="gtw")
        def take(bg, nv):
            out = []
            while bg and sum(map(isvm, out)) + isvm(bg[0]) <= nv and len(out) < 3 * nv: out.append(bg.pop(0))
            return out
        npre = self.npre
        nd = na0; nr = 0; ast = []
        while nr < npre:
            while nd < min(nr + o.get('adepth', 3), NA): ast += dma_a(nd); nd += 1
            ast += read_a(nr); nr += 1
        k9 = min([z for z, x in enumerate(ast) if isinstance(x, tuple) and x[1] == "ar9"] + [len(ast) + 1]) - 1
        ast, ast2 = ast[:k9], ast[k9:]
        if not small:
            st_ = [z for z, x in enumerate(ast) if isinstance(x, str) and x.startswith("s_add_u32 m0")]
            k_ = st_[o.get("smpos", 2)]
            ast = ast[:k_] + small_loads() + ast[k_:]
        if not o.get("plan2", 0): emit(bg)
        if w1in > NZ1: emit(tr_w(u0, u0 % 3, 1) + tr_w(u0 + 1, (u0 + 1) % 3, 1))
        if o.get("plan2", 0):
            ua, ub = o.get("ua", 3), 2 * w1in - 2
            z1_steps(0, ua, bg); emit(bg)
            ul = o.get("ul", 5)
            z1_steps(ua, ul, bg0); emit(bg0)
            emit([(l, "st") for l in loads])
            z1_steps(ul, ub, ast if o.get("ast0", 1) else [])
            if gpos < 2: gate(take(ast, 7 - g_done) if o.get("ast0", 1) else [])
            u0 = ub
        elif o.get("ldfirst"):
            for _ in range(o.get("ldfirst") - 1): a("s_nop 15")
            emit([(l, "st") for l in loads]); gate(bg0 if o.get("w1gate", 1) else [])
            if not o.get("w1gate", 1): ast = bg0 + ast
        else:
            gate(bg0)
            emit([(l, "st") for l in loads])
        if gpos < 2: gate_fin()
        GV = 244
        emit(take(ast, o.get("apre", 0)))
        if u2:
            z1_start()
            z1_steps(u0, min(u0 + u2, 14), ast if o.get("ast0", 1) else [])
        self.stamp("z1_part")
        self.poll(loads, [PS + jj for jj in range(14)], vT, issued="st", vtag=vTB)
        self.stamp("stats_got")
        if self.stamps and o.get("diag_n"):
            a(f"s_sub_u32 s4, {SPIN}, s{s_cnt}"); a("s_mul_i32 s4, s4, 100"); a(f"v_readlane_b32 s5, v{vST}, 0"); a("s_add_u32 s4, s4, s5")
            a(f"v_writelane_b32 v{vST}, s4, {self.nst}"); self.names.append("retries"); self.nst += 1
        fg = []; a = Rec()
        vals = [PS + jj for jj in range(14)]
        while len(vals) > 1:
            nv = []
            for q in range(0, len(vals) - 1, 2):
                a(f"v_add_f32 v{vals[q]}, v{vals[q]}, v{vals[q+1]}"); nv.append(vals[q])
            if len(vals) & 1: nv.append(vals[-1])
            vals = nv
        T_, U_ = PS, PS + 1
        a(f"v_mul_f32 v{T_}, {f2u(1/896):#x}, v{T_}")
        a(f"v_mov_b32 v{U_}, v{T_}")
        a(f"v_permlane16_swap_b32 v{T_}, v{U_}")
        a(f"v_fma_f32 v{U_}, -v{T_}, v{T_}, v{U_}")
        a(f"v_max_f32 v{U_}, 0, v{U_}")
        a(f"v_add_f32 v{U_}, {f2u(1e-5):#x}, v{U_}")
        R0, M0_, R1, M1_ = PS + 4, PS + 6, PS + 8, PS + 10
        a(f"v_rsq_f32 v{R0}, v{U_}")
        a(f"v_mul_f32 v{M0_}, v{T_}, v{R0}")
        a(f"v_mov_b32 v{R1}, v{R0}")
        a(f"v_mov_b32 v{M1_}, v{M0_}")
        a(f"v_permlane32_swap_b32 v{R0}, v{R1}")
        a(f"v_permlane32_swap_b32 v{M0_}, v{M1_}")
        ZP = PS + 16
        for ft in range(4):
            for nt in range(2):
                z = acc(ACC2, ft, nt); R, M = (R0, M0_) if nt == 0 else (R1, M1_)
                for p in range(2):
                    a(f"v_pk_fma_f32 {pr(z+2*p)}, {pr(z+2*p)}, {pr(R)}, {pr(M)} op_sel_hi:[1,0,0] neg_lo:[0,0,1] neg_hi:[0,0,1]")
                for p in range(2):
                    a(f"v_cvt_pk_bf16_f32 v{ZP+4*ft+2*nt+p}, v{z+2*p}, v{z+2*p+1}")
            a(f"buffer_store_dwordx4 v[{ZP+4*ft}:{ZP+4*ft+3}], v{t0}, {srd(sWS)}, s{s_t3} offen offset:{1024*ft} sc1", tag="zst")
        a = real_a
        nb_ = take(ast, o.get("anorm", 0))
        weave(fg, nb_, max(1.0, 40 / max(len(nb_), 1))); emit(nb_)
        if u2 == 0:
            while any(isinstance(x, tuple) and x[1] == "w0_6" for x in ast): self.put(ast.pop(0))
            z1_start()
        if gpos < 2: ast += ast2; ast2 = []
        u2 = min(u0 + u2, 14); u3 = min(max(u2, u0 + u3), 14)
        z1_steps(u2, u3, ast)
        g1 = self.gelu(ACC1, 32, vT, vC0, vC1, vONE)
        cut = o.get("g1cut", 0) if u3 == 14 else 0
        if cut: ast += ast2; ast2 = []
        weave(g1[:cut], ast, o.get("wv1", 2))
        a.wait(vm="zst")
        a("s_barrier")
        self.flag(s_t1, vL8, vTAG)
        self.stamp("z2n_pub")
        zfl = f"buffer_load_dword v{vq+1}, v{vq}, {srd(sWS)}, s{s_zf} offen sc1"
        u4 = o.get("u4", 14)
        z1_steps(u3, max(u3, u4), ast)
        if u4 < 14: a(zfl, tag="zf")
        z1_steps(max(u3, u4), 14, ast)
        if gpos == 2: gate(take(ast, 7 - g_done)); gate_fin()
        while any(isinstance(x, tuple) and x[1] == "sm" for x in ast): self.put(ast.pop(0))
        bg = ast + ast2
        self.stamp("z1_done")
        fg = g1[cut:]
        fg.append(wvm("sm"))
        for nt in range(2): fg.append(f"v_lshlrev_b32 v{vBS+nt}, 16, v{vBS+nt}")
        BI = 244
        for nt in range(2):
            for r in range(4): fg.append(f"v_mov_b32 v{acc(ACC2, 3, nt)+r}, v{vBS+nt}")
        vYF = 245
        yadr = [f"s_mul_i32 s{s_t3}, s{s_dj}, 293", f"s_lshr_b32 s{s_t3}, s{s_t3}, 6", f"v_min_u32 v{vYF}, 5, v1", f"v_add_u32 v{vYF}, s{s_t3}, v{vYF}",
               f"v_min_u32 v{vYF}, 31, v{vYF}",
               f"v_mul_u32_u24 v{vYF}, {FS}, v{vYF}", f"v_add_u32 v{vYF}, {WS_FY}, v{vYF}"]
        yfl = f"buffer_load_dword v{vBS}, v{vYF}, {srd(sWS)}, 0 offen sc1"
        BF = 96
        def dma_b(st):
            out = [f"s_add_u32 m0, s{s_wb}, {BSLOT(st)}", f"s_add_u32 s{s_so2}, s{s_bw + (st>>2)}, s{s_br + (st&3)}"]
            for q in range(4):
                out.append((f"buffer_load_dwordx4 v{vLIN}, {srd(sWS)}, s{s_so2} offen offset:{q*1024} sc1 lds", f"b{st}"))
            return out
        def tr_b(sb):
            out = []
            st, wv = sb >> 2, sb & 3
            for ft in range(4):
                for hh in range(2):
                    r = BF + (sb % 3) * 16 + ft * 4 + hh * 2
                    off = (wv & 1) * REGION + BSLOT(st) + ft * 1024 + hh * 256
                    out.append((f"ds_read_b64_tr_b16 v[{r}:{r+1}], v{vB2+(wv>>1)} offset:{off}", f"br{sb}"))
            return out
        WOSLOT = ASLOT + [BSLOT(11), BSLOT(12), BSLOT(13)]
        def dma_wo(g4):
            out = [f"s_add_u32 m0, s{s_wb}, {WOSLOT[g4]}", f"s_mul_i32 s{s_so2}, s{s_ca+g4}, 896"]
            for q in range(4):
                out.append((f"buffer_load_dwordx4 v{vOD+q}, {srd(sWOUT)}, s{s_so2} offen offset:{q*1024} lds", "wo"))
            return out
        nb0 = o.get("nb0", 3)
        pc = min(o.get("pollat", 40), len(fg)); pe = max(pc - o.get("pollead", 60), 0)
        weave(fg[:pe], bg, o.get("wv1", 2))
        if u4 >= 14: a(zfl, tag="zf")
        weave(fg[pe:pc], bg, o.get("wv1", 2))
        while bg and isvm(bg[0]): self.put(bg.pop(0))
        while bg and isinstance(bg[0], str) and not bg[0].startswith("s_add_u32 m0"):
            self.put(bg.pop(0))
            while bg and isvm(bg[0]): self.put(bg.pop(0))
        self.stamp("pre_poll")
        self.poll([zfl], [vq + 1], vq + 2, wave=0, issued="zf")
        a.wait(lg="gtw")
        a("s_barrier")
        for nt in range(2): a(f"ds_read_b32 v{GV+2*nt}, v{vGR+1} offset:{GATE + 64*nt}", tag="gtr")
        assert nb0 <= 3
        self.stamp("z2n_got")
        bb = []
        for st in range(nb0): bb += dma_b(st)
        if o.get("cutst", 1):
            done = lambda pre, c: not any(isinstance(x, tuple) and x[1] == f"{pre}{c}" for x in bg)
            while bg and isinstance(bg[0], tuple) and bg[0][1].startswith("ar"): self.put(bg.pop(0))
            nd = max(c for c in range(nd) if done("a", c)) + 1
            nr = max([c for c in range(nr) if done("ar", c)] + [-1]) + 1
            bg = list(bb)
            for c in range(nr, nd): bg += read_a(c)
            nr = nd
            for _ in range(o.get("apost", 0)):
                if nd < NA: bg += dma_a(nd); nd += 1
        else: bg = bb + bg
        weave(fg[pc:], bg, o.get("wv2", 4)); emit(bg)
        self.stamp("pre_done")
        if o.get("rdall", 0):
            while nr < nd and nr < 22: emit(read_a(nr)); nr += 1
        a.wait(vm="b0", lg="gtr")
        a("s_barrier")
        emit(tr_b(0)); emit(tr_b(1))
        self.stamp("b0_got")
        LAT = o.get("lat", 6); wo_in = o.get("wo_in", 7); wo_last = o.get("wo_last", 58)
        def plan(dps):
            issue = [[] for _ in range(64)]; rd_at = {}
            qb, qa, qw, qs, qr = nb0, nd, 0, 0, 0
            rdstep = {c: -2 for c in range(nr)}
            def place(c, at):
                while at in rd_at: at += 1
                rd_at[at] = c; rdstep[c] = at
                return at <= 2 * c - 2
            ok = True
            for c in range(nr, nd): ok &= place(c, o.get('rd0', 2))
            cur = None; budget = 0.0; xq = []
            def ready_a(sb): return qa < NA and (qa < 4 or (qa - 4 in rdstep and sb >= rdstep[qa - 4] + 2))
            def ready_w(sb):
                return qa == NA and qw < wo_in and o.get('wo_first', 0) + qw * o.get('wogap', 0) <= sb < wo_last and (
                    (qw < 4 and 12 + qw in rdstep and sb >= rdstep[12 + qw] + 2) or (qw >= 4 and sb >= 4 * (qw + 8) + 2))
            def ready_b(sb): return qb < 16 and (qb < NB - 1 or sb >= 4 * (qb - NB + 1) + 2)
            for sb in range(64):
                budget = min(budget + dps, dps + 0.99)
                if sb == 33: xq += [("s", g, q) for g in range(2) for q in range(4)]; qs = 2
                for z in range(8):
                    if sb == o.get("xr", 45) + (z * o.get("xrs", 15)) // 10: xq.append(("r", z >> 2, z & 3)); qr = 2
                nx = 0 if not xq else (1 if (cur or ready_b(sb) or ready_a(sb) or ready_w(sb)) else 2)
                budget -= nx
                n = 0
                while budget >= 1.0:
                    if cur is None:
                        if ready_b(sb): cur = ["b", qb, 0]; qb += 1
                        elif ready_a(sb): cur = ["a", qa, 0]; qa += 1
                        elif ready_w(sb): cur = ["w", qw, 0]; qw += 1
                        else: break
                    if n >= 1 and cur[0] == "b" and o.get("smooth", 1) and not (ready_a(sb + 2) or ready_w(sb + 2) or ready_b(sb)): break
                    issue[sb].append(tuple(cur)); cur[2] += 1; budget -= 1.0; n += 1
                    if cur[2] == 4:
                        if cur[0] == "a": ok &= place(cur[1], sb + LAT)
                        if cur[0] == "b": ok &= sb + LAT - 2 <= 4 * (cur[1] - 1) + 1 or cur[1] < NB - 1
                        cur = None
                for _ in range(min(nx, len(xq))): issue[sb].append(xq.pop(0))
            ok &= not xq
            return ok and qa == NA and qs == 2 and qr == 2 and qb == 16 and cur is None, issue, rd_at, qw
        dps = o.get("dps", 20) / 10
        while True:
            ok, issue, rd_at, wo_done = plan(dps)
            if ok: break
            dps += 0.1
            assert dps < 4.1
        self.info = f"P2: nr={nr} nd={nd} dps={dps:.1f} wo_in_p2={wo_done} last A read at {max(rd_at) if rd_at else -1}"
        lastr = max(sb for sb in range(64) if any(x[0] == "r" for x in issue[sb]))
        self.info += f" lastr={lastr}"
        if o.get("show"): print(" ".join("".join(x[0] for x in st_) or "." for st_ in issue))
        groups = {}
        ACCP, RECV = 144, 176
        def x_send(g):
            return [f"v_bfi_b32 v{ACCP+16*g+4*z}, s{s_ff}, v{vTB}, v{ACCP+16*g+4*z}" for z in range(4)] + \
                   [(f"buffer_store_dwordx4 v[{ACCP+16*g+4*z}:{ACCP+16*g+4*z+3}], v{vLIN}, {srd(sWS)}, s{s_xs+g} offen offset:{1024*z} sc1", "xs") for z in range(4)]
        XT = RECV
        xr8 = [RECV + 4 * z for z in range(8)]
        xmul = [f"v_mul_f32 v{XT+z}, v{RECV+z}, v{ACC1+z}" for z in range(32)]
        paddr = [f"s_mul_i32 s{s_t2}, s{s_sb}, {2*28}", f"s_lshl_b32 s{s_t3}, s{s_j}, 1", f"s_add_u32 s{s_t2}, s{s_t2}, s{s_t3}", f"s_lshl_b32 s{s_t2}, s{s_t2}, 10",
                 f"s_add_u32 s{s_t2}, s{s_t2}, {WS_P}", f"s_add_u32 s{s_t3}, s{s_t2}, {28*1024}"]
        rstep = {4 * g + q: sb for sb in range(64) for kd, g, q in issue[sb] if kd == "r"}
        xv = []; xlast = [0]
        for z in range(8):
            at = min(rstep[z] + o.get("xlat", 9), o.get("xvmax", 62))
            assert at > rstep[z]
            it = [wvm(f"xr{z}"), f"v_xor_b32 v{xr8[z]}, v{vTB}, v{xr8[z]}",
                  f"v_or_b32 v{vT}, v{vT if z else xr8[0]}, v{xr8[z]}"] + xmul[4*z:4*z+4]
            if z == 7: it += [f"v_and_b32 v{vT}, 0xff, v{vT}", f"v_cmp_ne_u32 vcc, 0, v{vT}"]
            xv += [(at, x) for x in it]
        def x_recv(g):
            return [(f"buffer_load_dwordx4 v[{RECV+16*g+4*z}:{RECV+16*g+4*z+3}], v{vLIN}, {srd(sWS)}, s{s_xr+g} offen offset:{1024*z} sc1", f"xr{4*g+z}") for z in range(4)]
        for sb in range(64):
            c, uu = sb >> 1, sb & 1
            gaps = [[] for _ in range(8)]
            if sb + 2 < 64:
                for m, x in enumerate(tr_b(sb + 2)): gaps[m].append(x)
            a.wait(lg=[f"br{sb}", f"ar{c}"])
            if sb in rd_at:
                rd = read_a(rd_at[sb])
                self.put(rd[0])
                for m, x in enumerate(rd[1:]): gaps[2 * m].append(x)
            n = len(issue[sb])
            st = sb >> 2
            barr = (sb & 3) == 1 and st + 1 < 16
            pos = {0: [], 1: [2], 2: [2, 6], 3: [1, 4, 6], 4: [0, 2, 4, 6]}[n]
            prev = -1
            for (kind, idx, q), m in zip(issue[sb], pos):
                if kind in "sr":
                    grp = {"s": x_send, "r": x_recv}[kind](idx)
                    if kind == "s": gaps[max(m - 1, 0)].append(grp[q])
                    gaps[m].append(grp[-4:][q]); prev = m
                    continue
                if q == 0:
                    grp = {"a": dma_a, "b": dma_b, "w": dma_wo}[kind](idx)
                    if kind == "w" and idx < 4: grp = [wlg(f"ar{12+idx}")] + grp
                    setup, groups[(kind, idx)] = grp[:-4], grp[-4:]
                    for z, it in enumerate(setup): gaps[min(max(prev + 1, m - len(setup) + z), m)].append(it)
                gaps[m].append(groups[(kind, idx)][q]); prev = m
            if barr:
                assert not any(kd == "b" and ix == st + 1 for x in issue[sb:] for kd, ix, _ in x)
                bm = o.get("barm", 4)
                if not o.get("nowait"): gaps[bm - 1].append(wvm(f"b{st+1}"))
                else: gaps[bm - 1].append(wvm(f"b{st-2}"))
                if not (o.get("nobar") == 1 or (o.get("nobar") == 2 and st & 1)): gaps[bm].append("s_barrier")
            while xv and sb >= xv[0][0]:
                free = [m for m in range(7) if len(gaps[m]) < 2]
                if not free: break
                gaps[min(m for m in free if m >= xlast[0]) if any(m >= xlast[0] for m in free) else 7].append(xv.pop(0)[1])
                xlast[0] = min([m for m in free if m >= xlast[0]] + [7])
                if xlast[0] == 7: break
            xlast[0] = 0
            k, b = areg(c)
            for m in range(8):
                ft, nt = m >> 1, m & 1
                d = acc(ACC2 if sb >= 32 else ACCP, ft, nt); br = BF + (sb % 3) * 16 + ft * 4; ar = b + (uu * 2 + nt) * 4
                ci = d if sb != 32 else acc(ACC2, 3, nt)
                a(f"v_mfma_f32_16x16x32_bf16 v[{d}:{d+3}], v[{br}:{br+3}], {k}[{ar}:{ar+3}], {f'v[{ci}:{ci+3}]' if sb else '0'}")
                emit(gaps[m])
            if self.stamps and o.get("p2fine") and sb % 6 == 5:
                rg = [16, 18, 20, 22, 24, 26, 44, 46, 48, 50][sb // 6]
                a(f"{'s_memtime' if o['p2fine'] == 2 else 's_memrealtime'} s[{rg}:{rg+1}]")
        if self.stamps and o.get("p2fine"):
            a("s_waitcnt lgkmcnt(0)")
            for z, rg in enumerate([16, 18, 20, 22, 24, 26, 44, 46, 48, 50]):
                a(f"v_writelane_b32 v{vST}, s{rg}, {self.nst}"); self.names.append(f"s{6*z+6}"); self.nst += 1
        self.stamp("p2_done")
        emit([x[1] for x in xv]); emit(paddr)
        Lx = a.label("L_xok")
        a("s_cmp_eq_u64 vcc, 0")
        a(f"s_cbranch_scc1 {Lx}")
        vm0, h0 = list(a.vm), list(a.hist)
        self.poll([x[0] for g in range(2) for x in x_recv(g)], xr8, vT, vtag=vTB)
        emit(xmul)
        a(f"{Lx}:")
        a.vm, a.hist = vm0, h0
        self.stamp("x_got")

        PP = 96
        for nt in range(2):
            for q in range(2):
                r = PP + (nt * 2 + q) * 4
                for h in range(2):
                    z = acc(ACC2, 2 * q + h, nt); z1 = acc(ACC1, 2 * q + h, nt)
                    for p in range(2): a(f"v_pk_fma_f32 {pr(z+2*p)}, {pr(z+2*p)}, {pr(z1+2*p)}, {pr(acc(XT, 2*q+h, nt)+2*p)}")
                    for p in range(2): a(f"v_cvt_pk_bf16_f32 v{r+2*h+p}, v{z+2*p}, v{z+2*p+1}")
                a(f"buffer_store_dwordx4 v[{r}:{r+3}], v{vLIN}, {srd(sWS)}, s{s_t2 if nt == 0 else s_t3} offen offset:{1024*q} sc1", tag="pst")
        a(f"s_lshl_b32 s{s_t1}, s{s_i}, 4")
        a(f"s_add_u32 s{s_t1}, s{s_t1}, s{s_j}")
        a(f"s_mul_i32 s{s_t1}, s{s_t1}, {FS}")
        a(f"s_add_u32 s{s_t1}, s{s_t1}, {WS_FP}")
        emit(self.only_wave(s_t1, 1))
        a("s_barrier")
        bg = []
        for _ in range(o.get("wo_pre", 3)):
            if wo_done < 7: bg += dma_wo(wo_done); wo_done += 1
        s_pa, s_pb = s_ar, s_ar + 7
        fg = list(yadr); a = Rec()
        s_o2 = s_aw + 2
        QF, YF, KF, AP = 112, 120, 64, 128
        a(f"s_lshl_b32 s{s_t0}, s{s_i}, 1")
        a(f"s_add_u32 s{s_t0}, s{s_t0}, s{s_th}")
        a(f"s_and_b32 s{s_t2}, s{s_w}, 1")
        a(f"s_lshl_b32 s{s_t3}, s{s_t0}, 1")
        a(f"s_add_u32 s{s_t3}, s{s_t3}, s{s_t2}")
        a(f"s_mul_i32 s{s_t3}, s{s_t3}, {32*896}")
        a(f"s_lshl_b32 s{s_so}, s{s_dj}, 7")
        a(f"s_add_u32 s{s_t3}, s{s_t3}, s{s_so}")
        a(f"s_lshr_b32 s{s_so}, s{s_w}, 1")
        a(f"s_lshl_b32 s{s_so}, s{s_so}, 6")
        a(f"s_add_u32 s{s_so}, s{s_t3}, s{s_so}")
        a(f"s_add_u32 s{s_o2}, s{s_so}, {16*896}")
        vRW = vAD
        a(f"v_and_b32 v{t1}, 15, v1")
        a(f"v_mul_u32_u24 v{vRW}, 896, v{t1}")
        vQR = vONE
        a(f"v_lshrrev_b32 v{t0}, 5, v1")
        a(f"s_and_b32 s{s_t3}, s{s_w}, 2")
        a(f"s_lshl_b32 s{s_t3}, s{s_t3}, 1")
        a(f"v_add_u32 v{t0}, s{s_t3}, v{t0}")
        a(f"v_xor_b32 v{t0}, v{t0}, v1")
        a(f"v_and_b32 v{t0}, 7, v{t0}")
        a(f"v_lshlrev_b32 v{t0}, 4, v{t0}")
        a(f"v_lshl_add_u32 v{t0}, v{t1}, 7, v{t0}")
        a(f"v_bfe_u32 v{t2}, v1, 4, 1")
        a(f"v_lshl_add_u32 v{t0}, v{t2}, 3, v{t0}")
        a(f"s_mul_i32 s{s_t3}, s{s_t2}, {2*REGION}")
        a(f"s_add_u32 s{s_t3}, s{s_t3}, {QOFF}")
        a(f"v_add_u32 v{vQR}, s{s_t3}, v{t0}")
        a(f"v_xor_b32 v{vQR+1}, 32, v{vQR}")
        a(f"v_lshrrev_b32 v{t0}, 5, v1")
        a(f"v_bfe_u32 v{t1}, v1, 2, 3")
        a(f"v_lshlrev_b32 v{t2}, 7, v{t1}")
        a(f"v_and_b32 v{t3}, 3, v1")
        a(f"v_lshl_add_u32 v{t2}, v{t3}, 3, v{t2}")
        a(f"v_bfe_u32 v{t3}, v1, 3, 2")
        a(f"v_lshl_add_u32 v{t2}, v{t3}, 5, v{t2}")
        a(f"s_and_b32 s{s_t3}, s{s_w}, 2")
        a(f"s_lshl_b32 s{s_t3}, s{s_t3}, 5")
        a(f"v_xor_b32 v{t3}, s{s_t3}, v{t2}")
        a(f"v_mul_u32_u24 v{t1}, {REGION}, v{t0}")
        vW3 = 72
        a(f"s_lshl_b32 s{s_t3}, s{s_t3}, 5")
        a(f"v_add3_u32 v{vW3}, v{t1}, v{t3}, s{s_t3}")
        for dtr in range(1, 4): a(f"v_xor_b32 v{vW3+dtr}, {32*dtr}, v{vW3}")
        for dtr in range(4): a(f"v_add_u32 v{vW3+4+dtr}, {2*REGION}, v{vW3+dtr}")
        YOFF = BSLOT(14)
        vYA = vXR
        a(f"s_lshl_b32 s{s_t3}, s{s_t2}, 6")
        a(f"v_xor_b32 v{t3}, s{s_t3}, v{t2}")
        a(f"v_lshl_add_u32 v{t3}, v{t0}, 10, v{t3}")
        a(f"s_and_b32 s{s_t3}, s{s_w}, 2")
        a(f"s_mul_i32 s{s_t3}, s{s_t3}, {REGION}")
        a(f"s_add_u32 s{s_t3}, s{s_t3}, {YOFF}")
        a(f"v_add_u32 v{vYA}, s{s_t3}, v{t3}")
        a(f"v_xor_b32 v{vYA+1}, 32, v{vYA}")
        for dt2 in range(2):
            for nt in range(2):
                r = KF + (dt2 * 2 + nt) * 2
                a(f"ds_read_b64_tr_b16 v[{r}:{r+1}], v{vYA+nt} offset:{dt2*REGION + KVD - YOFF}", tag="kr")
        vYD = vC0
        a(f"v_bfe_u32 v{t1}, v1, 3, 1")
        a(f"v_lshrrev_b32 v{t2}, 4, v1")
        a(f"v_lshl_add_u32 v{t1}, v{t1}, 5, v{t2}")
        a(f"v_lshl_add_u32 v{vYD}, v{t1}, 12, v{vSW}")
        a(f"v_add_u32 v{vYD+1}, {4*4096-1024}, v{vYD}")
        s_y, s_y2 = s_aw, s_aw + 1
        a(f"s_lshl_b32 s{s_y}, s{s_dj}, 3")
        a(f"s_add_u32 s{s_y}, s{s_y}, s{s_w}")
        a(f"s_lshl_b32 s{s_y}, s{s_y}, 15")
        a(f"s_lshl_b32 s{s_cnt}, s{s_t0}, 7")
        a(f"s_add_u32 s{s_y}, s{s_y}, s{s_cnt}")
        a(f"s_add_u32 s{s_y}, s{s_y}, {WS_YT}")
        a(f"s_mul_i32 s{s_t3}, s{s_i}, {16*FS}")
        a(f"s_add_u32 s{s_t3}, s{s_t3}, {WS_FP}")
        a(f"v_min_u32 v{t1}, 13, v1")
        a(f"v_mul_u32_u24 v{t1}, {FS}, v{t1}")
        a(f"s_lshl_b32 s{s_pb}, s{s_t0}, 1")
        a(f"s_add_u32 s{s_pb}, s{s_pb}, s{s_t2}")
        a(f"s_mul_i32 s{s_pb}, s{s_pb}, {56*1024}")
        a(f"s_and_b32 s{s_cnt}, s{s_w}, 2")
        a(f"s_lshl_b32 s{s_cnt}, s{s_cnt}, 10")
        a(f"s_add_u32 s{s_pb}, s{s_pb}, s{s_cnt}")
        a(f"s_add_u32 s{s_pb}, s{s_pb}, {WS_P}")
        for g4 in range(7):
            a(f"s_lshl_b32 s{s_pa+g4}, s{s_ca+g4}, 5")
            a(f"s_add_u32 s{s_pa+g4}, s{s_pa+g4}, s{s_pb}")
        vP1, vEW, vER = vAD + 2, vAD + 3, vAD + 1
        a(f"v_add_u32 v{vP1}, {28*1024}, v{vLIN}")
        EXO = BSLOT(15)
        a(f"s_add_u32 s{s_cnt}, s{s_wb}, {EXO}")
        a(f"v_add_u32 v{vEW}, s{s_cnt}, v{vLIN}")
        a(f"s_xor_b32 s{s_cnt}, s{s_w}, 2")
        a(f"s_mul_i32 s{s_cnt}, s{s_cnt}, {REGION}")
        a(f"s_add_u32 s{s_cnt}, s{s_cnt}, {EXO}")
        a(f"v_add_u32 v{vER}, s{s_cnt}, v{vLIN}")
        a(f"v_bfe_u32 v{t0}, v1, 4, 1")
        a(f"v_lshrrev_b32 v{t2}, 5, v1")
        a(f"v_lshl_add_u32 v{vRW}, v{t0}, 5, v{vRW}")
        a(f"v_lshl_add_u32 v{vRW}, v{t2}, 4, v{vRW}")
        a = real_a
        weave(fg, bg, max(1.0, len(fg) / max(len(bg), 1))); emit(bg)
        def y_dma(sreg):
            a(f"s_add_u32 m0, s{s_wb}, {YOFF}")
            a(f"buffer_load_dwordx4 v{vYD}, {srd(sWS)}, s{sreg} offen sc1 lds", tag="y")
            a(f"buffer_load_dwordx4 v{vYD+1}, {srd(sWS)}, s{sreg} offen offset:1024 sc1 lds", tag="y")
        a.wait(vm="pst")
        a("s_barrier")
        self.flag(s_t1, vL8, vTAG)
        self.stamp("p_pub")
        while wo_done < 7: emit(dma_wo(wo_done)); wo_done += 1
        ylate = o.get("ylate", 1)
        for dt2 in range(2):
            for nt in range(2):
                r = QF + (dt2 * 2 + nt) * 2
                a(f"ds_read_b64 v[{r}:{r+1}], v{vQR+dt2} offset:{nt*REGION}", tag="qr")
        TK, TY = 144, 224
        a.wait(lg="kr")
        for x in range(4):
            for p in range(2): unpack(TK + 4 * x + 2 * p, KF + 2 * x + p)
        a.wait(lg="qr")
        for x in range(4):
            for p in range(2): unpack(AP + 4 * x + 2 * p, QF + 2 * x + p)
            for p in range(2): a(f"v_pk_mul_f32 {pr(AP+4*x+2*p)}, {pr(AP+4*x+2*p)}, {pr(GV+2*(x&1))} op_sel_hi:[1,0]")
        for nt in range(2): a(f"v_sub_f32 v{GV+2*nt}, 1.0, v{GV+2*nt}")
        if ylate:
            for z in range(8): a(f"v_pk_mul_f32 {pr(TK+2*z)}, {pr(TK+2*z)}, {pr(AP+2*z)}")
        for _ in range(o.get("pdelay", 0)): a("s_nop 15")
        self.stamp("wo_iss")
        self.poll([f"buffer_load_dword v{t3}, v{t1}, {srd(sWS)}, s{s_t3} offen sc1"], [t3], vT, wave=0)
        ylate = o.get("ylate", 1)
        if not ylate: self.poll([yfl], [vBS], vT, wave=2, nap=o.get("ynap", 2))
        a("s_waitcnt vmcnt(0) lgkmcnt(0)")
        a("s_barrier")
        self.stamp("p_got")
        def ld_p(ks):
            return [(f"buffer_load_dwordx4 a[{(ks*2+nt)*4}:{(ks*2+nt)*4+3}], v{vP1 if nt else vLIN}, {srd(sWS)}, s{s_pa+(ks>>1)} offen offset:{(ks&1)*1024} sc1", f"p{ks}") for nt in range(2)]
        W3F = 160
        def tr_o(ks):
            out = []
            for dtr in range(4):
                for hh in range(2):
                    r = W3F + (ks % 3) * 16 + dtr * 4 + hh * 2
                    out.append((f"ds_read_b64_tr_b16 v[{r}:{r+1}], v{vW3+4*hh+dtr} offset:{WOSLOT[ks>>1] + (ks&1)*1024}", f"or{ks}"))
            return out
        np0 = o.get("np0", 5)
        for ks in range(np0):
            emit(ld_p(ks))
            if ks == 1 and not ylate: y_dma(s_y)
        emit(tr_o(0) + tr_o(1))
        yv = [(f"ds_read_b64_tr_b16 v[{YF+2*x}:{YF+2*x+1}], v{vYA+(x&1)} offset:{(x>>1)*REGION}", "yr") for x in range(4)] + [None] * 6 + [wlg("yr")]
        for z in range(8): yv += [f"v_lshlrev_b32 v{TY+2*z}, 16, v{YF+z}", f"v_and_b32 v{TY+2*z+1}, s{s_cnt}, v{YF+z}"]
        yv += [f"v_add_f32 v{TY+z}, v{TY+z}, v{TK+z}" for z in range(16)]
        yv += [f"v_mul_f32 v{AP+z}, v{AP+z}, v{TY+z}" for z in range(16)]
        a(f"s_mov_b32 s{s_cnt}, 0xffff0000")
        ACC3 = 32
        for ks in range(14):
            ex = tr_o(ks + 2) if ks < 12 else []
            lp = ld_p(ks + np0) if ks + np0 < 14 else []
            a.wait(vm=f"p{ks}", lg=f"or{ks}")
            if ks == 3 and not ylate: a("s_barrier")
            if ylate and ks == o.get("yf", 4): a(yfl, tag="yf")
            if ylate and ks == o.get("yc", 9):
                self.poll([yfl], [vBS], vT, issued="yf", nap=o.get("ynap", 2))
                y_dma(s_y)
            for m, dtr in enumerate((2, 2, 3, 3, 0, 0, 1, 1)):
                nt = m & 1
                d = ACC3 + (dtr * 2 + nt) * 4; wr = W3F + (ks % 3) * 16 + dtr * 4; r = (ks * 2 + nt) * 4
                cin = "0" if ks == 0 else f"v[{d}:{d+3}]"
                a(f"v_mfma_f32_16x16x32_bf16 v[{d}:{d+3}], v[{wr}:{wr+3}], a[{r}:{r+3}], {cin}")
                if ex: self.put(ex.pop(0))
                if lp and m in (1, 5): self.put(lp.pop(0))
                elif ks >= 3 and yv and not ylate:
                    it = yv.pop(0)
                    if it is not None: self.put(it)
        assert ylate or not yv
        self.stamp("p3_done")
        RV = 160
        for x in range(4): a(f"ds_write_b128 v{vEW}, v[{ACC3+16+4*x}:{ACC3+19+4*x}] offset:{1024*x}")
        A0 = TK if ylate else AP
        for x in range(4):
            for p in range(2):
                a(f"v_pk_fma_f32 {pr(A0+4*x+2*p)}, {pr(ACC3+4*x+2*p)}, {pr(GV+2*(x&1))}, {pr(A0+4*x+2*p)} op_sel_hi:[1,0,1]")
        a("s_waitcnt vmcnt(0) lgkmcnt(0)")
        a("s_barrier")
        if ylate: emit(yv[:4])
        for x in (0, 2, 1, 3): a(f"ds_read_b128 v[{RV+4*x}:{RV+4*x+3}], v{vER} offset:{1024*x}", tag=f"rv{x&1}")
        if ylate:
            a.wait(lg="yr")
            for z in range(8): unpack(TY + 2 * z, YF + z)
            for z in range(8): a(f"v_pk_fma_f32 {pr(AP+2*z)}, {pr(AP+2*z)}, {pr(TY+2*z)}, {pr(TK+2*z)}")
        OP = 64
        for nt in range(2):
            a.wait(lg=f"rv{nt}")
            for dt2 in range(2):
                x = dt2 * 2 + nt; d = RV + 4 * x
                for p in range(2):
                    a(f"v_pk_fma_f32 {pr(d+2*p)}, {pr(d+2*p)}, {pr(GV+2*nt)}, {pr(AP+4*x+2*p)} op_sel_hi:[1,0,1]")
                for p in range(2):
                    a(f"v_cvt_pk_bf16_f32 v{OP+4*nt+2*dt2+p}, v{d+2*p}, v{d+2*p+1}")
            for p in range(2): a(f"v_permlane16_swap_b32 v{OP+4*nt+p}, v{OP+4*nt+2+p}")
            a(f"buffer_store_dwordx4 v[{OP+4*nt}:{OP+4*nt+3}], v{vRW}, {srd(sOUT)}, s{s_so if nt == 0 else s_o2} offen {['', 'sc1', 'nt', 'sc0 sc1'][o.get('opol', 0)]}")
        if self.stamps:
            a("s_waitcnt vmcnt(0)")
            self.stamp("end")
            self.dump_stamps()
        if self.o.get("padto"):
            if "padx" in self.o:
                a("s_and_b32 s4, s2, 7"); a(f"s_cmp_lg_u32 s4, {self.o['padx']}"); a("s_cbranch_scc1 L_end")
            a("L_padto:")
            a("s_memrealtime s[4:5]")
            a("s_waitcnt lgkmcnt(0)")
            a("s_sub_u32 s4, s4, s6")
            a(f"s_cmp_lt_u32 s4, {self.o['padto']*100}")
            a("s_cbranch_scc1 L_padto")
        a("s_endpgm")
        self.gemm_names = self.names

    def first_wait(self):
        if self.waited: return
        self.waited = True
        a = self.a
        a("s_waitcnt lgkmcnt(0)")
        if self.stamps:
            a(f"v_writelane_b32 v{vST}, s{s_ts}, 0"); self.names.append("start"); self.nst = 1
            if self.o.get("fine"): self.stamp("karg")

    def helper_wg(self):
        a = self.a; o = self.o
        emit, wvm, wlg = self.emit, self.wvm, self.wlg
        a.hist = []; a.vm = []; a.lg = []
        self.names = []; self.nst = 0; self.waited = False
        if o.get("halign", 1): a.raw(".p2align 12")
        a("L_helper:")
        UOFF, CS, HSZ = 1024, 4160, 4 * 4160
        ASZ = 288 * 64
        HOFF = UOFF + 3 * ASZ
        EXOFF = HOFF + 4 * HSZ
        assert EXOFF + 4 * 5120 <= 163840
        s_hh, s_kh, s_it, s_fy = s_i, s_j, s_dj, s_th
        s_h, s_g, s_y, s_f = 74, 78, 82, 86
        s_yp, s_um, s_us, s_pf, s_pfs, s_pf2 = 90, 91, 92, 93, 94, 95
        s_x = 96
        vZ, vTAG, vLIN, vF, vHL, vHL2, vEXW, vEXR, vYS, vHW, vDUM = 2, 3, 4, 5, 8, 9, 10, 11, 12, 13, 6
        vG = 14
        vPF, vCP = 7, 22
        vUD = 18
        t0, t1, t2 = 24, 25, 26
        HD = 32
        Y = 64
        O = 96
        HTS = [112, 118, 24, O + 8]
        FB = [192, 224]; GB = [128, 160]
        gk = "a" if o.get("gagpr", 0) else "v"
        a(f"s_lshl_b32 s{s_hh}, s{s_t1}, 2")
        a(f"s_add_u32 s{s_hh}, s{s_hh}, s{s_t0}")
        a(f"s_sub_u32 s{s_hh}, s{s_hh}, 28")
        a(f"s_and_b32 s{s_so}, s{s_hh}, 3")
        a(f"s_lshl_b32 s{s_so2}, s{s_so}, 2")
        a(f"s_add_u32 s{s_so2}, s{s_so2}, s{s_w}")
        if o.get("cpf", 2) == 1:
            a(f"s_getpc_b64 s[100:101]")
            a("L_pc:")
            a(f"v_lshl_add_u32 v{vCP}, v1, 4, s{s_so2}")
            a(f"v_lshlrev_b32 v{vCP}, 7, v{vCP}")
            a.raw(f"    v_min_u32 v{vCP}, L_codeend-{NAME}-4, v{vCP}")
            a.raw(f"    s_sub_u32 s100, s100, L_pc-{NAME}")
            a("s_subb_u32 s101, s101, 0")
            a(f"global_load_dword v{vDUM}, v{vCP}, s[100:101]")
        a(f"s_and_b32 s{s_kh}, s{s_w}, 1")
        a(f"v_mov_b32 v{vZ}, 0")
        a(f"v_lshlrev_b32 v{vLIN}, 4, v1")
        a(f"v_lshrrev_b32 v{t1}, 4, v1")
        a(f"v_and_b32 v{t0}, 15, v1")
        a(f"v_lshlrev_b32 v{vHL}, 9, v{t1}")
        a(f"v_lshl_add_u32 v{vHL}, v{t0}, 3, v{vHL}")
        a(f"v_subrev_u32 v{vHL2}, 8, v{vHL}")
        s_c0 = s_pf2
        a(f"s_and_b32 s{s_c0}, s{s_hh}, 1")
        a(f"s_lshl_b32 s{s_c0}, s{s_c0}, 1")
        def chan(k):
            if k < 3:
                a(f"s_add_u32 s{s_t0}, s{s_w}, {4*k}"); a(f"s_add_u32 s{s_t0}, s{s_t0}, s{s_c0}")
            else:
                a(f"s_lshr_b32 s{s_t0}, s{s_w}, 1")
                a(f"s_add_u32 s{s_x+3}, s{s_t0}, s{s_c0}"); a(f"s_xor_b32 s{s_x+3}, s{s_x+3}, s{s_w}"); a(f"s_lshl_b32 s{s_x+3}, s{s_x+3}, 4")
                a(f"s_mul_i32 s{s_t1}, s{s_c0}, 6"); a(f"s_sub_u32 s{s_t0}, s{s_t0}, s{s_t1}"); a(f"s_add_u32 s{s_t0}, s{s_t0}, 12")
            a(f"s_mul_i32 s{s_t1}, s{s_hh}, 14")
            a(f"s_add_u32 s{s_t1}, s{s_t1}, s{s_t0}")
            a(f"s_and_b32 s{s_t2}, s{s_t1}, 31")
            a(f"s_lshl_b32 s{s_t2}, s{s_t2}, 1")
            a(f"s_bfe_u32 s{s_t3}, s{s_t1}, 0x10005")
            a(f"s_add_u32 s{s_t2}, s{s_t2}, s{s_t3}")
            a(f"s_andn2_b32 s{s_t3}, s{s_t1}, 63")
            a(f"s_add_u32 s{s_t2}, s{s_t2}, s{s_t3}")
            a(f"s_lshl_b32 s{s_h+k}, s{s_t2}, 12")
            a(f"s_lshl_b32 s{s_y+k}, s{s_t1}, 12")
            a(f"s_add_u32 s{s_y+k}, s{s_y+k}, {WS_YT}")
        def h_loads(g, sreg):
            d = HD + 4 * g; off = 2048 * (g & 1) + 128 * (g >> 1)
            return [(f"buffer_load_dwordx2 v[{d}:{d+1}], v{vHL2 if g == 0 else vHL}, {srd(sH)}, s{sreg} offen offset:{max(off-8, 0)}", f"h{g}"),
                    (f"buffer_load_dwordx2 v[{d+2}:{d+3}], v{vHL}, {srd(sH)}, s{sreg} offen offset:{off}", f"h{g}")]
        def h_valu(g):
            d = HD + 4 * g; t = HTS[g & 3]
            return [wvm(f"h{g}"), f"v_alignbit_b32 v{t}, v{d+2}, v{d+1}, 16", f"v_alignbit_b32 v{t+1}, v{d+3}, v{d+2}, 16",
                    f"v_mov_b32 v{t+2}, v{d+1}", f"v_mov_b32 v{t+3}, v{d+2}",
                    f"v_alignbit_b32 v{t+4}, v{d+1}, v{d}, 16", f"v_mov_b32 v{t+5}, v{t}"]
        def h_writes(g):
            d = HD + 4 * g; t = HTS[g & 3]; off = 2048 * (g & 1) + 128 * (g >> 1)
            return [(f"ds_write_b64 v{vHW}, v[{r}:{r+1}] offset:{off + c*CS}", f"hw{g}") for c, r in enumerate((d + 2, t, t + 2, t + 4))]
        chan(0)
        self.first_wait()
        a(f"buffer_load_dword v{vTAG}, v{vZ}, {srd(sWS)}, 0 offen sc1", tag="epoch")
        for g in range(8): emit(h_loads(g, s_h))
        if o.get("w1pf", 2) == 2:
            a(f"s_mul_i32 s{s_t2}, s{s_so2}, {28*3584}")
            a(f"s_bfe_u32 s{s_t3}, s{s_hh}, 0x10002")
            a(f"s_mul_i32 s{s_t3}, s{s_t3}, 896")
            a(f"s_add_u32 s{s_t2}, s{s_t2}, s{s_t3}")
            a(f"v_lshrrev_b32 v{Y}, 3, v1")
            a(f"v_min_u32 v{Y}, 6, v{Y}")
            a(f"v_and_b32 v{Y+1}, 7, v1")
            a(f"v_min_u32 v{Y+1}, 6, v{Y+1}")
            a(f"v_mul_u32_u24 v{Y}, 3584, v{Y}")
            a(f"v_lshl_add_u32 v{Y}, v{Y+1}, 7, v{Y}")
            for q in range(o.get("w1n", 4)):
                a(f"buffer_load_dword v{vDUM}, v{Y}, {srd(sWIN)}, s{s_t2} offen", tag="pf")
                if q < 3: a(f"s_add_u32 s{s_t2}, s{s_t2}, {7*3584}")
        a(f"s_lshr_b32 s{s_t0}, s{s_hh}, 3")
        a(f"s_lshl_b32 s{s_t0}, s{s_t0}, 2")
        a(f"s_add_u32 s{s_sb}, s{s_t0}, s{s_so}")
        for k in range(1, 4): chan(k)
        a(f"s_mov_b32 s{s_g+1}, {ASZ}")
        a(f"s_mov_b32 s{s_g+2}, {ASZ}")
        a(f"s_lshl_b32 s{s_t2}, s{s_kh}, 10")
        a(f"s_sub_u32 s{s_g+3}, {(-2*ASZ) & 0xffffffff}, s{s_t2}")
        a(f"s_mov_b32 s{s_x+1}, 0")
        a(f"s_mov_b32 s{s_x+2}, 0")
        a(f"s_lshl_b32 s{s_t2}, s{s_kh}, 11")
        a(f"s_add_u32 s{s_y+3}, s{s_y+3}, s{s_t2}")
        a(f"s_mov_b32 s{s_f+1}, 0")
        a(f"s_mov_b32 s{s_f+2}, 0")
        a(f"s_lshl_b32 s{s_f+3}, s{s_kh}, 8")
        a(f"s_mul_i32 s{s_fy}, s{s_hh}, {FS}")
        a(f"s_add_u32 s{s_fy}, s{s_fy}, {WS_FY}")
        emit(self.only_wave(s_fy, 0))
        a(f"v_lshlrev_b32 v{t2}, 3, v{t1}")
        a(f"v_sub_u32 v{t2}, v{t0}, v{t2}")
        a(f"v_add_u32 v{t2}, 25, v{t2}")
        a(f"v_sub_u32 v{vF}, 0, v{t2}")
        a(f"v_and_b32 v{vF}, 3, v{vF}")
        a(f"v_mul_u32_u24 v{vF}, {CS+2}, v{vF}")
        a(f"v_lshl_add_u32 v{vF}, v{t2}, 1, v{vF}")
        a(f"s_mul_i32 s{s_t2}, s{s_w}, {HSZ}")
        a(f"s_add_u32 s{s_t2}, s{s_t2}, {HOFF}")
        a(f"v_add_u32 v{vF}, s{s_t2}, v{vF}")
        a(f"s_add_u32 s{s_t2}, s{s_t2}, 32")
        a(f"v_add_u32 v{vHW}, s{s_t2}, v{vHL}")
        a(f"v_lshl_add_u32 v{t2}, v{t0}, 1, v{t1}")
        a(f"v_add_u32 v{t2}, 2, v{t2}")
        for k in range(4):
            a(f"v_lshrrev_b32 v{vG+k}, 2, v{t2}")
            a(f"v_add_u32 v{vG+k}, {3-k}, v{vG+k}")
            a(f"v_xor_b32 v{vG+k}, s{s_w}, v{vG+k}")
            a(f"v_and_b32 v{vG+k}, 3, v{vG+k}")
            a(f"v_lshlrev_b32 v{vG+k}, 4, v{vG+k}")
            a(f"v_lshl_add_u32 v{vG+k}, v{t2}, 6, v{vG+k}")
            a(f"v_add_u32 v{vG+k}, {UOFF}, v{vG+k}")
        a(f"v_lshlrev_b32 v{vYS}, 5, v{t0}")
        a(f"v_bfe_u32 v{t2}, v1, 4, 1")
        a(f"v_lshl_add_u32 v{vYS}, v{t2}, 9, v{vYS}")
        a(f"v_lshrrev_b32 v{t2}, 5, v1")
        a(f"v_lshl_add_u32 v{vYS}, v{t2}, 4, v{vYS}")
        a(f"v_xor_b32 v{t0}, v{t1}, v1")
        a(f"v_and_b32 v{t0}, 3, v{t0}")
        a(f"v_lshrrev_b32 v{t2}, 2, v1")
        a(f"v_mul_u32_u24 v{t2}, 7168, v{t2}")
        a(f"v_lshl_add_u32 v{vUD}, v{t0}, 4, v{t2}")
        for q in range(1, 4): a(f"v_add_u32 v{vUD+q}, {q*(16*7168-1024)}, v{vUD}")
        for q in range(4): a(f"v_mov_b32 v{O+q}, 0")
        a(f"v_bfe_u32 v{t0}, v1, 1, 4")
        a(f"v_and_b32 v{t2}, 1, v1")
        a(f"v_mul_u32_u24 v{t0}, {CS}, v{t0}")
        a(f"v_lshl_add_u32 v{t0}, v{t2}, 4, v{t0}")
        a(f"v_add_u32 v{t0}, {HOFF}, v{t0}")
        a(f"ds_write_b128 v{t0}, v[{O}:{O+3}]")
        a(f"v_and_b32 v{t0}, 127, v0")
        a(f"v_lshlrev_b32 v{t0}, 4, v{t0}")
        for q in range(3): a(f"ds_write_b128 v{t0}, v[{O}:{O+3}] offset:{UOFF + q*ASZ}")
        a.wait(vm="epoch")
        self.get_tag(vTAG, vTAG)
        for g in range(8):
            if g == 4: a("s_waitcnt lgkmcnt(0)")
            emit(h_valu(g)); emit(h_writes(g))
        a("s_waitcnt lgkmcnt(0)")
        if not o.get("h1late", 1):
            for g in range(4): emit(h_loads(g, s_h + 1))
        if o.get("w1pf", 2) == 1:
            a(f"s_mul_i32 s{s_t2}, s{s_so2}, {28*3584}")
            a(f"s_bfe_u32 s{s_t3}, s{s_hh}, 0x10002")
            a(f"s_mul_i32 s{s_t3}, s{s_t3}, 896")
            a(f"s_add_u32 s{s_t2}, s{s_t2}, s{s_t3}")
            a(f"v_lshrrev_b32 v{Y}, 3, v1")
            a(f"v_min_u32 v{Y}, 6, v{Y}")
            a(f"v_and_b32 v{Y+1}, 7, v1")
            a(f"v_min_u32 v{Y+1}, 6, v{Y+1}")
            a(f"v_mul_u32_u24 v{Y}, 3584, v{Y}")
            a(f"v_lshl_add_u32 v{Y}, v{Y+1}, 7, v{Y}")
            for q in range(o.get("w1n", 4)):
                a(f"buffer_load_dword v{vDUM}, v{Y}, {srd(sWIN)}, s{s_t2} offen", tag="pf")
                if q < 3: a(f"s_add_u32 s{s_t2}, s{s_t2}, {7*3584}")
        if o.get("w1m", 0):
            a(f"s_lshl_b32 s{s_t2}, s{s_hh}, 2")
            a(f"s_add_u32 s{s_t2}, s{s_t2}, s{s_w}")
            a(f"s_mul_i32 s{s_t2}, s{s_t2}, 49")
            a(f"v_min_u32 v{t0}, 48, v1")
            a(f"v_add_u32 v{t0}, s{s_t2}, v{t0}")
            a(f"v_mul_u32_u24 v{t1}, 18725, v{t0}")
            a(f"v_lshrrev_b32 v{t1}, 18, v{t1}")
            a(f"v_mul_u32_u24 v{t1}, 1792, v{t1}")
            a(f"v_lshl_add_u32 v{t0}, v{t0}, 7, v{t1}")
            a(f"buffer_load_dword v{vDUM}, v{t0}, {srd(sWIN)}, 0 offen", tag="pf")
        if o.get("upf", 0):
            a(f"s_lshl_b32 s{s_t2}, s{s_sb}, 2")
            a(f"s_add_u32 s{s_t2}, s{s_t2}, s{s_w}")
            a(f"s_lshl_b32 s{s_t2}, s{s_t2}, 17")
            a(f"s_bfe_u32 s{s_t3}, s{s_hh}, 0x10002")
            a(f"s_lshl_b32 s{s_t3}, s{s_t3}, 11")
            a(f"s_add_u32 s{s_t2}, s{s_t2}, s{s_t3}")
            a(f"v_lshrrev_b32 v{t0}, 1, v1")
            a(f"v_and_b32 v{t1}, 1, v1")
            a(f"v_lshlrev_b32 v{t0}, 12, v{t0}")
            a(f"v_lshl_add_u32 v{t0}, v{t1}, 7, v{t0}")
            assert o.get('nobrot', 1)
            a(f"buffer_load_dword v{vDUM}, v{t0}, {srd(sWSP)}, s{s_t2} offen offset:{1024+768}", tag="pf")
        if o.get("opf", 2):
            a(f"s_lshl_b32 s{s_t2}, s{s_hh}, 2")
            a(f"s_add_u32 s{s_t2}, s{s_t2}, s{s_w}")
            a(f"s_mul_i32 s{s_pfs}, s{s_t2}, {49*128}")
            a(f"v_min_u32 v{vPF}, 48, v1")
            a(f"v_lshlrev_b32 v{vPF}, 7, v{vPF}")
            if o.get("opf", 2) == 1: a(f"buffer_load_dword v{vDUM}, v{vPF}, {srd(sWOUT)}, s{s_pfs} offen", tag="pf")
        a(f"s_lshl_b32 s{s_t2}, s{s_w}, 12")
        a(f"s_add_u32 s{s_t2}, s{s_t2}, {EXOFF}")
        a(f"v_add_u32 v{vEXW}, s{s_t2}, v{vLIN}")
        a(f"s_xor_b32 s{s_t2}, s{s_w}, 1")
        a(f"s_lshl_b32 s{s_t2}, s{s_t2}, 12")
        a(f"s_add_u32 s{s_t2}, s{s_t2}, {EXOFF}")
        a(f"v_add_u32 v{vEXR}, s{s_t2}, v{vLIN}")
        a(f"s_mul_i32 s{s_t2}, s{s_hh}, 14")
        a(f"s_lshr_b32 s{s_t3}, s{s_t2}, 6")
        a(f"s_min_u32 s{s_t3}, s{s_t3}, 5")
        a(f"s_mul_i32 s{s_t3}, s{s_t3}, {32*FS}")
        a(f"s_add_u32 s{s_t3}, s{s_t3}, {WS_FKV}")
        a(f"v_mul_u32_u24 v{t1}, {FS}, v1")
        a(f"s_add_u32 s{s_t2}, s{s_t2}, s{s_c0}")
        a(f"s_lshl_b32 s{s_t2}, s{s_t2}, 4")
        a(f"s_mul_i32 s{s_t1}, s{s_w}, {64*7168}")
        a(f"s_add_u32 s{s_t2}, s{s_t2}, s{s_t1}")
        a(f"s_add_u32 s{s_us}, s{s_t2}, {WS_KVT}")
        a(f"s_lshl_b32 s{s_um}, s{s_w}, 12")
        a(f"s_add_u32 s{s_um}, s{s_um}, {UOFF + 2048}")
        a(f"s_mov_b32 s{s_so}, s{s_um}")
        a(f"s_lshl_b32 s{s_pf}, s{s_c0}, 7")
        a(f"s_sub_u32 s{s_pf}, 64, s{s_pf}")
        a(f"s_mov_b32 s{s_it}, 0")
        a(f"s_mov_b32 s{s_yp}, {WS_SIZE}")
        self.hop([8, 9], "L_hop3")
        self.stamp("h_ready")
        self.poll([f"buffer_load_dword v{t2}, v{t1}, {srd(sWS)}, s{s_t3} offen sc1"], [t2], t0, wave=0, nap=o.get("knap", 0))
        a("s_barrier")
        self.stamp("kv_got")
        def u_items():
            out = [f"s_mov_b32 m0, s{s_um}"]
            for q in range(4):
                out.append((f"buffer_load_dwordx4 v{vUD+q}, {srd(sWS)}, s{s_us} offen offset:{1024*(q&3)} sc1 lds", "u"))
            return out
        emit(u_items())
        a(f"s_add_u32 s{s_um}, s{s_um}, {ASZ}")
        a(f"s_add_u32 s{s_us}, s{s_us}, 64")
        a(f"s_sub_u32 vcc_lo, 0, s{s_kh}")
        a(f"s_mov_b32 vcc_hi, vcc_lo")
        if o.get("h1late", 1):
            for g in range(4): emit(h_loads(g, s_h + 1))
        a.wait(vm="u")
        a("s_waitcnt lgkmcnt(0)")
        a("s_barrier")
        self.stamp("u_got")

        def rdF(r):
            b = r & 1
            return [(f"ds_read_b64 v[{FB[b]+4*q+2*h}:{FB[b]+4*q+2*h+1}], v{vF} offset:{512*q + 64*r + 8*h}", f"c{r}_{int(q>4)}") for q in range(8) for h in range(2)]
        def rdG(r):
            b = r & 1
            return [(f"ds_read_b128 {gk}[{GB[b]+4*q}:{GB[b]+4*q+3}], v{vG+(r&3)} offset:{2048*q + 256*(7-r)}", f"c{r}_{int(q>4)}") for q in range(8)]
        def reads(r):
            F, G = rdF(r), rdG(r); out = []
            for q in range(8): out += F[2*q:2*q+2] + [G[q]]
            return out
        def cvt(tiles, src):
            return [f"v_cvt_pk_bf16_f32 v{O+2*x+p}, v{src+4*x+2*p}, v{src+4*x+2*p+1}" for x in tiles for p in range(2)]
        def swaps(x2): return [f"v_permlane16_swap_b32 v{O+4*x2+p}, v{O+4*x2+2+p}" for p in range(2)]
        def store(x2, sreg): return (f"buffer_store_dwordx4 v[{O+4*x2}:{O+4*x2+3}], v{vYS}, {srd(sWS)}, s{sreg} offen offset:{1024*x2} sc1", "yst")
        isvm = lambda it: isinstance(it, tuple) and it[0].startswith("buffer_")
        ORD = [(q + e, q) for q in range(8) for e in range(8 - q)]
        def block(r, lds, oth):
            a = self.a
            b = r & 1; m = 0; hold = []
            lds = list(lds); assert len(lds) <= 36
            a.wait(lg=f"c{r}_{o.get('cw1', 0)}")
            for s0 in range(8):
                if s0 == 5: a.wait(lg=f"c{r}_1")
                for q0 in range(s0 + 1):
                    s, q = s0, q0
                    if o.get("cord", 0) and r not in (0, 7): s, q = ORD[m]
                    e = s - q; d = Y + 4 * s
                    cin = "0" if (r == 0 and q == 0) else f"v[{d}:{d+3}]"
                    a(f"v_mfma_f32_16x16x32_bf16 v[{d}:{d+3}], v[{FB[b]+4*q}:{FB[b]+4*q+3}], {gk}[{GB[b]+4*e}:{GB[b]+4*e+3}], {cin}")
                    hold += oth.get(m, [])
                    n = 0
                    it = lds.pop(0) if lds else None
                    if it is not None:
                        self.put(it); n += 1 if isinstance(it, str) or "read" in it[0] else 2
                    while hold and n < 2: self.put(hold.pop(0)); n += 1
                    m += 1
            assert not hold, (r, hold)
        def lace(rd, extra, first, step):
            out = list(rd)
            for z, it in enumerate(extra):
                p = first + z * step
                while len(out) < p: out.append(None)
                out.insert(p, it)
            return out
        ctouch = (f"global_load_dword v{vDUM}, v{vCP}, s[100:101]", "pf") if o.get("cpf", 2) == 1 and o.get("cpf2", 0) else None
        def prev_out(r, sreg):
            if r == 0: return {3: cvt((4, 5), Y) + swaps(0) + swaps(1) + cvt((6, 7), Y) + swaps(2) + swaps(3)}
            return {}
        def cyc(n):
            if self.stamps and o.get("fine"):
                self.a("s_memtime s[4:5]"); self.a(f"s_add_u32 m0, s{s_it}, {16+n}"); self.a("s_waitcnt lgkmcnt(0)"); self.a(f"v_writelane_b32 v{vST}, s4, m0")
        def trip():
            a = self.a
            ui = u_items()
            st = [store(x, s_yp) for x in range(4)]
            block(0, lace(reads(1), h_loads(4, s_h+1) + h_loads(5, s_h+1) + [ctouch] + st[:2], 2, 5), prev_out(0, s_yp))
            block(1, lace(reads(2), st[2:] + h_loads(6, s_h+1) + h_loads(7, s_h+1), 2, 5), {20: h_valu(0)})
            block(2, lace(reads(3), h_writes(0) + ui[:3], 2, 4), {20: h_valu(1)})
            nx = [f"s_add_u32 s{s_um}, s{s_um}, {ASZ}", f"s_cmp_eq_u32 s{s_it}, 0", f"s_cselect_b32 s{s_um}, s{s_um}, s{s_so}",
                  f"s_cselect_b32 s{s_t0}, 64, s{s_pf}", f"s_add_u32 s{s_us}, s{s_us}, s{s_t0}"]
            ot = [(f"buffer_load_dword v{vDUM}, v{vPF}, {srd(sWOUT)}, s{s_pfs} offen", "pf")] if o.get("opf", 2) == 2 else []
            block(3, lace(reads(4), h_writes(1) + ui[3:] + ot, 2, 4), {16: h_valu(2)})
            block(4, lace(reads(5), h_writes(2) + h_loads(0, s_h+2), 2, 5), {4: nx, 20: h_valu(3)})
            block(5, lace(reads(6), h_writes(3) + h_loads(1, s_h+2), 2, 5), {8: h_valu(4) + h_valu(5)})
            gup = lambda k: [f"v_xor_b32 v{vG+k}, s{s_x+1}, v{vG+k}", f"v_add_u32 v{vG+k}, s{s_g+1}, v{vG+k}"]
            upd = [f"v_add_u32 v{vF}, s{s_f+1}, v{vF}"] + gup(3)
            block(6, lace(reads(7), h_writes(4) + h_writes(5), 2, 4) + h_loads(2, s_h+2), {0: gup(0) + gup(1), 4: h_valu(6) + h_valu(7) + gup(2), 34: upd})
            a.wait(vm="u")
            a("s_barrier")
            w = h_writes(6) + h_writes(7); G = rdG(0); l7 = []
            for z in range(8): l7 += [w[z], G[z]]
            rot = [f"s_mov_b32 s{s_yp}, s{s_y}"]
            for base in (s_y, s_g, s_f, s_x):
                rot += [f"s_mov_b32 s{base+k}, s{base+k+1}" for k in range(0 if base == s_y else 1, 3)]
            fin = [f"s_mov_b32 s{s_h+1}, s{s_h+2}", f"s_add_u32 s{s_it}, s{s_it}, 1", f"s_cmp_lt_u32 s{s_it}, 3"]
            block(7, l7 + rdF(0) + h_loads(3, s_h+2), {1: rot[:8], 16: cvt((0, 1, 2, 3), Y) + rot[8:] + fin,
                                                       34: [f"s_mov_b32 s{s_h+2}, s{s_h+3}", f"s_mov_b32 s{s_h+3}, 0x7fff0000"]})
        emit(reads(0))
        a("s_waitcnt lgkmcnt(0)")
        import copy
        real = self.a
        self.a = copy.deepcopy(real); trip(); vm1, lg1 = list(self.a.vm), list(self.a.lg)
        self.a = real
        pre = [t for t in a.vm]; assert pre == vm1[len(vm1)-len(pre):], (pre, vm1)
        a.vm, a.lg = list(vm1), list(lg1)
        a("L_conv:")
        cyc(0)
        if self.stamps and o.get("fine"): a.lg = list(lg1)
        trip()
        assert (a.vm, a.lg) == (vm1, lg1)
        a("s_cbranch_scc1 L_conv")
        cyc(0)
        st = [store(x, s_yp) for x in range(4)]
        block(0, lace(reads(1), st[:2], 24, 5), prev_out(0, s_yp))
        block(1, lace(reads(2), st[2:], 2, 5), {})
        block(2, reads(3), {})
        block(3, [], {})
        cyc(1)
        SEND, KEEP = 128, 144
        for r in range(16): a(f"v_cndmask_b32 v{SEND+r}, v{Y+16+r}, v{Y+r}, vcc")
        for x in range(4): a(f"ds_write_b128 v{vEXW}, v[{SEND+4*x}:{SEND+4*x+3}] offset:{1024*x}")
        for r in range(16): a(f"v_cndmask_b32 v{KEEP+r}, v{Y+r}, v{Y+16+r}, vcc")
        a("s_waitcnt lgkmcnt(0)")
        a("s_barrier")
        for x in range(4): a(f"ds_read_b128 v[{SEND+4*x}:{SEND+4*x+3}], v{vEXR} offset:{1024*x}")
        a("s_waitcnt lgkmcnt(0)")
        for p in range(8): a(f"v_pk_add_f32 v[{SEND+2*p}:{SEND+2*p+1}], v[{SEND+2*p}:{SEND+2*p+1}], v[{KEEP+2*p}:{KEEP+2*p+1}]")
        emit(cvt((0, 1, 2, 3), SEND) + swaps(0) + swaps(1) + [store(0, s_y), store(1, s_y)])
        a("s_waitcnt vmcnt(0)")
        a("s_barrier")
        a(f"v_lshlrev_b32 v{vDUM}, 2, v1")
        self.flag(s_fy, vDUM, vTAG)
        self.stamp("conv_done")
        self.dump_stamps()
        a(f"s_lshl_b32 s{s_t2}, s{s_hh}, 2")
        a(f"s_add_u32 s{s_t2}, s{s_t2}, s{s_w}")
        a(f"s_cmp_lg_u32 s{s_t2}, 0")
        a("s_cbranch_scc1 L_end")
        a(f"v_mul_u32_u24 v{t0}, {FS}, v1")
        loads = []
        for q in range(4):
            a(f"s_mov_b32 s{80+q}, {WS_FKV + 64*FS*q}")
            loads.append(f"buffer_load_dword v{96+q}, v{t0}, {srd(sWS)}, s{80+q} offen sc1")
        self.poll(loads, list(range(96, 100)), t1)
        a(f"s_mov_b32 s{s_t2}, {WS_EPOCH}")
        self.flag(s_t2, vDUM, vTAG)
        a("L_end:")
        a("s_endpgm")
        a("L_codeend:")
        self.helper_names = self.names

    def build(self):
        a = self.a
        ref = open("gated_mix__ssm_conv_h3__mixer_gmlp__prompt.s.ref").read().split("\n")
        for l in ref:
            if l.startswith(";") and "@launch" not in l: a.raw(l)
            elif not l.startswith(";"): break
        a.raw(header(["@launch grid=(256,1,1) block=(256,1,1) lds=163840"]))
        a.raw(".p2align 12")
        a.raw(kstart(NAME))
        self.prologue()
        self.gemm_wg()
        self.helper_wg()
        a.raw(kdesc(NAME, 512, 256))
        return self.place_pads(a.lines)

    def place_pads(self, lines):
        if not self.pads: return "\n".join(lines) + "\n"
        import subprocess, tempfile, os
        isins = lambda l: l.startswith("    ") and l.strip() and not l.strip().startswith((".", ";"))
        probe = "\n".join(l for l in lines if l != ".p2align 12").replace("L_codeend:", "L_codeend:\n" + "".join(f"L_pad{k}:\n" for k in self.pads))
        with tempfile.TemporaryDirectory() as d:
            open(d + "/p.s", "w").write(probe + "\n")
            subprocess.run(["clang", "-x", "assembler", "-target", "amdgcn-amd-amdhsa", "-mcpu=gfx950", "-c", d + "/p.s", "-o", d + "/p.o"], check=True)
            dis = subprocess.run(["llvm-objdump", "-d", "--mcpu=gfx950", d + "/p.o"], capture_output=True, text=True).stdout
        addrs = [int(l.split("//")[1].split(":")[0], 16) for l in dis.split("\n") if "//" in l]
        assert len(addrs) == sum(map(bool, map(isins, lines)))
        out = []; n = 0; todo = sorted(self.pads); shift = ENTRY_OFF; masked = False
        for l in lines:
            if isins(l):
                if todo and not masked and addrs[n] + shift >= 4096 * todo[0] + (self.o.get("padoff", 0) if todo[0] < 8 else 0):
                    k = todo.pop(0)
                    out += [f"L_pad{k}:", f"    s_cbranch_execz {self.pads[k]}"]; shift += 4
                if "exec" in l.split(",")[0]: masked = "-1" not in l
                n += 1
            out.append(l)
            if l == ".p2align 12" and n: shift += (-(addrs[n] + shift)) % 4096
        assert not todo, todo
        return "\n".join(out) + "\n"

if __name__ == "__main__":
    import argparse
    ap = argparse.ArgumentParser()
    ap.add_argument("-o", default="gated_mix__ssm_conv_h3__mixer_gmlp__prompt.s")
    ap.add_argument("--stamps", action="store_true")
    ap.add_argument("--npre", type=int, default=16)
    ap.add_argument("--opt", action="append", default=[])
    args = ap.parse_args()
    g = Gen(stamps=args.stamps, npre=args.npre, opts={o.split("=")[0]: int(o.split("=")[1]) for o in args.opt})
    t = g.build()
    open(args.o, "w").write(t)
    print("lines", t.count("\n"), "pad states", g.a.npad, "max vm", g.a.maxvm, g.info)
```

```python
import sys, struct
from asmlib import *

NAME = "gated_mix__ssm_conv_h3__mixer_gmlp__prompt_kernel"

WS_EPOCH = 0x0
FS       = 128
WS_FKV   = 0x1000
WS_FY    = WS_FKV + 224 * FS
WS_FZ2   = 0x10000
WS_FP    = 0x18000
WS_G     = 0x20000
WS_TS    = 0x40000
WS_STATS = 0x80000
WS_KVT   = 0x100000
WS_YT    = 0x300000
WS_Z2N   = 0x500000
WS_P     = 0x900000
WS_X     = 0xD00000
WS_SIZE  = 0x1400000

ENTRY_OFF = 0x300
REGION = 40960
SPIN = 20000

def f2u(x): return struct.unpack("<I", struct.pack("<f", x))[0]

sQ, sK, sV, sSH, sWIN, sWSP, sWOUT, sWS, sOUT, sGW, sBSP, sH, sD = 8, 12, 16, 20, 24, 28, 32, 36, 40, 44, 48, 52, 56
s_i, s_j, s_th, s_dj, s_w, s_wb, s_tag = 60, 61, 62, 63, 64, 65, 66
s_t0, s_t1, s_t2, s_t3, s_cnt, s_so, s_so2 = 67, 68, 69, 70, 71, 72, 73
s_ts = 4
s_ca = 74
s_aw, s_ar, s_bw, s_br = 81, 85, 93, 97
s_jp, s_ff, s_xs, s_xr, s_hi = sH, sH + 1, sH + 2, sK, sK + 2
vST = 31
s_sb = 3
def srd(b): return f"s[{b}:{b+3}]"

class Gen:
    def __init__(self, stamps=False, npre=16, opts=None):
        self.a = Asm()
        self.stamps = stamps
        self.nst = 0
        self.npre = npre
        self.o = opts or {}
        self.skip = set()
        self.waited = False
        self.pads = {}

    def stamp(self, name):
        if self.o.get("probe_" + name):
            self.a("s_memrealtime s[6:7]"); self.a("s_waitcnt lgkmcnt(0)")
        if not self.stamps or name in self.skip: return
        a = self.a
        a(f"s_memrealtime s[{s_ts}:{s_ts+1}]")
        a("s_waitcnt lgkmcnt(0)")
        a(f"v_writelane_b32 v{vST}, s{s_ts}, {self.nst}")
        self.names.append(name)
        self.nst += 1
        assert self.nst <= 32

    def dump_stamps(self):
        if not self.stamps: return
        a = self.a
        a(f"s_lshl_b32 s{s_t0}, s2, 2")
        a(f"s_add_u32 s{s_t0}, s{s_t0}, s{s_w}")
        a(f"s_lshl_b32 s{s_t0}, s{s_t0}, 7")
        a(f"s_add_u32 s{s_t0}, s{s_t0}, {WS_TS}")
        a("v_lshlrev_b32 v30, 2, v1")
        a("s_mov_b32 exec_hi, 0")
        a(f"buffer_store_dword v{vST}, v30, {srd(sWS)}, s{s_t0} offen")
        a("s_mov_b64 exec, -1")

    def poll(self, loads, tagregs, vt, wave=None, issued=False, vtag=None, nap=0):
        a = self.a
        L = a.label("L_poll"); Ld = a.label("L_polld")
        if wave is not None:
            vm_before = list(a.vm)
            a(f"s_cmp_lg_u32 s{s_w}, {wave}")
            a(f"s_cbranch_scc1 {Ld}")
        a(f"s_mov_b32 s{s_cnt}, {SPIN}")
        a.fence()
        if issued:
            Lc = a.label("L_pollc")
            a.wait(vm=issued)
            if wave is None: vm_before = list(a.vm)
            a(f"s_branch {Lc}")
        a(f"{L}:")
        for l in loads: a(l)
        a("s_waitcnt vmcnt(0)")
        if issued: a(f"{Lc}:")
        if len(tagregs) == 1:
            a(f"v_cmp_ne_u32 vcc, s{s_tag}, v{tagregs[0]}")
        else:
            if vtag is None:
                a(f"v_xor_b32 v{vt}, s{s_tag}, v{tagregs[0]}")
                for r in tagregs[1:]:
                    a(f"v_bitop3_b32 v{vt}, v{vt}, v{r}, s{s_tag} bitop3:0xf6")
            else:
                for r in tagregs: a(f"v_xor_b32 v{r}, v{vtag}, v{r}")
                a(f"v_or_b32 v{vt}, v{tagregs[0]}, v{tagregs[1]}")
                for z in range(2, len(tagregs), 2): a(f"v_or3_b32 v{vt}, v{vt}, v{tagregs[z]}, v{tagregs[min(z+1, len(tagregs)-1)]}")
                a(f"v_and_b32 v{vt}, 0xff, v{vt}")
            a(f"v_cmp_ne_u32 vcc, 0, v{vt}")
        a("s_cmp_eq_u64 vcc, 0")
        a(f"s_cbranch_scc1 {Ld}")
        if nap: a(f"s_sleep {nap}")
        a(f"s_sub_u32 s{s_cnt}, s{s_cnt}, 1")
        a(f"s_cmp_lg_u32 s{s_cnt}, 0")
        a(f"s_cbranch_scc1 {L}")
        a(f"{Ld}:")
        if wave is not None or issued: a.vm = vm_before

    def flag(self, soff_reg, vz, vtag):
        a = self.a
        a("s_mov_b32 exec_hi, 0")
        a(f"buffer_store_dword v{vtag}, v{vz}, {srd(sWS)}, s{soff_reg} offen sc1", tag="flag")
        a("s_mov_b32 exec_hi, -1")
    def only_wave(self, sreg, wave):
        return [f"s_cmp_eq_u32 s{s_w}, {wave}", f"s_cselect_b32 s{sreg}, s{sreg}, {WS_SIZE}"]

    def hop(self, pages, name):
        if not self.o.get("hop", 1): return
        a = self.a
        a("s_mov_b64 exec, 0")
        for wv, k in enumerate(pages):
            self.pads[k] = name
            a(f"s_cmp_eq_u32 s{s_w}, {wv}")
            a(f"s_cbranch_scc1 L_pad{k}")
        a(f"{name}:")
        a("s_mov_b64 exec, -1")

    def mk_srd(self, b, nbytes):
        a = self.a
        a(f"s_mov_b32 s{b+2}, {nbytes}")
        a(f"s_mov_b32 s{b+3}, 0x20000")

    def gelu(self, base, n, vt, vC0, vC1, vONE):
        o = []
        for b in range(base, base + n, 8):
            for p in range(4): o.append(f"v_pk_mul_f32 v[{vt+2*p}:{vt+2*p+1}], v[{b+2*p}:{b+2*p+1}], v[{b+2*p}:{b+2*p+1}]")
            for p in range(4): o.append(f"v_pk_fma_f32 v[{vt+2*p}:{vt+2*p+1}], v[{vt+2*p}:{vt+2*p+1}], v[{vC1}:{vC1+1}], v[{vC0}:{vC0+1}]")
            for p in range(4): o.append(f"v_pk_mul_f32 v[{vt+2*p}:{vt+2*p+1}], v[{vt+2*p}:{vt+2*p+1}], v[{b+2*p}:{b+2*p+1}]")
            for p in range(8): o.append(f"v_exp_f32 v{vt+p}, v{vt+p}")
            for p in range(4): o.append(f"v_pk_add_f32 v[{vt+2*p}:{vt+2*p+1}], v[{vt+2*p}:{vt+2*p+1}], v[{vONE}:{vONE+1}]")
            for p in range(8): o.append(f"v_rcp_f32 v{vt+p}, v{vt+p}")
            for p in range(4): o.append(f"v_pk_mul_f32 v[{b+2*p}:{b+2*p+1}], v[{b+2*p}:{b+2*p+1}], v[{vt+2*p}:{vt+2*p+1}]")
        return o

    def put(self, it):
        if callable(it): it()
        elif isinstance(it, tuple): self.a(it[0], tag=it[1])
        else: self.a(it)
    def emit(self, lst):
        for it in lst: self.put(it)
    def weave(self, fg, bg, every):
        acc = 0.0
        for it in fg:
            self.put(it)
            acc += 1.0 / every
            while acc >= 1.0 and bg:
                self.put(bg.pop(0)); acc -= 1.0
    def wvm(self, tags): return lambda: self.a.wait(vm=tags)
    def wlg(self, tags): return lambda: self.a.wait(lg=tags)

    def prologue(self):
        a = self.a
        a("s_cmp_ge_u32 s2, 256")
        a("s_cbranch_scc1 L_end")
        for b, off in ((sK, 8), (sV, 16), (sSH, 24), (sQ, 0), (sWIN, 56), (sWS, 112), (sWSP, 64), (sBSP, 72), (sWOUT, 80), (sGW, 88), (sOUT, 96), (sH, 32), (sD, 40)):
            a(f"s_load_dwordx2 s[{b}:{b+1}], s[0:1], {off}")
        if self.stamps:
            a(f"s_memrealtime s[{s_ts}:{s_ts+1}]")
        if self.o.get("padto"):
            a("s_memrealtime s[6:7]")
        a("v_lshrrev_b32 v2, 6, v0")
        a("v_and_b32 v1, 63, v0")
        if self.o.get("cpf", 2) == 2:
            a("s_getpc_b64 s[100:101]")
            a("L_pc:")
            a("s_lshr_b32 s3, s2, 3")
            a("v_lshl_add_u32 v3, s3, 2, v2")
            a("v_lshl_add_u32 v3, v1, 7, v3")
            a("v_lshlrev_b32 v3, 7, v3")
            a.raw(f"    s_sub_u32 s100, s100, L_pc-{NAME}")
            a("s_subb_u32 s101, s101, 0")
            a.raw(f"    v_min_u32 v3, L_codeend-{NAME}-4, v3")
            a("s_mov_b64 exec, 7")
            a("global_load_dword v255, v3, s[100:101]")
            a("s_mov_b64 exec, -1")
        a(f"v_readfirstlane_b32 s{s_w}, v2")
        for b, n in ((sK, 1835008), (sV, 1835008), (sSH, 3584), (sQ, 1835008), (sWIN, 1605632), (sWS, WS_SIZE), (sWSP, 8388608),
                     (sBSP, 4096), (sWOUT, 802816), (sGW, 896), (sOUT, 1835008), (sH, 1835008), (sD, 896)):
            self.mk_srd(b, n)
        a(f"s_lshr_b32 s{s_t0}, s2, 3")
        a(f"s_and_b32 s{s_t1}, s2, 7")
        a(f"s_cmp_ge_u32 s{s_t0}, 28")
        a("s_cbranch_scc1 L_helper")

    def get_tag(self, vt, vtag):
        a = self.a
        a(f"v_readfirstlane_b32 s{s_tag}, v{vt}")
        a(f"s_mul_i32 s{s_tag}, s{s_tag}, 0x9E3779B1")
        a(f"s_add_u32 s{s_tag}, s{s_tag}, 0x7F4A7C15")
        a(f"v_mov_b32 v{vtag}, s{s_tag}")

    def gemm_wg(self):
        a = self.a; o = self.o
        emit, weave, wvm, wlg = self.emit, self.weave, self.wvm, self.wlg
        self.names = []; self.nst = 0
        vZ, vTAG = 2, 3
        vXD = 4
        vWD = 8
        vTR = 10
        vXR = 14
        vLIN, vL8 = 16, 17
        vBS = 18
        vC0, vC1, vONE = 20, 22, 24
        vAD = 26
        vGW = 30
        vWD1 = 240
        vT = 248
        ACC2, ACC1, WF, XF = 32, 64, 96, 144
        acc = lambda base, ft, nt: base + (ft * 2 + nt) * 4
        pr = lambda b: f"v[{b}:{b+1}]"
        WOFF, GWOFF = 0, 14336
        ASLOT = [20480, 24576, 28672, 32768]
        XS5 = [ASLOT[3], 16384, ASLOT[0], ASLOT[1], ASLOT[2]]
        XSLOT = lambda c: XS5[c % 5]
        KVD, QOFF, GATE = 36864, 38912, 15360
        NB = 5
        BSLOT = lambda st: ((st + 4) % NB) * 4096
        t0, t1, t2, t3 = vT + 3, vT + 4, vT + 5, vT + 6

        a(f"s_mul_i32 s{s_t2}, s{s_t0}, 37")
        a(f"s_lshr_b32 s{s_t2}, s{s_t2}, 8")
        a(f"s_mul_i32 s{s_t3}, s{s_t2}, 7")
        a(f"s_sub_u32 s{s_dj}, s{s_t0}, s{s_t3}")
        a(f"s_and_b32 s{s_th}, s{s_t1}, 1")
        a(f"s_lshr_b32 s{s_t1}, s{s_t1}, 1")
        a(f"s_lshl_b32 s{s_t1}, s{s_t1}, 2")
        a(f"s_add_u32 s{s_i}, s{s_t1}, s{s_t2}")
        a(f"s_mul_i32 s{s_j}, s{s_th}, 7")
        a(f"s_add_u32 s{s_j}, s{s_j}, s{s_dj}")
        a(f"s_mul_i32 s{s_wb}, s{s_w}, {REGION}")
        a(f"v_mov_b32 v{vZ}, 0")
        a(f"v_lshlrev_b32 v{vLIN}, 4, v1")
        a(f"s_lshl_b32 s{s_t2}, s{s_t2}, 1")
        a(f"s_add_u32 s{s_t2}, s{s_t2}, s{s_dj}")
        if o.get("norot1"): a(f"s_mov_b32 s{s_t2}, 0")
        a(f"s_lshl_b32 s{s_t2}, s{s_t2}, 7")
        a(f"s_sub_u32 s{s_t3}, s{s_t2}, 896")
        a(f"s_cmp_ge_u32 s{s_t2}, 896")
        a(f"s_cselect_b32 s{s_ca}, s{s_t3}, s{s_t2}")
        def next_ca(c):
            return [f"s_add_u32 s{s_ca+c}, s{s_ca+c-1}, 128", f"s_cmp_eq_u32 s{s_ca+c}, 896", f"s_cselect_b32 s{s_ca+c}, 0, s{s_ca+c}"]

        KR, VR, SKR, DR = 32, 44, 52, 43
        KU, VU, SU, KVR, KVP = 56, 78, 94, 102, 120
        vKO, vKO2, vSO = vT, vT + 1, vT + 2
        def kv_issue(pre_kv):
            a(f"s_lshl_b32 s{s_t0}, s{s_i}, 1")
            a(f"s_add_u32 s{s_t0}, s{s_t0}, s{s_th}")
            a(f"s_lshl_b32 s{s_t1}, s{s_t0}, 2")
            a(f"s_add_u32 s{s_t1}, s{s_t1}, s{s_w}")
            a(f"s_mul_i32 s{s_t2}, s{s_t1}, {16*896}")
            a(f"s_lshl_b32 s{s_cnt}, s{s_dj}, 7")
            a(f"s_add_u32 s{s_t2}, s{s_t2}, s{s_cnt}")
            a(f"v_lshrrev_b32 v{vKO}, 5, v1")
            a(f"v_and_b32 v{vSO}, 31, v1")
            a(f"v_mul_u32_u24 v{vKO}, {8*896}, v{vKO}")
            a(f"v_lshl_add_u32 v{vKO}, v{vSO}, 2, v{vKO}")
            a(f"v_add_u32 v{vKO}, s{s_t2}, v{vKO}")
            a(f"v_subrev_u32 v{vKO2}, {3*896}, v{vKO}")
            a(f"v_lshlrev_b32 v{vT-1}, 2, v{vSO}")
            a(f"s_lshl_b32 s{s_t3}, s{s_dj}, 9")
            a(f"v_lshl_add_u32 v{vSO}, v{vSO}, 4, s{s_t3}")
            a(f"s_mov_b32 s{s_so}, {4*896}")
            self.first_wait()
            emit(pre_kv)
            for r in range(3): a(f"buffer_load_dword v{KR+r}, v{vKO2}, {srd(sK)}, 0 offen offset:{896*r}", tag="kv")
            for r in range(8):
                so = "0" if r < 4 else f"s{s_so}"
                a(f"buffer_load_dword v{KR+3+r}, v{vKO}, {srd(sK)}, {so} offen offset:{896*(r&3)}", tag="kv")
                a(f"buffer_load_dword v{VR+r}, v{vKO}, {srd(sV)}, {so} offen offset:{896*(r&3)}", tag="kv")
            a(f"buffer_load_dwordx4 v[{SKR}:{SKR+3}], v{vSO}, {srd(sSH)}, 0 offen", tag="kv")
            a(f"buffer_load_dword v{DR}, v{vT-1}, {srd(sD)}, s{s_cnt} offen", tag="kv")
            a(f"buffer_load_dword v{vTAG}, v{vZ}, {srd(sWS)}, 0 offen sc1", tag="kv")

        def dma_addr():
            a(f"v_lshrrev_b32 v{t0}, 5, v1")
            a(f"v_bfe_u32 v{t1}, v1, 4, 1")
            a(f"v_lshl_or_b32 v{t0}, v{t1}, 1, v{t0}")
            a(f"v_and_b32 v{t1}, 7, v1")
            a(f"v_xor_b32 v{t1}, v{t1}, v{t0}")
            a(f"v_lshlrev_b32 v{t1}, 4, v{t1}")
            a(f"v_lshrrev_b32 v{t2}, 3, v1")
            a(f"s_lshl_b32 s{s_sb}, s{s_i}, 2")
            a(f"s_add_u32 s{s_sb}, s{s_sb}, s{s_w}")
            a(f"s_mul_i32 s{s_t2}, s{s_sb}, {32*896}")
            a(f"v_mul_u32_u24 v{vXD}, 896, v{t2}")
            a(f"v_add3_u32 v{vXD}, v{vXD}, v{t1}, s{s_t2}")
            a(f"v_xor_b32 v{vXD+1}, 64, v{vXD}")
            a(f"v_add_u32 v{vXD+1}, {8*896-1024}, v{vXD+1}")
            a(f"v_add_u32 v{vXD+2}, {16*896-2048}, v{vXD}")
            a(f"v_add_u32 v{vXD+3}, {16*896-2048}, v{vXD+1}")
            a(f"v_bfe_u32 v{t3}, v1, 4, 1")
            a(f"s_and_b32 s{s_t2}, s{s_w}, 2")
            a(f"v_or_b32 v{t3}, s{s_t2}, v{t3}")
            a(f"v_lshlrev_b32 v{t3}, 1, v{t3}")
            a(f"v_xor_b32 v{t3}, v{t3}, v1")
            a(f"v_and_b32 v{t3}, 7, v{t3}")
            a(f"v_lshlrev_b32 v{t3}, 4, v{t3}")
            a(f"s_mul_i32 s{s_t2}, s{s_w}, {8*3584}")
            a(f"s_lshl_b32 s{s_t3}, s{s_j}, 7")
            a(f"s_add_u32 s{s_t2}, s{s_t2}, s{s_t3}")
            a(f"s_add_u32 s{s_t2}, s{s_t2}, 1792")
            a(f"v_mul_u32_u24 v{vWD}, 3584, v{t2}")
            a(f"v_add3_u32 v{vWD}, v{vWD}, v{t3}, s{s_t2}")
            a(f"v_add_u32 v{vWD+1}, {32*3584-1024}, v{vWD}")

        def dma_x(c):
            out = [f"s_add_u32 m0, s{s_wb}, {XSLOT(c)}"]
            for q in range(4):
                out.append((f"buffer_load_dwordx4 v{vXD+q}, {srd(sQ)}, s{s_ca+c} offen offset:{q*1024} lds", f"x{c}"))
            return out
        def dma_w(c, half):
            out = [f"s_add_u32 m0, s{s_wb}, {WOFF + c*2048}", f"s_mul_i32 s{s_so2}, s{s_ca+c}, 1792"]
            for q in range(2):
                out.append((f"buffer_load_dwordx4 v{(vWD if half else vWD1)+q}, {srd(sWIN)}, s{s_so2} offen offset:{q*1024} lds", f"w{half}_{c}"))
            return out
        NIF = o.get("nif", 3)
        dma_addr()
        emit(next_ca(1))
        first = {0: dma_w(0, 1) + dma_w(1, 1) + dma_x(0), 1: dma_x(0) + dma_w(0, 1) + dma_w(1, 1)}[o.get("ford", 0)]
        kpre = o.get("kpre", 0)
        kv_issue(first[:kpre])
        if o.get("fine"): self.stamp("kv_iss")
        if o.get("kbar", 1): a("s_barrier")
        kpost = o.get("kpost", 8)
        emit(first[kpre:kpost])
        for c in range(2, 7): emit(next_ca(c))
        dma_xw = lambda c: dma_x(c) + (dma_w(c, 1) if c > 1 else [])

        a(f"s_lshl_b32 s{s_t2}, s{s_sb}, 17")
        a(f"v_lshlrev_b32 v{vAD}, 12, v{t2}")
        a(f"v_add3_u32 v{vAD}, v{vAD}, v{t1}, s{s_t2}")
        a(f"v_xor_b32 v{vAD+1}, 64, v{vAD}")
        a(f"v_add_u32 v{vAD+1}, {8*4096-1024}, v{vAD+1}")
        a(f"v_add_u32 v{vAD+2}, {16*4096-2048}, v{vAD}")
        a(f"v_add_u32 v{vAD+3}, {16*4096-2048}, v{vAD+1}")
        a(f"v_bfe_u32 v{t1}, v1, 1, 1")
        a(f"v_bfe_u32 v{t2}, v1, 2, 1")
        a(f"v_lshl_or_b32 v{t1}, v{t1}, 1, v{t2}")
        a(f"v_bfe_u32 v{t2}, v1, 3, 1")
        a(f"v_lshl_or_b32 v{t1}, v{t2}, 2, v{t1}")
        a(f"v_xor_b32 v{t1}, v{t1}, v{t0}")
        a(f"v_and_b32 v{t2}, 15, v1")
        a(f"v_lshlrev_b32 v{t2}, 7, v{t2}")
        a(f"v_lshl_add_u32 v{t1}, v{t1}, 4, v{t2}")
        a(f"v_add_u32 v{vXR}, s{s_wb}, v{t1}")
        a(f"v_xor_b32 v{vXR+1}, 64, v{vXR}")
        a(f"v_mul_u32_u24 v{t0}, {REGION}, v{t0}")
        a(f"v_bfe_u32 v{t1}, v1, 2, 2")
        a(f"v_lshl_add_u32 v{t0}, v{t1}, 7, v{t0}")
        a(f"v_and_b32 v{t1}, 3, v1")
        a(f"v_lshl_add_u32 v{t0}, v{t1}, 3, v{t0}")
        a(f"v_bfe_u32 v{t1}, v1, 3, 2")
        a(f"v_lshl_add_u32 v{vTR}, v{t1}, 5, v{t0}")
        for ft in range(1, 4): a(f"v_xor_b32 v{vTR+ft}, {32*ft}, v{vTR}")
        c0 = -2.0 * 0.7978845608028654 * 1.4426950408889634
        for r, val in ((vC0, c0), (vC1, c0 * 0.044715), (vONE, 1.0)):
            a(f"v_mov_b32 v{r}, {f2u(val):#x}"); a(f"v_mov_b32 v{r+1}, {f2u(val):#x}")
        a(f"v_lshlrev_b32 v{vL8}, 2, v1")
        for q in range(2): a(f"v_subrev_u32 v{vWD1+q}, 1792, v{vWD+q}")
        a(f"s_and_b32 s{s_t2}, s{s_i}, {0 if o.get('nobrot', 1) else 3}")
        a(f"s_add_u32 s{s_t2}, s{s_t2}, s{s_dj}")
        a(f"s_lshr_b32 s{s_t3}, s{s_dj}, 2")
        a(f"s_lshl_b32 s{s_cnt}, s{s_th}, 1")
        a(f"s_add_u32 s{s_t3}, s{s_t3}, s{s_cnt}")
        a(f"s_xor_b32 s{s_jp}, s{s_th}, 1")
        a(f"s_mul_i32 s{s_jp}, s{s_jp}, 7")
        a(f"s_add_u32 s{s_jp}, s{s_jp}, s{s_dj}")
        CROT = o.get("crot", 0)
        if CROT:
            a(f"s_and_b32 s{s_t3}, s{s_w}, 1")
            a(f"s_lshl_b32 s{s_t3}, s{s_t3}, 12")
            a(f"s_lshl_b32 s{s_cnt}, s{s_th}, 17")
            a(f"s_add_u32 s{s_t3}, s{s_t3}, s{s_cnt}")
            a(f"s_add_u32 s{s_t3}, s{s_t3}, {WS_Z2N}")
            for n, sj in ((0, s_jp), (2, s_j)):
                a(f"s_lshl_b32 s{s_bw+n}, s{sj}, 18")
                a(f"s_add_u32 s{s_bw+n}, s{s_bw+n}, s{s_t3}")
                a(f"s_add_u32 s{s_bw+n+1}, s{s_bw+n}, 65536")
            a(f"s_lshl_b32 s{s_aw}, s{s_th}, 11")
            a(f"s_add_u32 s{s_aw+1}, s{s_aw}, 1024")
            for k in range(8):
                a(f"s_add_u32 s{s_cnt}, s{s_dj}, {k}")
                a(f"s_and_b32 s{s_cnt}, s{s_cnt}, 7")
                a(f"s_lshl_b32 s{s_ar+k}, s{s_cnt}, 7")
            a(f"s_bitcmp1_b32 s{s_w}, 1")
            for n in range(4): a(f"s_cselect_b32 s{s_br+n}, s{s_ar+2*n+1}, s{s_ar+2*n}")
            for n in range(4): a(f"s_lshl_b32 s{s_br+n}, s{s_br+n}, 6")
        for n in range(0 if CROT else 4):
            if n in (0, 2):
                a(f"s_lshl_b32 s{s_so2}, s{s_jp if n == 0 else s_j}, 6")
                a(f"s_add_u32 s{s_so2}, s{s_so2}, s{s_w}")
                a(f"s_lshl_b32 s{s_so2}, s{s_so2}, 12")
                a(f"s_add_u32 s{s_so2}, s{s_so2}, {WS_Z2N}")
            a(f"s_xor_b32 s{s_cnt}, s{s_t3}, {n & 1}")
            if n < 2: a(f"s_lshl_b32 s{s_aw+n}, s{s_cnt}, 10")
            a(f"s_lshl_b32 s{s_cnt}, s{s_cnt}, 16")
            a(f"s_add_u32 s{s_bw+n}, s{s_cnt}, s{s_so2}")
            a(f"s_add_u32 s{s_cnt}, s{s_t2}, {n}")
            a(f"s_and_b32 s{s_cnt}, s{s_cnt}, 3")
            a(f"s_lshl_b32 s{s_ar+2*n}, s{s_cnt}, 8")
            a(f"s_add_u32 s{s_ar+2*n+1}, s{s_ar+2*n}, 128")
            a(f"s_lshl_b32 s{s_br+n}, s{s_cnt}, 14")
        for sr, sj in ((s_xs, s_jp), (s_xr, s_j)):
            a(f"s_mul_i32 s{sr}, s{s_i}, 14")
            a(f"s_add_u32 s{sr}, s{sr}, s{sj}")
            a(f"s_lshl_b32 s{sr}, s{sr}, 2")
            a(f"s_add_u32 s{sr}, s{sr}, s{s_w}")
            a(f"s_mul_i32 s{sr}, s{sr}, 5120")
            a(f"s_add_u32 s{sr}, s{sr}, {WS_X}")
            a(f"s_add_u32 s{sr+1}, s{sr}, 4096")
        a(f"s_movk_i32 s{s_ff}, 0xff")
        a(f"s_mov_b32 s{s_hi}, 0xffff0000")

        def unpack(dst, src):
            a(f"v_lshlrev_b32 v{dst}, 16, v{src}"); a(f"v_and_b32 v{dst+1}, 0xffff0000, v{src}")
        if o.get("hopa", 0): self.hop([1, 2, 3, 4], "L_hop1")
        self.stamp("issued")
        a.wait(vm="kv")
        self.stamp("kv_loaded")
        emit(first[max(kpre, kpost):])
        self.get_tag(vTAG, vTAG)
        vTB = vGW
        a(f"v_lshlrev_b32 v{vTB}, 3, v1")
        a(f"v_bfe_u32 v{vTB}, v{vTAG}, v{vTB}, 8")
        real_a = a; fg = []
        class Rec:
            def __call__(self_, l, tag=None): fg.append((l, tag) if tag else l)
        a = Rec()
        for jj in range(4):
            for ch in range(2):
                src = SKR + 2 * ch + (jj >> 1)
                if jj & 1: a(f"v_and_b32 v{SU+2*jj+ch}, 0xffff0000, v{src}")
                else: a(f"v_lshlrev_b32 v{SU+2*jj+ch}, 16, v{src}")
        for r in range(11): unpack(KU + 2 * r, KR + r)
        for r in range(8): unpack(VU + 2 * r, VR + r)
        for jj in range(4):
            for r in range(8):
                kk = KU + 2 * (r + 3 - jj)
                if jj == 0: a(f"v_pk_mul_f32 {pr(KVR+2*r)}, {pr(kk)}, {pr(SU)}")
                else: a(f"v_pk_fma_f32 {pr(KVR+2*r)}, {pr(kk)}, {pr(SU+2*jj)}, {pr(KVR+2*r)}")
        for r in range(8): a(f"v_pk_mul_f32 {pr(KVR+2*r)}, {pr(KVR+2*r)}, {pr(VU+2*r)}")
        for ch in range(2):
            for d in range(4):
                a(f"v_cvt_pk_bf16_f32 v{KVP+4*ch+d}, v{KVR+2*(7-2*d)+ch}, v{KVR+2*(6-2*d)+ch}")
        a(f"s_mul_i32 s{s_t2}, s{s_t1}, {2*7168}")
        a(f"s_lshl_b32 s{s_t3}, s{s_dj}, 10")
        a(f"s_add_u32 s{s_t2}, s{s_t2}, s{s_t3}")
        a(f"s_add_u32 s{s_t2}, s{s_t2}, {WS_KVT}")
        a(f"v_lshrrev_b32 v{t0}, 5, v1")
        a(f"v_mul_u32_u24 v{t1}, {7168-512}, v{t0}")
        a(f"v_add_u32 v{t1}, v{t1}, v{vLIN}")
        for ch in range(2):
            a(f"buffer_store_dwordx4 v[{KVP+4*ch}:{KVP+4*ch+3}], v{t1}, {srd(sWS)}, s{s_t2} offen offset:{512*ch} sc1", tag="kvst")
        a(f"s_lshl_b32 s{s_t3}, s{s_dj}, 5")
        a(f"s_add_u32 s{s_t1}, s{s_t0}, s{s_t3}")
        a(f"s_mul_i32 s{s_t1}, s{s_t1}, {FS}")
        a(f"s_add_u32 s{s_so}, s{s_t1}, {WS_FKV}")
        fg += self.only_wave(s_so, 0)
        unpack(SU, DR)
        for r in range(8): a(f"v_pk_mul_f32 {pr(KVR+2*r)}, {pr(KVR+2*r)}, {pr(SU)}")
        a(f"v_bfe_u32 v{t1}, v1, 3, 2")
        a(f"v_mul_u32_u24 v{t1}, {REGION}, v{t1}")
        a(f"v_lshl_add_u32 v{t1}, v{t0}, 4, v{t1}")
        a(f"v_and_b32 v{t0}, 7, v1")
        a(f"v_lshl_add_u32 v{t1}, v{t0}, 8, v{t1}")
        a(f"v_and_b32 v{t0}, 3, v1")
        a(f"v_xor_b32 v{t0}, s{s_w}, v{t0}")
        a(f"v_lshl_add_u32 v{t1}, v{t0}, 5, v{t1}")
        for ch in range(2):
            for d in range(4):
                a(f"v_cvt_pk_bf16_f32 v{KU+4*ch+d}, v{KVR+4*d+ch}, v{KVR+4*d+2+ch}")
            a(f"ds_write_b128 v{t1}, v[{KU+4*ch}:{KU+4*ch+3}] offset:{KVD + 128*ch}", tag="kvd")
        a = real_a
        fg2 = []
        for it in fg:
            if isinstance(it, str) and it.startswith("s_cselect"): fg2[-1] = fg2[-1] + "\n" + it
            else: fg2.append(it)
        cutp = max(z for z, it in enumerate(fg2) if isinstance(it, tuple) and it[1] == "kvst") + 1
        n1 = o.get("n1", 2)
        bg = []
        for c in range(1, n1): bg += dma_xw(c)
        weave(fg2[:cutp], bg, o.get("wv0", 8)); emit(bg)
        self.stamp("kv_st")
        bg = []
        for c in range(n1, NIF): bg += dma_xw(c)
        weave(fg2[cutp:], bg, o.get("wv0b", 3)); emit(bg)
        if not o.get("hopa", 0): self.hop([1, 2, 3, 4], "L_hop1")
        self.hop([5, 6], "L_hop2")
        self.stamp("kv_done")

        def read_x(c):
            out = []
            for uu in range(2):
                for nt in range(2):
                    r = XF + ((2 * c + uu) * 2 + nt) * 4
                    out.append((f"ds_read_b128 a[{r}:{r+3}], v{vXR+uu} offset:{XSLOT(c) + nt*2048}", f"xr{2*c+uu}"))
            return out
        def tr_w(u, buf, h=2):
            out = []
            for ft in range(4):
                for hh in range(2):
                    r = WF + buf * 16 + ft * 4 + hh * 2
                    out.append((f"ds_read_b64_tr_b16 v[{r}:{r+1}], v{vTR+ft} offset:{WOFF + u*1024 + hh*512}", f"wr{h}_{u}_{ft}"))
            return out
        def mfma1(base, u, buf, gaps, waits=(0, 2)):
            for ft in range(4):
                if ft in waits:
                    upto = min([x for x in waits if x > ft] + [4])
                    a.wait(lg=[f"wr{2 if base == ACC2 else 1}_{u}_{x}" for x in range(upto)] + [f"xr{u}"])
                for nt in range(2):
                    d = acc(base, ft, nt); wr = WF + buf * 16 + ft * 4; xr = XF + (u * 2 + nt) * 4
                    cin = "0" if u == 0 else f"v[{d}:{d+3}]"
                    a(f"v_mfma_f32_16x16x32_bf16 v[{d}:{d+3}], v[{wr}:{wr+3}], a[{xr}:{xr+3}], {cin}")
                    emit(gaps[2 * ft + nt])
        isvm = lambda it: isinstance(it, tuple) and it[0].startswith("buffer_")
        def spread(items, ngaps):
            gaps = [[] for _ in range(ngaps)]
            nv = sum(map(isvm, items)); k = 0; pend = []; last = -1
            for it in items:
                if isvm(it):
                    m = max(((k + 1) * ngaps) // nv - 1, 0); k += 1
                    for z, x in enumerate(pend): gaps[min(max(last + 1, m - len(pend) + z), m)].append(x)
                    pend = []; gaps[m].append(it); last = m
                else: pend.append(it)
            for z, x in enumerate(pend): gaps[min(last + 1 + z, ngaps - 1)].append(x)
            return gaps
        def gw_load():
            return [f"v_add_u32 v{t0}, s{s_ca}, v{vLIN}", f"v_subrev_u32 v{t1}, 896, v{t0}", f"v_min_u32 v{t0}, v{t0}, v{t1}",
                    f"s_add_u32 m0, s{s_wb}, {GWOFF}", (f"buffer_load_dwordx4 v{t0}, {srd(sGW)}, 0 offen lds", "gw")]
        B128 = o.get('b128', 1)
        vSM, vB2, vOD, vSW, vq, vGR = 208, 211, 214, 218, 219, 221
        s_zf = sV
        def early_addr():
            emit([f"v_and_b32 v{t2}, 15, v1", f"s_lshl_b32 s{s_t2}, s{s_sb}, 6", f"v_lshl_add_u32 v{vSM}, v{t2}, 1, s{s_t2}"])
            emit([f"v_lshl_add_u32 v{vGR}, v{t2}, 2, s{s_wb}", f"s_and_b32 s{s_t2}, s{s_w}, 1", f"s_lshl_b32 s{s_t3}, s{s_th}, 1", f"s_add_u32 s{s_t2}, s{s_t2}, s{s_t3}",
                  f"s_mul_i32 s{s_t2}, s{s_t2}, {REGION}", f"v_lshl_add_u32 v{vGR+1}, v{t2}, 2, s{s_t2}"])
            emit([f"v_lshrrev_b32 v{t2}, 3, v1", f"v_xor_b32 v{t1}, v{t2}, v1", f"v_and_b32 v{t1}, 7, v{t1}", f"v_mul_u32_u24 v{t3}, 896, v{t2}",
                  f"v_lshlrev_b32 v{t1}, 4, v{t1}",
                  f"s_lshl_b32 s{s_t2}, s{s_t0}, 2", f"s_add_u32 s{s_t2}, s{s_t2}, s{s_w}", f"s_mul_i32 s{s_t2}, s{s_t2}, {16*896}",
                  f"s_lshl_b32 s{s_t3}, s{s_dj}, 7", f"s_add_u32 s{s_t2}, s{s_t2}, s{s_t3}",
                  f"v_add3_u32 v{vSM+1}, v{t3}, v{t1}, s{s_t2}", f"v_add_u32 v{vSM+2}, {8*896-1024}, v{vSM+1}"])
            emit([f"v_lshrrev_b32 v{t0}, 4, v1", f"v_lshlrev_b32 v{t0}, 1, v{t0}", f"v_xor_b32 v{t0}, v{t0}, v1", f"v_and_b32 v{t0}, 7, v{t0}",
                  f"v_lshlrev_b32 v{vSW}, 4, v{t0}", f"s_mul_i32 s{s_t2}, s{s_w}, {8*896}",
                  f"s_add_u32 s{s_t2}, s{s_t2}, s{s_t3}", f"v_add3_u32 v{vOD}, v{t3}, v{vSW}, s{s_t2}"])
            for q in range(1, 4): a(f"v_add_u32 v{vOD+q}, {q*(32*896-1024)}, v{vOD}")
            emit([f"v_lshrrev_b32 v{t0}, 5, v1", f"v_and_b32 v{t1}, 3, v1", f"v_lshlrev_b32 v{t0}, 9, v{t0}", f"v_lshl_add_u32 v{t0}, v{t1}, 6, v{t0}",
                  f"v_bfe_u32 v{t1}, v1, 2, 2", f"v_lshl_add_u32 v{t0}, v{t1}, 4, v{t0}", f"v_bfe_u32 v{t1}, v1, 4, 1",
                  f"v_lshl_add_u32 v{vB2}, v{t1}, 3, v{t0}"])
            if B128: emit([f"v_add_u32 v{vB2+2}, s{s_wb}, v{vB2}", f"v_mov_b32 v{vB2}, v{vLIN}"])
            a(f"v_add_u32 v{vB2+1}, {2*REGION}, v{vB2}")
            emit([f"s_lshl_b32 s{s_zf}, s{s_dj}, 1", f"s_add_u32 s{s_zf}, s{s_zf}, s{s_th}", f"s_mul_i32 s{s_zf}, s{s_zf}, {8*FS}", f"s_add_u32 s{s_zf}, s{s_zf}, {WS_FZ2}",
                  f"v_bfe_u32 v{vq}, v1, 3, 1", f"v_mul_u32_u24 v{vq}, {7*16}, v{vq}", f"v_and_or_b32 v{vq}, v1, 7, v{vq}", f"v_mul_u32_u24 v{vq}, {FS}, v{vq}"])
            emit(self.only_wave(s_zf, 0))
            nl = 5 if CROT else 10
            emit([f"v_min_u32 v{t0}, {nl-1}, v1", f"s_mul_i32 s{s_t2}, s{s_dj}, {nl}", f"v_add_u32 v{t0}, s{s_t2}, v{t0}", f"v_min_u32 v{t0}, {31 if CROT else 63}, v{t0}"])
            if CROT: emit([f"v_lshlrev_b32 v{t0}, 12, v{t0}"])
            else: emit([f"v_and_b32 v{t1}, 1, v{t0}", f"v_lshrrev_b32 v{t0}, 1, v{t0}", f"v_lshlrev_b32 v{t0}, 12, v{t0}", f"v_lshl_add_u32 v{t0}, v{t1}, 7, v{t0}"])
            emit([f"s_lshl_b32 s{s_t2}, s{s_sb}, 6", f"s_add_u32 s{s_t2}, s{s_t2}, s{s_th}", f"s_lshl_b32 s{s_t2}, s{s_t2}, 11", f"v_add_u32 v{vUT}, s{s_t2}, v{t0}"])
        vUT = 223
        def utouch(win): return (f"buffer_load_dword v242, v{vUT}, {srd(sWSP)}, 0 offen offset:{1024*win + 896 if CROT else 1792}", "ut")
        def small_loads():
            out = [(f"buffer_load_ushort v{vBS+nt}, v{vSM}, {srd(sBSP)}, 0 offen offset:{32*nt}", "sm") for nt in range(2)]
            out.append(f"s_add_u32 m0, s{s_wb}, {QOFF}")
            for q in range(2): out.append((f"buffer_load_dwordx4 v{vSM+1+q}, {srd(sQ)}, 0 offen offset:{1024*q} lds", "sm"))
            return out
        NA = 16
        def areg(c): return ("a", 16 * (c & 15))
        def dma_a(c):
            out = []
            if c >= 4: out.append(wlg(f"ar{c-4}"))
            if CROT and c == 8 and o.get("utch", 1): out.append(utouch(1))
            out += [f"s_add_u32 m0, s{s_wb}, {ASLOT[c % 4]}", f"s_add_u32 s{s_so2}, s{s_aw + (c>>3)}, s{s_ar + (c&7)}"]
            for q in range(4):
                out.append((f"buffer_load_dwordx4 v{vAD+q}, {srd(sWSP)}, s{s_so2} offen offset:{q*1024} lds", f"a{c}"))
            return out
        def read_a(c):
            out = [wvm(f"a{c}")]
            k, b = areg(c)
            for uu in range(2):
                for nt in range(2):
                    r = b + (uu * 2 + nt) * 4
                    out.append((f"ds_read_b128 {k}[{r}:{r+3}], v{vXR+uu} offset:{ASLOT[c % 4] + nt*2048}", f"ar{c}"))
            return out

        w1_done = 0
        kvflag = o.get("kvflag", 0)
        nae = o.get("nae", 1 if CROT else 2)
        NZ1 = o.get("nz1", 0)
        pairs = []
        for c in range(7):
            if c >= 7 - NZ1: pairs.append((1, c - (7 - NZ1)))
            pairs.append((2, c))
        def pair_reads(p):
            h, c = pairs[p]; b = 2 * (p & 1)
            rx = read_x(c) if h == 2 else [None] * 4
            return [x for x in rx[:2] + tr_w(2 * c, b, h) + rx[2:] + tr_w(2 * c + 1, b + 1, h) if x is not None]
        seen = set()
        def need(p): return [f"x{pairs[p][1]}", f"w1_{pairs[p][1]}"] if pairs[p][0] == 2 else [f"w0_{pairs[p][1]}"]
        def enter(p):
            if all(t in seen for t in need(p)): return False
            tags = need(p)
            if p + 1 < len(pairs) and pairs[p + 1][0] == 1 and pairs[p + 1][1] > 0: tags = tags + need(p + 1)
            kf = pairs[p] == (2, kvflag)
            a.wait(vm=tags + (["kvst"] if kf else []), lg="kvd")
            a("s_barrier")
            seen.update(tags)
            if kf and not o.get("kvlate", 0): self.flag(s_so, vL8, vTAG)
            if o.get("fine"): self.stamp(f"c{pairs[p][0]}{pairs[p][1]}")
            return True
        GIN = o.get("gin", 1)
        GF, GACC, vGA, GRING = 176, 232, 243, 8
        emit(gw_load())
        emit([f"v_lshrrev_b32 v{t1}, 5, v1", f"v_bfe_u32 v{t2}, v1, 4, 1", f"v_lshl_or_b32 v{t1}, v{t2}, 1, v{t1}", f"v_lshl_add_u32 v{vGA}, v{t1}, 4, s{s_wb}"])
        def gate_rd(u): return (f"ds_read_b128 v[{GF+4*(u%GRING)}:{GF+4*(u%GRING)+3}], v{vGA} offset:{GWOFF + 64*u}", f"gr{u>>1}g")
        def gate_mm(u, nt):
            d = GACC + 4 * nt; xr = XF + (u * 2 + nt) * 4
            return f"v_mfma_f32_16x16x32_bf16 v[{d}:{d+3}], v[{GF+4*(u%GRING)}:{GF+4*(u%GRING)+3}], a[{xr}:{xr+3}], {'0' if u == 0 else f'v[{d}:{d+3}]'}"
        g_done = 0
        early_addr()
        enter(0)
        emit(pair_reads(0))
        nxt = NIF; na_done = 0; small = False
        w2_free = 0
        z2_done = 0
        for p, (h, c) in enumerate(pairs):
            if p + 1 < len(pairs) and enter(p + 1): w2_free = z2_done
            ex = []
            if NZ1 and w1_done < min(w2_free, o.get("w1in", NZ1 + 1)): ex += dma_w(w1_done, 0); w1_done += 1
            while not NZ1 and nxt == 7 and w1_done < min(w2_free, o.get("w1in", 0)): ex += dma_w(w1_done, 0); w1_done += 1
            if nxt < 7:
                for _ in range(2 if p < o.get("dbl", 0) else 1):
                    if nxt < 7:
                        assert nxt - z2_done < 5
                        ex += dma_xw(nxt); nxt += 1
                if nxt >= o.get("smallat", 99) and not small: ex += small_loads(); small = True
            elif na_done < nae and not (o.get("plan2", 0) and sum(map(isvm, ex)) > o.get("p2room", 2)):
                assert z2_done >= 3 + na_done
                if na_done == 0 and o.get("utch", 1): ex.append(utouch(0))
                ex += dma_a(na_done); na_done += 1
            gm = []
            if GIN and h == 2 and 1 <= p <= o.get("gupto", 2):
                if g_done == 0: a.wait(vm="gw")
                ug = [u for cc in range(g_done, min(c + 1, g_done + 2)) for u in (2 * cc, 2 * cc + 1)]
                emit([gate_rd(u) for u in ug]); g_done = min(c + 1, g_done + 2)
                gm = [gate_mm(u, nt) for u in ug for nt in range(2)]
            gp = spread(ex, 16 + len(gm))
            rd = [[] for _ in range(16)]
            if p + 1 < len(pairs):
                cr = pair_reads(p + 1)
                for z, it in enumerate(cr): rd[(z * 14) // len(cr)].append(it)
            for hf in range(2):
                mfma1(ACC2 if h == 2 else ACC1, 2 * c + hf, 2 * (p & 1) + hf, [rd[8 * hf + m] + gp[8 * hf + m] for m in range(8)], waits=(0,))
            if gm: a.wait(lg=f"gr{g_done-1}g")
            for z, it in enumerate(gm): a(it); emit(gp[16 + z])
            if h == 2: z2_done = c + 1
            if p + 1 < len(pairs) and pairs[p + 1] == (2, max(kvflag, 1)) and o.get("kvlate", 0): self.flag(s_so, vL8, vTAG)
        self.stamp("z2_gemm")
        w1in = w1_done
        if not NZ1 and not o.get("plan2", 0): w1in = 0
        if w1in: a.wait(vm=f"w0_{w1in-1}")
        a("s_barrier")
        bg0 = []
        while w1_done < 7: bg0 += dma_w(w1_done, 0); w1_done += 1

        na0 = o.get("na0", nae)
        bg = bg0
        na0 = max(na0, na_done)
        for c in range(na_done, na0): bg += dma_a(c)
        nw1 = o.get("w1g", 0)
        bg0 = bg[nw1:]; bg = bg[:nw1]
        g2 = self.gelu(ACC2, 32, vT, vC0, vC1, vONE); g0 = o.get("w1g0", 0)
        emit(g2[:g0]); weave(g2[g0:], bg, o.get("wvg", 6)); emit(bg)
        S = WF
        for nt in range(2):
            first = True
            for ft in range(4):
                for p in range(2):
                    z = pr(acc(ACC2, ft, nt) + 2 * p)
                    if first:
                        a(f"v_pk_mul_f32 {pr(S+4*nt+2)}, {z}, {z}")
                        z0 = z; first = False
                    else:
                        a(f"v_pk_add_f32 {pr(S+4*nt)}, {z}, {z0 if z0 else pr(S+4*nt)}"); z0 = None
                        a(f"v_pk_fma_f32 {pr(S+4*nt+2)}, {z}, {z}, {pr(S+4*nt+2)}")
        for q in range(4): a(f"v_add_f32 v{S+8+q}, v{S+2*q}, v{S+2*q+1}")
        A_, B_, C_, D_ = S + 8, S + 9, S + 10, S + 11
        a(f"s_mul_i32 s{s_t2}, s{s_sb}, {14*256}")
        a(f"v_permlane32_swap_b32 v{A_}, v{C_}")
        a(f"v_permlane32_swap_b32 v{B_}, v{D_}")
        a(f"v_add_f32 v{A_}, v{A_}, v{C_}")
        a(f"v_add_f32 v{B_}, v{B_}, v{D_}")
        a(f"s_add_u32 s{s_so}, s{s_t2}, {WS_STATS}")
        a(f"s_lshl_b32 s{s_t3}, s{s_j}, 8")
        a(f"v_permlane16_swap_b32 v{A_}, v{B_}")
        a(f"s_add_u32 s{s_t2}, s{s_so}, s{s_t3}")
        a(f"v_add_f32 v{S+12}, v{A_}, v{B_}")
        a(f"v_bfi_b32 v{S+12}, s{s_ff}, v{vTB}, v{S+12}")
        a(f"buffer_store_dword v{S+12}, v{vL8}, {srd(sWS)}, s{s_t2} offen sc1", tag="stst")
        self.stamp("stats_pub")
        if o.get("diag_st"):
            a("s_waitcnt vmcnt(1)"); self.stamp("older_done")
            a("s_waitcnt vmcnt(0)"); self.stamp("st_done")

        na1 = max(na0, o.get("na1", 2))
        u0 = 2 * NZ1
        u2, u3 = o.get("u2", 0), o.get("u3", 3)
        def z1_steps(ua, ub, bg, per=o.get("z1per", 8), vper=o.get("z1v", 3)):
            for u in range(ua, ub):
                ex = tr_w(u + 2, (u + 2) % 3, 1) if u < 12 else []
                take = []
                early = lambda x: isinstance(x, tuple) and x[1].startswith("ar") and u <= 2 * (int(x[1][2:]) - 9) + 1
                while bg and len(take) < per and sum(map(isvm, take)) + isvm(bg[0]) <= vper and not early(bg[0]): take.append(bg.pop(0))
                gp = spread(take, 8)
                mfma1(ACC1, u, u % 3, [ex[m:m+1] + gp[m] for m in range(8)], waits=(0,))
        def z1_start():
            a.wait(vm=["w0_6", "gw"])
            a("s_barrier")
            if w1in <= NZ1: emit(tr_w(u0, u0 % 3, 1) + tr_w(u0 + 1, (u0 + 1) % 3, 1))
        PS = 144
        bg = [f"s_lshl_b32 s{s_t1}, s{s_j}, 6", f"s_add_u32 s{s_t1}, s{s_t1}, s{s_sb}",
              f"s_lshl_b32 s{s_t3}, s{s_t1}, 12", f"s_add_u32 s{s_t3}, s{s_t3}, {WS_Z2N}", f"s_lshr_b32 s{s_t1}, s{s_t1}, 2",
              f"s_mul_i32 s{s_t1}, s{s_t1}, {FS}", f"s_add_u32 s{s_t1}, s{s_t1}, {WS_FZ2}", "\n".join(self.only_wave(s_t1, 1)),
              f"v_bfe_u32 v{t0}, v1, 2, 2", f"v_lshrrev_b32 v{t1}, 4, v1", f"v_lshlrev_b32 v{t0}, 8, v{t0}",
              f"v_lshl_add_u32 v{t0}, v{t1}, 6, v{t0}", f"v_and_b32 v{t1}, 3, v1", f"v_lshl_add_u32 v{t0}, v{t1}, 4, v{t0}"]
        if B128: bg.append(f"v_add_u32 v{t0}, s{s_wb}, v{t0}")
        loads = [f"buffer_load_dword v{PS+jj}, v{vL8}, {srd(sWS)}, s{s_so} offen offset:{jj*256} sc1" for jj in range(14)]
        gpos = o.get('gpos', 2 if o.get('plan2', 0) else 0)
        def gate(bg):
            a.wait(vm="gw")
            us = list(range(2 * g_done, 14)); assert len(us) <= GRING
            emit([gate_rd(u) for u in us])
            gp = spread(bg, max(2 * len(us), 1))
            for z, u in enumerate(us):
                a.wait(lg=f"gr{u>>1}g")
                for nt in range(2):
                    a(gate_mm(u, nt)); emit(gp[2 * z + nt])
        def gate_fin():
            for nt in range(2):
                d = GACC + 4 * nt
                emit([f"v_mul_f32 v{d}, {f2u(-1.4426950408889634):#x}, v{d}", f"v_exp_f32 v{d}, v{d}", f"v_add_f32 v{d}, 1.0, v{d}", f"v_rcp_f32 v{d}, v{d}"])
            for nt in range(2): a(f"ds_write_b32 v{vGR}, v{GACC+4*nt} offset:{GATE + 64*nt}", tag="gtw")
        def take(bg, nv):
            out = []
            while bg and sum(map(isvm, out)) + isvm(bg[0]) <= nv and len(out) < 3 * nv: out.append(bg.pop(0))
            return out
        npre = self.npre
        nd = na0; nr = 0; ast = []
        while nr < npre:
            while nd < min(nr + o.get('adepth', 3), NA): ast += dma_a(nd); nd += 1
            ast += read_a(nr); nr += 1
        k9 = min([z for z, x in enumerate(ast) if isinstance(x, tuple) and x[1] == "ar9"] + [len(ast) + 1]) - 1
        ast, ast2 = ast[:k9], ast[k9:]
        if not small:
            st_ = [z for z, x in enumerate(ast) if isinstance(x, str) and x.startswith("s_add_u32 m0")]
            k_ = st_[o.get("smpos", 2)]
            ast = ast[:k_] + small_loads() + ast[k_:]
        if not o.get("plan2", 0): emit(bg)
        if w1in > NZ1: emit(tr_w(u0, u0 % 3, 1) + tr_w(u0 + 1, (u0 + 1) % 3, 1))
        if o.get("plan2", 0):
            ua, ub = o.get("ua", 3), 2 * w1in - 2
            z1_steps(0, ua, bg); emit(bg)
            ul = o.get("ul", 5)
            z1_steps(ua, ul, bg0); emit(bg0)
            emit([(l, "st") for l in loads])
            z1_steps(ul, ub, ast if o.get("ast0", 1) else [])
            if gpos < 2: gate(take(ast, 7 - g_done) if o.get("ast0", 1) else [])
            u0 = ub
        elif o.get("plan3"):
            gate(bg0); z1_start()
            ul, ub = o.get("ul", 2), o.get("ub", 7)
            z1_steps(0, ul, ast)
            emit([(l, "st") for l in loads])
            z1_steps(ul, ub, ast)
            u0 = ub; w1in = 99
        elif o.get("ldfirst"):
            for _ in range(o.get("ldfirst") - 1): a("s_nop 15")
            emit([(l, "st") for l in loads]); gate(bg0 if o.get("w1gate", 1) else [])
            if not o.get("w1gate", 1): ast = bg0 + ast
        else:
            k = 4 * o.get("w1s", 7)
            gate(bg0[:k])
            emit([(l, "st") for l in loads]); emit(bg0[k:])
        if gpos < 2: gate_fin()
        GV = 244
        emit(take(ast, o.get("apre", 8)))
        if u2:
            z1_start()
            z1_steps(u0, min(u0 + u2, 14), ast if o.get("ast0", 1) else [])
        self.stamp("z1_part")
        self.poll(loads, [PS + jj for jj in range(14)], vT, issued="st", vtag=vTB)
        self.stamp("stats_got")
        if self.stamps and o.get("diag_n"):
            a(f"s_sub_u32 s4, {SPIN}, s{s_cnt}"); a("s_mul_i32 s4, s4, 100"); a(f"v_readlane_b32 s5, v{vST}, 0"); a("s_add_u32 s4, s4, s5")
            a(f"v_writelane_b32 v{vST}, s4, {self.nst}"); self.names.append("retries"); self.nst += 1
        fg = []; a = Rec()
        vals = [PS + jj for jj in range(14)]
        while len(vals) > 1:
            nv = []
            for q in range(0, len(vals) - 1, 2):
                a(f"v_add_f32 v{vals[q]}, v{vals[q]}, v{vals[q+1]}"); nv.append(vals[q])
            if len(vals) & 1: nv.append(vals[-1])
            vals = nv
        T_, U_ = PS, PS + 1
        a(f"v_mul_f32 v{T_}, {f2u(1/896):#x}, v{T_}")
        a(f"v_mov_b32 v{U_}, v{T_}")
        a(f"v_permlane16_swap_b32 v{T_}, v{U_}")
        a(f"v_fma_f32 v{U_}, -v{T_}, v{T_}, v{U_}")
        a(f"v_max_f32 v{U_}, 0, v{U_}")
        a(f"v_add_f32 v{U_}, {f2u(1e-5):#x}, v{U_}")
        R0, M0_, R1, M1_ = PS + 4, PS + 6, PS + 8, PS + 10
        a(f"v_rsq_f32 v{R0}, v{U_}")
        a(f"v_mul_f32 v{M0_}, v{T_}, v{R0}")
        a(f"v_mov_b32 v{R1}, v{R0}")
        a(f"v_mov_b32 v{M1_}, v{M0_}")
        a(f"v_permlane32_swap_b32 v{R0}, v{R1}")
        a(f"v_permlane32_swap_b32 v{M0_}, v{M1_}")
        ZP, ZQ = PS + 16, PS + 32
        for ft in range(4):
            for nt in range(2):
                z = acc(ACC2, ft, nt); R, M = (R0, M0_) if nt == 0 else (R1, M1_)
                for p in range(2):
                    a(f"v_pk_fma_f32 {pr(z+2*p)}, {pr(z+2*p)}, {pr(R)}, {pr(M)} op_sel_hi:[1,0,0] neg_lo:[0,0,1] neg_hi:[0,0,1]")
                for p in range(2):
                    a(f"v_cvt_pk_bf16_f32 v{ZP+4*ft+2*nt+p}, v{z+2*p}, v{z+2*p+1}")
            if not B128:
                a(f"buffer_store_dwordx4 v[{ZP+4*ft}:{ZP+4*ft+3}], v{t0}, {srd(sWS)}, s{s_t3} offen offset:{1024*ft} sc1", tag="zst")
                continue
            a(f"ds_write_b128 v{t0}, v[{ZP+4*ft}:{ZP+4*ft+3}] offset:{16384 + 1024*ft}")
            for hh in range(2): a(f"ds_read_b64_tr_b16 v[{ZQ+4*ft+2*hh}:{ZQ+4*ft+2*hh+1}], v{vB2+2} offset:{16384 + 1024*ft + 256*hh}", tag=f"zt{ft}")
            for f2 in ([ft - 1] if 0 < ft < 3 else [2, 3] if ft == 3 else []):
                fg.append(wlg(f"zt{f2}"))
                a(f"buffer_store_dwordx4 v[{ZQ+4*f2}:{ZQ+4*f2+3}], v{vLIN}, {srd(sWS)}, s{s_t3} offen offset:{1024*f2} sc1", tag="zst")
        a = real_a
        nb_ = take(ast, o.get("anorm", 0))
        weave(fg, nb_, max(1.0, 40 / max(len(nb_), 1))); emit(nb_)
        if u2 == 0 and not o.get("plan3"):
            while any(isinstance(x, tuple) and x[1] == "w0_6" for x in ast): self.put(ast.pop(0))
            z1_start()
        if gpos < 2: ast += ast2; ast2 = []
        u2 = min(u0 + u2, 14); u3 = min(max(u2, u0 + u3), 14)
        held = []
        if CROT and o.get("hold8", 1):
            k8 = min(z for z, x in enumerate(ast) if isinstance(x, tuple) and x[1] in ("ut", "a8"))
            while not callable(ast[k8]): k8 -= 1
            ast, held = ast[:k8], ast[k8:]
        z1_steps(u2, u3, ast)
        ast += held
        g1 = self.gelu(ACC1, 32, vT, vC0, vC1, vONE)
        cut = o.get("g1cut", 0) if u3 == 14 else 0
        if cut: ast += ast2; ast2 = []
        weave(g1[:cut], ast, o.get("wv1", 2))
        a.wait(vm="zst")
        a("s_barrier")
        self.flag(s_t1, vL8, vTAG)
        self.stamp("z2n_pub")
        zfl = f"buffer_load_dword v{vq+1}, v{vq}, {srd(sWS)}, s{s_zf} offen sc1"
        u4, u5 = o.get("u4", 8), o.get("u5", 12)
        u4 = max(u3, u4); u5 = max(u4, u5)
        assert gpos < 2 and u5 >= 8
        GA, GB_ = o.get("ga", 0), o.get("gb", 0)
        assert u5 == 14 or GB_ == 0
        z1_steps(u3, u4, ast)
        if not GA: a(zfl, tag="zf")
        z1_steps(u4, u5, ast)
        weave(g1[:36 * GA], ast, o.get("wv1", 2))
        if GA: a(zfl, tag="zf")
        weave(g1[36 * GA:36 * GB_], ast, o.get("wv1", 2))
        while any(isinstance(x, tuple) and x[1] == "sm" for x in ast): self.put(ast.pop(0))
        bg = ast
        NG = o.get("gpre", 1)
        NG = max(NG, GB_)
        fg = g1[36 * GB_:36 * NG]
        gin = [[(f"v_lshlrev_b32 v{acc(ACC2, 3, k >> 2) + (k & 3)}, 16, v{vBS + (k >> 2)}", 1)] for k in range(8)]
        for x in range(ACC1 + 8 * NG, ACC1 + 32):
            T = vT + (x & 7)
            gin[x & 7] += [(f"v_mul_f32 v{T}, v{x}, v{x}", 1), (f"v_fma_f32 v{T}, v{T}, v{vC1}, v{vC0}", 1), (f"v_mul_f32 v{T}, v{T}, v{x}", 1), (f"v_exp_f32 v{T}, v{T}", 2),
                           (f"v_add_f32 v{T}, 1.0, v{T}", 1), (f"v_rcp_f32 v{T}, v{T}", 2), (f"v_mul_f32 v{x}, v{x}, v{T}", 1)]
        vYF = 245
        yadr = [f"s_mul_i32 s{s_t3}, s{s_dj}, 293", f"s_lshr_b32 s{s_t3}, s{s_t3}, 6", f"v_min_u32 v{vYF}, 5, v1", f"v_add_u32 v{vYF}, s{s_t3}, v{vYF}",
               f"v_min_u32 v{vYF}, 31, v{vYF}",
               f"v_mul_u32_u24 v{vYF}, {FS}, v{vYF}", f"v_add_u32 v{vYF}, {WS_FY}, v{vYF}"]
        yfl = f"buffer_load_dword v{vBS}, v{vYF}, {srd(sWS)}, 0 offen sc1"
        BF = 96
        def dma_b(st):
            out = [f"s_add_u32 m0, s{s_wb}, {BSLOT(st)}", f"s_add_u32 s{s_so2}, s{s_bw + (st>>2)}, s{s_br + (st&3)}"]
            for q in range(4):
                out.append((f"buffer_load_dwordx4 v{vLIN}, {srd(sWS)}, s{s_so2} offen offset:{q*1024} sc1 lds", f"b{st}"))
            return out
        def tr_b(sb):
            out = []
            st, wv = sb >> 2, sb & 3
            for ft in range(4):
                if B128:
                    r = BF + (sb % 3) * 16 + ft * 4
                    out.append((f"ds_read_b128 v[{r}:{r+3}], v{vB2+(wv>>1)} offset:{(wv & 1) * REGION + BSLOT(st) + ft * 1024}", f"br{sb}"))
                    continue
                for hh in range(2):
                    r = BF + (sb % 3) * 16 + ft * 4 + hh * 2
                    off = (wv & 1) * REGION + BSLOT(st) + ft * 1024 + hh * 256
                    out.append((f"ds_read_b64_tr_b16 v[{r}:{r+1}], v{vB2+(wv>>1)} offset:{off}", f"br{sb}"))
            return out
        WOSLOT = ASLOT + [BSLOT(11), BSLOT(12), BSLOT(13)]
        def dma_wo(g4):
            out = [f"s_add_u32 m0, s{s_wb}, {WOSLOT[g4]}", f"s_mul_i32 s{s_so2}, s{s_ca+g4}, 896"]
            for q in range(4):
                out.append((f"buffer_load_dwordx4 v{vOD+q}, {srd(sWOUT)}, s{s_so2} offen offset:{q*1024} lds", "wo"))
            return out
        nb0 = o.get("nb0", 3)
        while bg and isvm(bg[0]): self.put(bg.pop(0))
        while bg and isinstance(bg[0], str) and not bg[0].startswith("s_add_u32 m0"):
            self.put(bg.pop(0))
            while bg and isvm(bg[0]): self.put(bg.pop(0))
        self.stamp("pre_poll")
        self.poll([zfl], [vq + 1], vq + 2, wave=0, issued="zf")
        a.wait(lg="gtw")
        a("s_barrier")
        for nt in range(2): a(f"ds_read_b32 v{GV+2*nt}, v{vGR+1} offset:{GATE + 64*nt}", tag="gtr")
        assert nb0 <= 3
        self.stamp("z2n_got")
        bb = []
        for st in range(nb0): bb += dma_b(st)
        if o.get("cutst", 1):
            done = lambda pre, c: not any(isinstance(x, tuple) and x[1] == f"{pre}{c}" for x in bg)
            part = []
            while bg and isinstance(bg[0], tuple) and bg[0][1].startswith("ar"): part.append(bg.pop(0))
            nd = max(c for c in range(nd) if done("a", c)) + 1
            nr = max([c for c in range(nr) if done("ar", c)] + [-1]) + 1
            bg = list(bb) + part
            for c in range(nr, nd): bg += read_a(c)
            nr = nd
            for _ in range(o.get("apost", 2)):
                if nd < NA: bg += dma_a(nd); nd += 1
        else: bg = bb + bg
        z1_steps(u5, 14, bg, per=o.get("z1pb", 8), vper=o.get("z1vb", 4))
        self.stamp("z1_done")
        weave(fg, bg, o.get("wv2", 2)); emit(bg)
        self.stamp("pre_done")
        if o.get("rdall", 0):
            while nr < nd and nr < 22: emit(read_a(nr)); nr += 1
        a.wait(vm=["b0", "sm"], lg="gtr")
        a("s_barrier")
        emit(tr_b(0)); emit(tr_b(1))
        self.stamp("b0_got")
        LAT = o.get("lat", 6); wo_in = o.get("wo_in", 7); wo_last = o.get("wo_last", 58)
        def plan(dps):
            issue = [[] for _ in range(64)]; rd_at = {}
            qb, qa, qw, qs, qr = nb0, nd, 0, 0, 0
            rdstep = {c: -2 for c in range(nr)}
            def place(c, at):
                while at in rd_at: at += 1
                rd_at[at] = c; rdstep[c] = at
                return at <= 2 * c - 2
            ok = True
            for c in range(nr, nd): ok &= place(c, o.get('rd0', 2))
            cur = None; budget = 0.0; xq = []
            def ready_a(sb): return qa < NA and (qa < 4 or (qa - 4 in rdstep and sb >= rdstep[qa - 4] + 2))
            def ready_w(sb):
                return qa == NA and qw < wo_in and o.get('wo_first', 16) + qw * o.get('wogap', 8) <= sb < wo_last and not (o.get('wp0', 31) <= sb < o.get('wp1', 50)) and (
                    (qw < 4 and 12 + qw in rdstep and sb >= rdstep[12 + qw] + 2) or (qw >= 4 and sb >= 4 * (qw + 8) + 2))
            def ready_b(sb): return qb < 16 and (qb < NB - 1 or sb >= 4 * (qb - NB + 1) + 2)
            for sb in range(64):
                budget = min(budget + dps, dps + 0.99)
                for z in range(5):
                    if sb == 33 + (z * o.get("xss", 20)) // 10: xq.append(("s", z, 0)); qs = 2
                for z in range(5):
                    if sb == o.get("xr", 45) + (z * o.get("xrs", 20)) // 10: xq.append(("r", z, 0)); qr = 2
                nx = 0 if not xq else (1 if (cur or ready_b(sb) or ready_a(sb) or ready_w(sb)) else 2)
                budget -= nx
                n = 0
                while budget >= 1.0:
                    if cur is None:
                        if ready_b(sb): cur = ["b", qb, 0]; qb += 1
                        elif ready_a(sb): cur = ["a", qa, 0]; qa += 1
                        elif ready_w(sb): cur = ["w", qw, 0]; qw += 1
                        else: break
                    if n >= 1 and cur[0] == "b" and o.get("smooth", 1) and not (ready_a(sb + 2) or ready_w(sb + 2) or ready_b(sb)): break
                    issue[sb].append(tuple(cur)); cur[2] += 1; budget -= 1.0; n += 1
                    if cur[2] == 4:
                        if cur[0] == "a": ok &= place(cur[1], sb + LAT)
                        if cur[0] == "b": ok &= sb + LAT - 2 <= 4 * (cur[1] - 1) + 1 or cur[1] < NB - 1
                        cur = None
                for _ in range(min(nx, len(xq))): issue[sb].append(xq.pop(0))
            ok &= not xq
            return ok and qa == NA and qs == 2 and qr == 2 and qb == 16 and cur is None, issue, rd_at, qw
        dps = o.get("dps", 17) / 10
        while True:
            ok, issue, rd_at, wo_done = plan(dps)
            if ok: break
            dps += 0.1
            assert dps < 4.1
        self.info = f"P2: nr={nr} nd={nd} dps={dps:.1f} wo_in_p2={wo_done} last A read at {max(rd_at) if rd_at else -1}"
        lastr = max(sb for sb in range(64) if any(x[0] == "r" for x in issue[sb]))
        self.info += f" lastr={lastr}"
        if o.get("show"): print(" ".join("".join(x[0] for x in st_) or "." for st_ in issue))
        groups = {}
        ACCP, RECV = 144, 176
        XS, XR, XT = 176, 176, ACCP
        xo = lambda z: f"s{{}} offen offset:{1024*(z&3)} sc1"
        def x_send(z):
            v = ACCP + 7 * z; d = XS + 4 * z if z < 4 else v
            pre = [f"v_cvt_pk_bf16_f32 v{d+k}, v{v+2*k}, v{v+2*k+1}" for k in range(3)] if z < 4 else []
            pre.append(f"v_bfi_b32 v{d+3}, s{s_ff}, v{vTB}, v{v+6 if z < 4 else v+3}")
            return pre + [(f"buffer_store_dwordx4 v[{d}:{d+3}], v{vLIN}, {srd(sWS)}, " + xo(z).format(s_xs + (z >> 2)), "xs")]
        def x_recv(z):
            return [(f"buffer_load_dwordx4 v[{XR+4*z}:{XR+4*z+3}], v{vLIN}, {srd(sWS)}, " + xo(z).format(s_xr + (z >> 2)), f"xr{z}")]
        def xmul(z):
            r = XR + 4 * z; v = 7 * z
            if z == 4: return [f"v_mul_f32 v{XT+v+k}, v{r+k}, v{ACC1+v+k}" for k in range(4)]
            out = []
            for k in range(3):
                out += [f"v_lshlrev_b32 v{XT+v+2*k}, 16, v{r+k}", f"v_and_b32 v{XT+v+2*k+1}, s{s_hi}, v{r+k}"]
            out += [f"v_mul_f32 v{XT+v+k}, v{XT+v+k}, v{ACC1+v+k}" for k in range(6)]
            return out + [f"v_mul_f32 v{XT+v+6}, v{r+3}, v{ACC1+v+6}"]
        xr8 = [XR + 4 * z + 3 for z in range(5)]
        paddr = [f"s_mul_i32 s{s_t2}, s{s_sb}, {2*28}", f"s_lshl_b32 s{s_t3}, s{s_j}, 1", f"s_add_u32 s{s_t2}, s{s_t2}, s{s_t3}", f"s_lshl_b32 s{s_t2}, s{s_t2}, 10",
                 f"s_add_u32 s{s_t2}, s{s_t2}, {WS_P}", f"s_add_u32 s{s_t3}, s{s_t2}, {28*1024}"]
        rstep = {g: sb for sb in range(64) for kd, g, q in issue[sb] if kd == "r"}
        sstep = {g: sb for sb in range(64) for kd, g, q in issue[sb] if kd == "s"}
        xv = []; xlast = [0]
        for z in range(5):
            at = min(rstep[z] + o.get("xlat", 8), o.get("xvmax", 62))
            assert at > rstep[z] > sstep[z]
            it = [wvm(f"xr{z}"), f"v_xor_b32 v{xr8[z]}, v{vTB}, v{xr8[z]}", f"v_or_b32 v{vT}, v{vT if z else xr8[0]}, v{xr8[z]}"] + xmul(z)
            if z == 4: it += [f"v_and_b32 v{vT}, 0xff, v{vT}", f"v_cmp_ne_u32 vcc, 0, v{vT}"]
            xv += [(at, x) for x in it]
        for sb in range(64):
            c, uu = sb >> 1, sb & 1
            gaps = [[] for _ in range(8)]
            if sb + 2 < 64:
                for m, x in enumerate(tr_b(sb + 2)): gaps[[1, 3, 5, 7][m] if B128 else m].append(x)
            a.wait(lg=[f"br{sb}", f"ar{c}"])
            if sb in rd_at:
                rd = read_a(rd_at[sb])
                self.put(rd[0])
                for m, x in enumerate(rd[1:]): gaps[2 * m].append(x)
            n = len(issue[sb])
            st = sb >> 2
            barr = (sb & 3) == 1 and st + 1 < 16
            pos = {0: [], 1: [6 if issue[sb][:1] and issue[sb][0][0] == 's' else 2], 2: [2, 6], 3: [1, 4, 6], 4: [0, 2, 4, 6]}[n]
            prev = -1
            for (kind, idx, q), m in zip(issue[sb], pos):
                if kind in "sr":
                    grp = {"s": x_send, "r": x_recv}[kind](idx)
                    for it in grp[:-1]:
                        gaps[min([x for x in range(m) if len(gaps[x]) < 2] + [m])].append(it)
                    gaps[m].append(grp[-1]); prev = m
                    continue
                if q == 0:
                    grp = {"a": dma_a, "b": dma_b, "w": dma_wo}[kind](idx)
                    if kind == "w" and idx < 4: grp = [wlg(f"ar{12+idx}")] + grp
                    setup, groups[(kind, idx)] = grp[:-4], grp[-4:]
                    for z, it in enumerate(setup): gaps[min(max(prev + 1, m - len(setup) + z), m)].append(it)
                gaps[m].append(groups[(kind, idx)][q]); prev = m
            if barr:
                assert not any(kd == "b" and ix == st + 1 for x in issue[sb:] for kd, ix, _ in x)
                bm = o.get("barm", 4)
                if not o.get("nowait"): gaps[bm - 1].append(wvm(f"b{st+1}"))
                else: gaps[bm - 1].append(wvm(f"b{st-2}"))
                if not (o.get("nobar") == 1 or (o.get("nobar") == 2 and st & 1)): gaps[bm].append("s_barrier")
            cost = lambda x: 2 if isvm(x) else 1
            for m in range(8):
                room = 2 - sum(map(cost, gaps[m])) - (m == 7)
                while room > 0 and sb >= o.get("gfrom", 0):
                    cand = [ch for ch in gin if ch and ch[0][1] <= room]
                    if not cand: break
                    ch = max(cand, key=lambda ch: (ch[0][1], len(ch)))
                    room -= ch[0][1]; gaps[m].append(ch.pop(0)[0])
            if sb == 31: assert not any("lshlrev" in ch[0][0] for ch in gin if ch)
            if xv and sb >= xv[0][0]: assert not any(gin)
            if not any(gin) and "gend" not in self.info: self.info += f" gend={sb}"
            while xv and sb >= xv[0][0]:
                free = [m for m in range(7) if len(gaps[m]) < 2]
                if not free: break
                gaps[min(m for m in free if m >= xlast[0]) if any(m >= xlast[0] for m in free) else 7].append(xv.pop(0)[1])
                xlast[0] = min([m for m in free if m >= xlast[0]] + [7])
                if xlast[0] == 7: break
            xlast[0] = 0
            k, b = areg(c)
            for m in range(8):
                ft, nt = m >> 1, m & 1
                d = acc(ACC2 if sb >= 32 else ACCP, ft, nt); br = BF + (sb % 3) * 16 + ft * 4; ar = b + (uu * 2 + nt) * 4
                ci = d if sb != 32 else acc(ACC2, 3, nt)
                a(f"v_mfma_f32_16x16x32_bf16 v[{d}:{d+3}], v[{br}:{br+3}], {k}[{ar}:{ar+3}], {f'v[{ci}:{ci+3}]' if sb else '0'}")
                emit(gaps[m])
            if self.stamps and o.get("p2fine") and sb % 6 == 5:
                rg = [16, 18, 20, 22, 24, 26, 44, 46, 48, 50][sb // 6]
                a(f"{'s_memtime' if o['p2fine'] == 2 else 's_memrealtime'} s[{rg}:{rg+1}]")
        if self.stamps and o.get("p2fine"):
            a("s_waitcnt lgkmcnt(0)")
            for z, rg in enumerate([16, 18, 20, 22, 24, 26, 44, 46, 48, 50]):
                a(f"v_writelane_b32 v{vST}, s{rg}, {self.nst}"); self.names.append(f"s{6*z+6}"); self.nst += 1
        self.stamp("p2_done")
        emit([x[1] for x in xv]); emit(paddr)
        Lx = a.label("L_xok")
        a("s_cmp_eq_u64 vcc, 0")
        a(f"s_cbranch_scc1 {Lx}")
        vm0, h0 = list(a.vm), list(a.hist)
        self.poll([x_recv(z)[0][0] for z in range(5)], xr8, vT, vtag=vTB)
        for z in range(5): emit(xmul(z))
        a(f"{Lx}:")
        a.vm, a.hist = vm0, h0
        self.stamp("x_got")

        PP = 96
        for nt in range(2):
            for q in range(2):
                r = PP + (nt * 2 + q) * 4
                for h in range(2):
                    z = acc(ACC2, 2 * q + h, nt); z1 = acc(ACC1, 2 * q + h, nt)
                    for p in range(2): a(f"v_pk_fma_f32 {pr(z+2*p)}, {pr(z+2*p)}, {pr(z1+2*p)}, {pr(acc(XT, 2*q+h, nt)+2*p)}")
                    for p in range(2): a(f"v_cvt_pk_bf16_f32 v{r+2*h+p}, v{z+2*p}, v{z+2*p+1}")
                a(f"buffer_store_dwordx4 v[{r}:{r+3}], v{vLIN}, {srd(sWS)}, s{s_t2 if nt == 0 else s_t3} offen offset:{1024*q} sc1", tag="pst")
        a(f"s_lshl_b32 s{s_t1}, s{s_i}, 4")
        a(f"s_add_u32 s{s_t1}, s{s_t1}, s{s_j}")
        a(f"s_mul_i32 s{s_t1}, s{s_t1}, {FS}")
        a(f"s_add_u32 s{s_t1}, s{s_t1}, {WS_FP}")
        emit(self.only_wave(s_t1, 0))
        a("s_barrier")
        bg = []
        for _ in range(o.get("wo_pre", 3)):
            if wo_done < 7: bg += dma_wo(wo_done); wo_done += 1
        s_pa, s_pb = s_ar, s_ar + 7
        fg = list(yadr); a = Rec()
        s_o2 = s_aw + 2
        QF, YF, KF, AP = 112, 120, 64, 128
        a(f"s_lshl_b32 s{s_t0}, s{s_i}, 1")
        a(f"s_add_u32 s{s_t0}, s{s_t0}, s{s_th}")
        a(f"s_and_b32 s{s_t2}, s{s_w}, 1")
        a(f"s_lshl_b32 s{s_t3}, s{s_t0}, 1")
        a(f"s_add_u32 s{s_t3}, s{s_t3}, s{s_t2}")
        a(f"s_mul_i32 s{s_t3}, s{s_t3}, {32*896}")
        a(f"s_lshl_b32 s{s_so}, s{s_dj}, 7")
        a(f"s_add_u32 s{s_t3}, s{s_t3}, s{s_so}")
        a(f"s_lshr_b32 s{s_so}, s{s_w}, 1")
        a(f"s_lshl_b32 s{s_so}, s{s_so}, 6")
        a(f"s_add_u32 s{s_so}, s{s_t3}, s{s_so}")
        a(f"s_add_u32 s{s_o2}, s{s_so}, {16*896}")
        vRW = vAD
        a(f"v_and_b32 v{t1}, 15, v1")
        a(f"v_mul_u32_u24 v{vRW}, 896, v{t1}")
        vQR = vONE
        a(f"v_lshrrev_b32 v{t0}, 5, v1")
        a(f"s_and_b32 s{s_t3}, s{s_w}, 2")
        a(f"s_lshl_b32 s{s_t3}, s{s_t3}, 1")
        a(f"v_add_u32 v{t0}, s{s_t3}, v{t0}")
        a(f"v_xor_b32 v{t0}, v{t0}, v1")
        a(f"v_and_b32 v{t0}, 7, v{t0}")
        a(f"v_lshlrev_b32 v{t0}, 4, v{t0}")
        a(f"v_lshl_add_u32 v{t0}, v{t1}, 7, v{t0}")
        a(f"v_bfe_u32 v{t2}, v1, 4, 1")
        a(f"v_lshl_add_u32 v{t0}, v{t2}, 3, v{t0}")
        a(f"s_mul_i32 s{s_t3}, s{s_t2}, {2*REGION}")
        a(f"s_add_u32 s{s_t3}, s{s_t3}, {QOFF}")
        a(f"v_add_u32 v{vQR}, s{s_t3}, v{t0}")
        a(f"v_xor_b32 v{vQR+1}, 32, v{vQR}")
        a(f"v_lshrrev_b32 v{t0}, 5, v1")
        a(f"v_bfe_u32 v{t1}, v1, 2, 3")
        a(f"v_lshlrev_b32 v{t2}, 7, v{t1}")
        a(f"v_and_b32 v{t3}, 3, v1")
        a(f"v_lshl_add_u32 v{t2}, v{t3}, 3, v{t2}")
        a(f"v_bfe_u32 v{t3}, v1, 3, 2")
        a(f"v_lshl_add_u32 v{t2}, v{t3}, 5, v{t2}")
        a(f"s_and_b32 s{s_t3}, s{s_w}, 2")
        a(f"s_lshl_b32 s{s_t3}, s{s_t3}, 5")
        a(f"v_xor_b32 v{t3}, s{s_t3}, v{t2}")
        a(f"v_mul_u32_u24 v{t1}, {REGION}, v{t0}")
        vW3 = 72
        a(f"s_lshl_b32 s{s_t3}, s{s_t3}, 5")
        a(f"v_add3_u32 v{vW3}, v{t1}, v{t3}, s{s_t3}")
        for dtr in range(1, 4): a(f"v_xor_b32 v{vW3+dtr}, {32*dtr}, v{vW3}")
        for dtr in range(4): a(f"v_add_u32 v{vW3+4+dtr}, {2*REGION}, v{vW3+dtr}")
        YOFF = BSLOT(15)
        vYA = vXR
        a(f"s_lshl_b32 s{s_t3}, s{s_t2}, 6")
        a(f"v_xor_b32 v{t3}, s{s_t3}, v{t2}")
        a(f"v_lshl_add_u32 v{t3}, v{t0}, 10, v{t3}")
        a(f"s_and_b32 s{s_t3}, s{s_w}, 2")
        a(f"s_mul_i32 s{s_t3}, s{s_t3}, {REGION}")
        a(f"s_add_u32 s{s_t3}, s{s_t3}, {YOFF}")
        a(f"v_add_u32 v{vYA}, s{s_t3}, v{t3}")
        a(f"v_xor_b32 v{vYA+1}, 32, v{vYA}")
        for dt2 in range(2):
            for nt in range(2):
                r = KF + (dt2 * 2 + nt) * 2
                a(f"ds_read_b64_tr_b16 v[{r}:{r+1}], v{vYA+nt} offset:{dt2*REGION + KVD - YOFF}", tag="kr")
        vYD = vC0
        a(f"v_bfe_u32 v{t1}, v1, 3, 1")
        a(f"v_lshrrev_b32 v{t2}, 4, v1")
        a(f"v_lshl_add_u32 v{t1}, v{t1}, 5, v{t2}")
        a(f"v_lshl_add_u32 v{vYD}, v{t1}, 12, v{vSW}")
        a(f"v_add_u32 v{vYD+1}, {4*4096-1024}, v{vYD}")
        s_y, s_y2 = s_aw, s_aw + 1
        a(f"s_lshl_b32 s{s_y}, s{s_dj}, 3")
        a(f"s_add_u32 s{s_y}, s{s_y}, s{s_w}")
        a(f"s_lshl_b32 s{s_y}, s{s_y}, 15")
        a(f"s_lshl_b32 s{s_cnt}, s{s_t0}, 7")
        a(f"s_add_u32 s{s_y}, s{s_y}, s{s_cnt}")
        a(f"s_add_u32 s{s_y}, s{s_y}, {WS_YT}")
        a(f"s_mul_i32 s{s_t3}, s{s_i}, {16*FS}")
        a(f"s_add_u32 s{s_t3}, s{s_t3}, {WS_FP}")
        a(f"v_min_u32 v{t1}, 13, v1")
        a(f"v_mul_u32_u24 v{t1}, {FS}, v{t1}")
        a(f"s_lshl_b32 s{s_pb}, s{s_t0}, 1")
        a(f"s_add_u32 s{s_pb}, s{s_pb}, s{s_t2}")
        a(f"s_mul_i32 s{s_pb}, s{s_pb}, {56*1024}")
        a(f"s_and_b32 s{s_cnt}, s{s_w}, 2")
        a(f"s_lshl_b32 s{s_cnt}, s{s_cnt}, 10")
        a(f"s_add_u32 s{s_pb}, s{s_pb}, s{s_cnt}")
        a(f"s_add_u32 s{s_pb}, s{s_pb}, {WS_P}")
        for g4 in range(7):
            a(f"s_lshl_b32 s{s_pa+g4}, s{s_ca+g4}, 5")
            a(f"s_add_u32 s{s_pa+g4}, s{s_pa+g4}, s{s_pb}")
        vP1, vEW, vER = vAD + 2, vAD + 3, vAD + 1
        a(f"v_add_u32 v{vP1}, {28*1024}, v{vLIN}")
        EXO = BSLOT(14)
        a(f"s_add_u32 s{s_cnt}, s{s_wb}, {EXO}")
        a(f"v_add_u32 v{vEW}, s{s_cnt}, v{vLIN}")
        a(f"s_xor_b32 s{s_cnt}, s{s_w}, 2")
        a(f"s_mul_i32 s{s_cnt}, s{s_cnt}, {REGION}")
        a(f"s_add_u32 s{s_cnt}, s{s_cnt}, {EXO}")
        a(f"v_add_u32 v{vER}, s{s_cnt}, v{vLIN}")
        a(f"v_bfe_u32 v{t0}, v1, 4, 1")
        a(f"v_lshrrev_b32 v{t2}, 5, v1")
        a(f"v_lshl_add_u32 v{vRW}, v{t0}, 5, v{vRW}")
        a(f"v_lshl_add_u32 v{vRW}, v{t2}, 4, v{vRW}")
        a = real_a
        tcut = o.get("tcut", 40)
        fgt = fg[tcut:]; fg = fg[:tcut]
        weave(fg, bg, max(1.0, len(fg) / max(len(bg), 1))); emit(bg)
        def y_dma(sreg):
            a(f"s_add_u32 m0, s{s_wb}, {YOFF}")
            a(f"buffer_load_dwordx4 v{vYD}, {srd(sWS)}, s{sreg} offen sc1 lds", tag="y")
            a(f"buffer_load_dwordx4 v{vYD+1}, {srd(sWS)}, s{sreg} offen offset:1024 sc1 lds", tag="y")
        a.wait(vm="pst")
        a("s_barrier")
        self.flag(s_t1, vL8, vTAG)
        self.stamp("p_pub")
        emit(fgt)
        while wo_done < 7: emit(dma_wo(wo_done)); wo_done += 1
        ylate = o.get("ylate", 1)
        for dt2 in range(2):
            for nt in range(2):
                r = QF + (dt2 * 2 + nt) * 2
                a(f"ds_read_b64 v[{r}:{r+1}], v{vQR+dt2} offset:{nt*REGION}", tag="qr")
        TK, TY = 144, 224
        a.wait(lg="kr")
        for x in range(4):
            for p in range(2): unpack(TK + 4 * x + 2 * p, KF + 2 * x + p)
        a.wait(lg="qr")
        for x in range(4):
            for p in range(2): unpack(AP + 4 * x + 2 * p, QF + 2 * x + p)
            for p in range(2): a(f"v_pk_mul_f32 {pr(AP+4*x+2*p)}, {pr(AP+4*x+2*p)}, {pr(GV+2*(x&1))} op_sel_hi:[1,0]")
        for nt in range(2): a(f"v_sub_f32 v{GV+2*nt}, 1.0, v{GV+2*nt}")
        if ylate:
            for z in range(8): a(f"v_pk_mul_f32 {pr(TK+2*z)}, {pr(TK+2*z)}, {pr(AP+2*z)}")
        for _ in range(o.get("pdelay", 0)): a("s_nop 15")
        if o.get("fwait", 1): a.wait(vm="flag")
        self.stamp("wo_iss")
        self.poll([f"buffer_load_dword v{t3}, v{t1}, {srd(sWS)}, s{s_t3} offen sc1"], [t3], vT, wave=0)
        ylate = o.get("ylate", 1)
        if not ylate: self.poll([yfl], [vBS], vT, wave=2, nap=o.get("ynap", 2))
        a("s_waitcnt vmcnt(0) lgkmcnt(0)")
        a("s_barrier")
        self.stamp("p_got")
        def ld_p(ks):
            return [(f"buffer_load_dwordx4 a[{(ks*2+nt)*4}:{(ks*2+nt)*4+3}], v{vP1 if nt else vLIN}, {srd(sWS)}, s{s_pa+(ks>>1)} offen offset:{(ks&1)*1024} sc1", f"p{ks}") for nt in range(2)]
        W3F = 160
        def tr_o(ks):
            out = []
            for dtr in range(4):
                for hh in range(2):
                    r = W3F + (ks % 3) * 16 + dtr * 4 + hh * 2
                    out.append((f"ds_read_b64_tr_b16 v[{r}:{r+1}], v{vW3+4*hh+dtr} offset:{WOSLOT[ks>>1] + (ks&1)*1024}", f"or{ks}"))
            return out
        np0 = o.get("np0", 5)
        for ks in range(np0):
            emit(ld_p(ks))
            if ks == 1 and not ylate: y_dma(s_y)
        emit(tr_o(0) + tr_o(1))
        yv = [(f"ds_read_b64_tr_b16 v[{YF+2*x}:{YF+2*x+1}], v{vYA+(x&1)} offset:{(x>>1)*REGION}", "yr") for x in range(4)] + [None] * 6 + [wlg("yr")]
        for z in range(8): yv += [f"v_lshlrev_b32 v{TY+2*z}, 16, v{YF+z}", f"v_and_b32 v{TY+2*z+1}, s{s_cnt}, v{YF+z}"]
        yv += [f"v_add_f32 v{TY+z}, v{TY+z}, v{TK+z}" for z in range(16)]
        yv += [f"v_mul_f32 v{AP+z}, v{AP+z}, v{TY+z}" for z in range(16)]
        a(f"s_mov_b32 s{s_cnt}, 0xffff0000")
        ACC3 = 32
        for ks in range(14):
            ex = tr_o(ks + 2) if ks < 12 else []
            lp = ld_p(ks + np0) if ks + np0 < 14 else []
            a.wait(vm=f"p{ks}", lg=f"or{ks}")
            if ks == 3 and not ylate: a("s_barrier")
            if ylate and ks == o.get("yf", 4): a(yfl, tag="yf")
            if ylate and ks == o.get("yc", 9):
                self.poll([yfl], [vBS], vT, issued="yf", nap=o.get("ynap", 2))
                y_dma(s_y)
            for m, dtr in enumerate((2, 2, 3, 3, 0, 0, 1, 1)):
                nt = m & 1
                d = ACC3 + (dtr * 2 + nt) * 4; wr = W3F + (ks % 3) * 16 + dtr * 4; r = (ks * 2 + nt) * 4
                cin = "0" if ks == 0 else f"v[{d}:{d+3}]"
                a(f"v_mfma_f32_16x16x32_bf16 v[{d}:{d+3}], v[{wr}:{wr+3}], a[{r}:{r+3}], {cin}")
                if ex: self.put(ex.pop(0))
                if lp and m in (1, 5): self.put(lp.pop(0))
                elif ks >= 3 and yv and not ylate:
                    it = yv.pop(0)
                    if it is not None: self.put(it)
        assert ylate or not yv
        self.stamp("p3_done")
        RV = 160
        for x in range(4): a(f"ds_write_b128 v{vEW}, v[{ACC3+16+4*x}:{ACC3+19+4*x}] offset:{1024*x}")
        A0 = TK if ylate else AP
        for x in range(4):
            for p in range(2):
                a(f"v_pk_fma_f32 {pr(A0+4*x+2*p)}, {pr(ACC3+4*x+2*p)}, {pr(GV+2*(x&1))}, {pr(A0+4*x+2*p)} op_sel_hi:[1,0,1]")
        a("s_waitcnt vmcnt(0) lgkmcnt(0)")
        a("s_barrier")
        if ylate: emit(yv[:4])
        for x in (0, 2, 1, 3): a(f"ds_read_b128 v[{RV+4*x}:{RV+4*x+3}], v{vER} offset:{1024*x}", tag=f"rv{x&1}")
        if ylate:
            a.wait(lg="yr")
            for z in range(8): unpack(TY + 2 * z, YF + z)
            for z in range(8): a(f"v_pk_fma_f32 {pr(AP+2*z)}, {pr(AP+2*z)}, {pr(TY+2*z)}, {pr(TK+2*z)}")
        OP = 64
        for nt in range(2):
            a.wait(lg=f"rv{nt}")
            for dt2 in range(2):
                x = dt2 * 2 + nt; d = RV + 4 * x
                for p in range(2):
                    a(f"v_pk_fma_f32 {pr(d+2*p)}, {pr(d+2*p)}, {pr(GV+2*nt)}, {pr(AP+4*x+2*p)} op_sel_hi:[1,0,1]")
                for p in range(2):
                    a(f"v_cvt_pk_bf16_f32 v{OP+4*nt+2*dt2+p}, v{d+2*p}, v{d+2*p+1}")
            for p in range(2): a(f"v_permlane16_swap_b32 v{OP+4*nt+p}, v{OP+4*nt+2+p}")
            a(f"buffer_store_dwordx4 v[{OP+4*nt}:{OP+4*nt+3}], v{vRW}, {srd(sOUT)}, s{s_so if nt == 0 else s_o2} offen {['', 'sc1', 'nt', 'sc0 sc1'][o.get('opol', 0)]}")
        if self.stamps:
            a("s_waitcnt vmcnt(0)")
            self.stamp("end")
            self.dump_stamps()
        if self.o.get("padto"):
            if "padx" in self.o:
                a("s_and_b32 s4, s2, 7"); a(f"s_cmp_lg_u32 s4, {self.o['padx']}"); a("s_cbranch_scc1 L_end")
            a("L_padto:")
            a("s_memrealtime s[4:5]")
            a("s_waitcnt lgkmcnt(0)")
            a("s_sub_u32 s4, s4, s6")
            a(f"s_cmp_lt_u32 s4, {self.o['padto']*100}")
            a("s_cbranch_scc1 L_padto")
        a("s_endpgm")
        self.gemm_names = self.names

    def first_wait(self):
        if self.waited: return
        self.waited = True
        a = self.a
        a("s_waitcnt lgkmcnt(0)")
        if self.stamps:
            a(f"v_writelane_b32 v{vST}, s{s_ts}, 0"); self.names.append("start"); self.nst = 1
            if self.o.get("fine"): self.stamp("karg")

    def helper_wg(self):
        a = self.a; o = self.o
        emit, wvm, wlg = self.emit, self.wvm, self.wlg
        a.hist = []; a.vm = []; a.lg = []
        self.names = []; self.nst = 0; self.waited = False
        if o.get("halign", 1): a.raw(".p2align 12")
        a("L_helper:")
        UOFF, CS, HSZ = 1024, 4160, 4 * 4160
        ASZ = 288 * 64
        HOFF = UOFF + 3 * ASZ
        EXOFF = HOFF + 4 * HSZ
        assert EXOFF + 4 * 5120 <= 163840
        s_hh, s_kh, s_it, s_fy = s_i, s_j, s_dj, s_th
        s_h, s_g, s_y, s_f = 74, 78, 82, 86
        s_yp, s_um, s_us, s_pf, s_pfs, s_pf2 = 90, 91, 92, 93, 94, 95
        s_x = 96
        vZ, vTAG, vLIN, vF, vHL, vHL2, vEXW, vEXR, vYS, vHW, vDUM = 2, 3, 4, 5, 8, 9, 10, 11, 12, 13, 6
        vG = 14
        vPF, vCP = 7, 22
        vUD = 18
        t0, t1, t2 = 24, 25, 26
        HD = 32
        Y = 64
        O = 96
        HTS = [112, 118, 24, O + 8]
        FB = [192, 224]; GB = [128, 160]
        gk = "a" if o.get("gagpr", 0) else "v"
        a(f"s_lshl_b32 s{s_hh}, s{s_t1}, 2")
        a(f"s_add_u32 s{s_hh}, s{s_hh}, s{s_t0}")
        a(f"s_sub_u32 s{s_hh}, s{s_hh}, 28")
        a(f"s_and_b32 s{s_so}, s{s_hh}, 3")
        a(f"s_lshl_b32 s{s_so2}, s{s_so}, 2")
        a(f"s_add_u32 s{s_so2}, s{s_so2}, s{s_w}")
        if o.get("cpf", 2) == 1:
            a(f"s_getpc_b64 s[100:101]")
            a("L_pc:")
            a(f"v_lshl_add_u32 v{vCP}, v1, 4, s{s_so2}")
            a(f"v_lshlrev_b32 v{vCP}, 7, v{vCP}")
            a.raw(f"    v_min_u32 v{vCP}, L_codeend-{NAME}-4, v{vCP}")
            a.raw(f"    s_sub_u32 s100, s100, L_pc-{NAME}")
            a("s_subb_u32 s101, s101, 0")
            a(f"global_load_dword v{vDUM}, v{vCP}, s[100:101]")
        a(f"s_and_b32 s{s_kh}, s{s_w}, 1")
        a(f"v_mov_b32 v{vZ}, 0")
        a(f"v_lshlrev_b32 v{vLIN}, 4, v1")
        a(f"v_lshrrev_b32 v{t1}, 4, v1")
        a(f"v_and_b32 v{t0}, 15, v1")
        a(f"v_lshlrev_b32 v{vHL}, 9, v{t1}")
        a(f"v_lshl_add_u32 v{vHL}, v{t0}, 3, v{vHL}")
        a(f"v_subrev_u32 v{vHL2}, 8, v{vHL}")
        s_c0 = s_pf2
        a(f"s_and_b32 s{s_c0}, s{s_hh}, 1")
        a(f"s_lshl_b32 s{s_c0}, s{s_c0}, 1")
        def chan(k):
            if k < 3:
                a(f"s_add_u32 s{s_t0}, s{s_w}, {4*k}"); a(f"s_add_u32 s{s_t0}, s{s_t0}, s{s_c0}")
            else:
                a(f"s_lshr_b32 s{s_t0}, s{s_w}, 1")
                a(f"s_add_u32 s{s_x+3}, s{s_t0}, s{s_c0}"); a(f"s_xor_b32 s{s_x+3}, s{s_x+3}, s{s_w}"); a(f"s_lshl_b32 s{s_x+3}, s{s_x+3}, 4")
                a(f"s_mul_i32 s{s_t1}, s{s_c0}, 6"); a(f"s_sub_u32 s{s_t0}, s{s_t0}, s{s_t1}"); a(f"s_add_u32 s{s_t0}, s{s_t0}, 12")
            a(f"s_mul_i32 s{s_t1}, s{s_hh}, 14")
            a(f"s_add_u32 s{s_t1}, s{s_t1}, s{s_t0}")
            a(f"s_and_b32 s{s_t2}, s{s_t1}, 31")
            a(f"s_lshl_b32 s{s_t2}, s{s_t2}, 1")
            a(f"s_bfe_u32 s{s_t3}, s{s_t1}, 0x10005")
            a(f"s_add_u32 s{s_t2}, s{s_t2}, s{s_t3}")
            a(f"s_andn2_b32 s{s_t3}, s{s_t1}, 63")
            a(f"s_add_u32 s{s_t2}, s{s_t2}, s{s_t3}")
            a(f"s_lshl_b32 s{s_h+k}, s{s_t2}, 12")
            a(f"s_lshl_b32 s{s_y+k}, s{s_t1}, 12")
            a(f"s_add_u32 s{s_y+k}, s{s_y+k}, {WS_YT}")
        def h_loads(g, sreg):
            d = HD + 4 * g; off = 2048 * (g & 1) + 128 * (g >> 1)
            return [(f"buffer_load_dwordx2 v[{d}:{d+1}], v{vHL2 if g == 0 else vHL}, {srd(sH)}, s{sreg} offen offset:{max(off-8, 0)}", f"h{g}"),
                    (f"buffer_load_dwordx2 v[{d+2}:{d+3}], v{vHL}, {srd(sH)}, s{sreg} offen offset:{off}", f"h{g}")]
        def h_valu(g):
            d = HD + 4 * g; t = HTS[g & 3]
            return [wvm(f"h{g}"), f"v_alignbit_b32 v{t}, v{d+2}, v{d+1}, 16", f"v_alignbit_b32 v{t+1}, v{d+3}, v{d+2}, 16",
                    f"v_mov_b32 v{t+2}, v{d+1}", f"v_mov_b32 v{t+3}, v{d+2}",
                    f"v_alignbit_b32 v{t+4}, v{d+1}, v{d}, 16", f"v_mov_b32 v{t+5}, v{t}"]
        def h_writes(g):
            d = HD + 4 * g; t = HTS[g & 3]; off = 2048 * (g & 1) + 128 * (g >> 1)
            return [(f"ds_write_b64 v{vHW}, v[{r}:{r+1}] offset:{off + c*CS}", f"hw{g}") for c, r in enumerate((d + 2, t, t + 2, t + 4))]
        chan(0)
        self.first_wait()
        a(f"buffer_load_dword v{vTAG}, v{vZ}, {srd(sWS)}, 0 offen sc1", tag="epoch")
        for g in range(8): emit(h_loads(g, s_h))
        if o.get("w1pf", 2) == 2:
            a(f"s_mul_i32 s{s_t2}, s{s_so2}, {28*3584}")
            a(f"s_bfe_u32 s{s_t3}, s{s_hh}, 0x10002")
            a(f"s_mul_i32 s{s_t3}, s{s_t3}, 896")
            a(f"s_add_u32 s{s_t2}, s{s_t2}, s{s_t3}")
            a(f"v_lshrrev_b32 v{Y}, 3, v1")
            a(f"v_min_u32 v{Y}, 6, v{Y}")
            a(f"v_and_b32 v{Y+1}, 7, v1")
            a(f"v_min_u32 v{Y+1}, 6, v{Y+1}")
            a(f"v_mul_u32_u24 v{Y}, 3584, v{Y}")
            a(f"v_lshl_add_u32 v{Y}, v{Y+1}, 7, v{Y}")
            for q in range(o.get("w1n", 4)):
                a(f"buffer_load_dword v{vDUM}, v{Y}, {srd(sWIN)}, s{s_t2} offen", tag="pf")
                if q < 3: a(f"s_add_u32 s{s_t2}, s{s_t2}, {7*3584}")
        a(f"s_lshr_b32 s{s_t0}, s{s_hh}, 3")
        a(f"s_lshl_b32 s{s_t0}, s{s_t0}, 2")
        a(f"s_add_u32 s{s_sb}, s{s_t0}, s{s_so}")
        for k in range(1, 4): chan(k)
        a(f"s_mov_b32 s{s_g+1}, {ASZ}")
        a(f"s_mov_b32 s{s_g+2}, {ASZ}")
        a(f"s_lshl_b32 s{s_t2}, s{s_kh}, 10")
        a(f"s_sub_u32 s{s_g+3}, {(-2*ASZ) & 0xffffffff}, s{s_t2}")
        a(f"s_mov_b32 s{s_x+1}, 0")
        a(f"s_mov_b32 s{s_x+2}, 0")
        a(f"s_lshl_b32 s{s_t2}, s{s_kh}, 11")
        a(f"s_add_u32 s{s_y+3}, s{s_y+3}, s{s_t2}")
        a(f"s_mov_b32 s{s_f+1}, 0")
        a(f"s_mov_b32 s{s_f+2}, 0")
        a(f"s_lshl_b32 s{s_f+3}, s{s_kh}, 8")
        a(f"s_mul_i32 s{s_fy}, s{s_hh}, {FS}")
        a(f"s_add_u32 s{s_fy}, s{s_fy}, {WS_FY}")
        emit(self.only_wave(s_fy, 0))
        a(f"v_lshlrev_b32 v{t2}, 3, v{t1}")
        a(f"v_sub_u32 v{t2}, v{t0}, v{t2}")
        a(f"v_add_u32 v{t2}, 25, v{t2}")
        a(f"v_sub_u32 v{vF}, 0, v{t2}")
        a(f"v_and_b32 v{vF}, 3, v{vF}")
        a(f"v_mul_u32_u24 v{vF}, {CS+2}, v{vF}")
        a(f"v_lshl_add_u32 v{vF}, v{t2}, 1, v{vF}")
        a(f"s_mul_i32 s{s_t2}, s{s_w}, {HSZ}")
        a(f"s_add_u32 s{s_t2}, s{s_t2}, {HOFF}")
        a(f"v_add_u32 v{vF}, s{s_t2}, v{vF}")
        a(f"s_add_u32 s{s_t2}, s{s_t2}, 32")
        a(f"v_add_u32 v{vHW}, s{s_t2}, v{vHL}")
        a(f"v_lshl_add_u32 v{t2}, v{t0}, 1, v{t1}")
        a(f"v_add_u32 v{t2}, 2, v{t2}")
        for k in range(4):
            a(f"v_lshrrev_b32 v{vG+k}, 2, v{t2}")
            a(f"v_add_u32 v{vG+k}, {3-k}, v{vG+k}")
            a(f"v_xor_b32 v{vG+k}, s{s_w}, v{vG+k}")
            a(f"v_and_b32 v{vG+k}, 3, v{vG+k}")
            a(f"v_lshlrev_b32 v{vG+k}, 4, v{vG+k}")
            a(f"v_lshl_add_u32 v{vG+k}, v{t2}, 6, v{vG+k}")
            a(f"v_add_u32 v{vG+k}, {UOFF}, v{vG+k}")
        a(f"v_lshlrev_b32 v{vYS}, 5, v{t0}")
        a(f"v_bfe_u32 v{t2}, v1, 4, 1")
        a(f"v_lshl_add_u32 v{vYS}, v{t2}, 9, v{vYS}")
        a(f"v_lshrrev_b32 v{t2}, 5, v1")
        a(f"v_lshl_add_u32 v{vYS}, v{t2}, 4, v{vYS}")
        a(f"v_xor_b32 v{t0}, v{t1}, v1")
        a(f"v_and_b32 v{t0}, 3, v{t0}")
        a(f"v_lshrrev_b32 v{t2}, 2, v1")
        a(f"v_mul_u32_u24 v{t2}, 7168, v{t2}")
        a(f"v_lshl_add_u32 v{vUD}, v{t0}, 4, v{t2}")
        for q in range(1, 4): a(f"v_add_u32 v{vUD+q}, {q*(16*7168-1024)}, v{vUD}")
        for q in range(4): a(f"v_mov_b32 v{O+q}, 0")
        a(f"v_bfe_u32 v{t0}, v1, 1, 4")
        a(f"v_and_b32 v{t2}, 1, v1")
        a(f"v_mul_u32_u24 v{t0}, {CS}, v{t0}")
        a(f"v_lshl_add_u32 v{t0}, v{t2}, 4, v{t0}")
        a(f"v_add_u32 v{t0}, {HOFF}, v{t0}")
        a(f"ds_write_b128 v{t0}, v[{O}:{O+3}]")
        a(f"v_and_b32 v{t0}, 127, v0")
        a(f"v_lshlrev_b32 v{t0}, 4, v{t0}")
        for q in range(3): a(f"ds_write_b128 v{t0}, v[{O}:{O+3}] offset:{UOFF + q*ASZ}")
        a.wait(vm="epoch")
        self.get_tag(vTAG, vTAG)
        for g in range(8):
            if g == 4: a("s_waitcnt lgkmcnt(0)")
            emit(h_valu(g)); emit(h_writes(g))
        a("s_waitcnt lgkmcnt(0)")
        if not o.get("h1late", 1):
            for g in range(4): emit(h_loads(g, s_h + 1))
        if o.get("w1pf", 2) == 1:
            a(f"s_mul_i32 s{s_t2}, s{s_so2}, {28*3584}")
            a(f"s_bfe_u32 s{s_t3}, s{s_hh}, 0x10002")
            a(f"s_mul_i32 s{s_t3}, s{s_t3}, 896")
            a(f"s_add_u32 s{s_t2}, s{s_t2}, s{s_t3}")
            a(f"v_lshrrev_b32 v{Y}, 3, v1")
            a(f"v_min_u32 v{Y}, 6, v{Y}")
            a(f"v_and_b32 v{Y+1}, 7, v1")
            a(f"v_min_u32 v{Y+1}, 6, v{Y+1}")
            a(f"v_mul_u32_u24 v{Y}, 3584, v{Y}")
            a(f"v_lshl_add_u32 v{Y}, v{Y+1}, 7, v{Y}")
            for q in range(o.get("w1n", 4)):
                a(f"buffer_load_dword v{vDUM}, v{Y}, {srd(sWIN)}, s{s_t2} offen", tag="pf")
                if q < 3: a(f"s_add_u32 s{s_t2}, s{s_t2}, {7*3584}")
        if o.get("w1m", 0):
            a(f"s_lshl_b32 s{s_t2}, s{s_hh}, 2")
            a(f"s_add_u32 s{s_t2}, s{s_t2}, s{s_w}")
            a(f"s_mul_i32 s{s_t2}, s{s_t2}, 49")
            a(f"v_min_u32 v{t0}, 48, v1")
            a(f"v_add_u32 v{t0}, s{s_t2}, v{t0}")
            a(f"v_mul_u32_u24 v{t1}, 18725, v{t0}")
            a(f"v_lshrrev_b32 v{t1}, 18, v{t1}")
            a(f"v_mul_u32_u24 v{t1}, 1792, v{t1}")
            a(f"v_lshl_add_u32 v{t0}, v{t0}, 7, v{t1}")
            a(f"buffer_load_dword v{vDUM}, v{t0}, {srd(sWIN)}, 0 offen", tag="pf")
        if o.get("upf", 0):
            a(f"s_lshl_b32 s{s_t2}, s{s_sb}, 2")
            a(f"s_add_u32 s{s_t2}, s{s_t2}, s{s_w}")
            a(f"s_lshl_b32 s{s_t2}, s{s_t2}, 17")
            a(f"s_bfe_u32 s{s_t3}, s{s_hh}, 0x10002")
            a(f"s_lshl_b32 s{s_t3}, s{s_t3}, 11")
            a(f"s_add_u32 s{s_t2}, s{s_t2}, s{s_t3}")
            a(f"v_lshrrev_b32 v{t0}, 1, v1")
            a(f"v_and_b32 v{t1}, 1, v1")
            a(f"v_lshlrev_b32 v{t0}, 12, v{t0}")
            a(f"v_lshl_add_u32 v{t0}, v{t1}, 7, v{t0}")
            assert o.get('nobrot', 1)
            a(f"buffer_load_dword v{vDUM}, v{t0}, {srd(sWSP)}, s{s_t2} offen offset:{1024+768}", tag="pf")
        if o.get("opf", 2):
            a(f"s_lshl_b32 s{s_t2}, s{s_hh}, 2")
            a(f"s_add_u32 s{s_t2}, s{s_t2}, s{s_w}")
            a(f"s_mul_i32 s{s_pfs}, s{s_t2}, {49*128}")
            a(f"v_min_u32 v{vPF}, 48, v1")
            a(f"v_lshlrev_b32 v{vPF}, 7, v{vPF}")
            if o.get("opf", 2) == 1: a(f"buffer_load_dword v{vDUM}, v{vPF}, {srd(sWOUT)}, s{s_pfs} offen", tag="pf")
        a(f"s_lshl_b32 s{s_t2}, s{s_w}, 12")
        a(f"s_add_u32 s{s_t2}, s{s_t2}, {EXOFF}")
        a(f"v_add_u32 v{vEXW}, s{s_t2}, v{vLIN}")
        a(f"s_xor_b32 s{s_t2}, s{s_w}, 1")
        a(f"s_lshl_b32 s{s_t2}, s{s_t2}, 12")
        a(f"s_add_u32 s{s_t2}, s{s_t2}, {EXOFF}")
        a(f"v_add_u32 v{vEXR}, s{s_t2}, v{vLIN}")
        a(f"s_mul_i32 s{s_t2}, s{s_hh}, 14")
        a(f"s_lshr_b32 s{s_t3}, s{s_t2}, 6")
        a(f"s_min_u32 s{s_t3}, s{s_t3}, 5")
        a(f"s_mul_i32 s{s_t3}, s{s_t3}, {32*FS}")
        a(f"s_add_u32 s{s_t3}, s{s_t3}, {WS_FKV}")
        a(f"v_mul_u32_u24 v{t1}, {FS}, v1")
        a(f"s_add_u32 s{s_t2}, s{s_t2}, s{s_c0}")
        a(f"s_lshl_b32 s{s_t2}, s{s_t2}, 4")
        a(f"s_mul_i32 s{s_t1}, s{s_w}, {64*7168}")
        a(f"s_add_u32 s{s_t2}, s{s_t2}, s{s_t1}")
        a(f"s_add_u32 s{s_us}, s{s_t2}, {WS_KVT}")
        a(f"s_lshl_b32 s{s_um}, s{s_w}, 12")
        a(f"s_add_u32 s{s_um}, s{s_um}, {UOFF + 2048}")
        a(f"s_mov_b32 s{s_so}, s{s_um}")
        a(f"s_lshl_b32 s{s_pf}, s{s_c0}, 7")
        a(f"s_sub_u32 s{s_pf}, 64, s{s_pf}")
        a(f"s_mov_b32 s{s_it}, 0")
        a(f"s_mov_b32 s{s_yp}, {WS_SIZE}")
        self.hop([8, 9], "L_hop3")
        self.stamp("h_ready")
        self.poll([f"buffer_load_dword v{t2}, v{t1}, {srd(sWS)}, s{s_t3} offen sc1"], [t2], t0, wave=0, nap=o.get("knap", 0))
        a("s_barrier")
        self.stamp("kv_got")
        def u_items():
            out = [f"s_mov_b32 m0, s{s_um}"]
            for q in range(4):
                out.append((f"buffer_load_dwordx4 v{vUD+q}, {srd(sWS)}, s{s_us} offen offset:{1024*(q&3)} sc1 lds", "u"))
            return out
        emit(u_items())
        a(f"s_add_u32 s{s_um}, s{s_um}, {ASZ}")
        a(f"s_add_u32 s{s_us}, s{s_us}, 64")
        a(f"s_sub_u32 vcc_lo, 0, s{s_kh}")
        a(f"s_mov_b32 vcc_hi, vcc_lo")
        if o.get("h1late", 1):
            for g in range(4): emit(h_loads(g, s_h + 1))
        a.wait(vm="u")
        a("s_waitcnt lgkmcnt(0)")
        a("s_barrier")
        self.stamp("u_got")

        def rdF(r):
            b = r & 1
            return [(f"ds_read_b64 v[{FB[b]+4*q+2*h}:{FB[b]+4*q+2*h+1}], v{vF} offset:{512*q + 64*r + 8*h}", f"c{r}_{int(q>4)}") for q in range(8) for h in range(2)]
        def rdG(r):
            b = r & 1
            return [(f"ds_read_b128 {gk}[{GB[b]+4*q}:{GB[b]+4*q+3}], v{vG+(r&3)} offset:{2048*q + 256*(7-r)}", f"c{r}_{int(q>4)}") for q in range(8)]
        def reads(r):
            F, G = rdF(r), rdG(r); out = []
            for q in range(8): out += F[2*q:2*q+2] + [G[q]]
            return out
        def cvt(tiles, src):
            return [f"v_cvt_pk_bf16_f32 v{O+2*x+p}, v{src+4*x+2*p}, v{src+4*x+2*p+1}" for x in tiles for p in range(2)]
        def swaps(x2): return [f"v_permlane16_swap_b32 v{O+4*x2+p}, v{O+4*x2+2+p}" for p in range(2)]
        def store(x2, sreg): return (f"buffer_store_dwordx4 v[{O+4*x2}:{O+4*x2+3}], v{vYS}, {srd(sWS)}, s{sreg} offen offset:{1024*x2} sc1", "yst")
        isvm = lambda it: isinstance(it, tuple) and it[0].startswith("buffer_")
        ORD = [(q + e, q) for q in range(8) for e in range(8 - q)]
        def block(r, lds, oth):
            a = self.a
            b = r & 1; m = 0; hold = []
            lds = list(lds); assert len(lds) <= 36
            a.wait(lg=f"c{r}_{o.get('cw1', 0)}")
            for s0 in range(8):
                if s0 == 5: a.wait(lg=f"c{r}_1")
                for q0 in range(s0 + 1):
                    s, q = s0, q0
                    if o.get("cord", 0) and r not in (0, 7): s, q = ORD[m]
                    e = s - q; d = Y + 4 * s
                    cin = "0" if (r == 0 and q == 0) else f"v[{d}:{d+3}]"
                    a(f"v_mfma_f32_16x16x32_bf16 v[{d}:{d+3}], v[{FB[b]+4*q}:{FB[b]+4*q+3}], {gk}[{GB[b]+4*e}:{GB[b]+4*e+3}], {cin}")
                    hold += oth.get(m, [])
                    n = 0
                    it = lds.pop(0) if lds else None
                    if it is not None:
                        self.put(it); n += 1 if isinstance(it, str) or "read" in it[0] else 2
                    while hold and n < 2: self.put(hold.pop(0)); n += 1
                    m += 1
            assert not hold, (r, hold)
        def lace(rd, extra, first, step):
            out = list(rd)
            for z, it in enumerate(extra):
                p = first + z * step
                while len(out) < p: out.append(None)
                out.insert(p, it)
            return out
        ctouch = (f"global_load_dword v{vDUM}, v{vCP}, s[100:101]", "pf") if o.get("cpf", 2) == 1 and o.get("cpf2", 0) else None
        def prev_out(r, sreg):
            if r == 0: return {3: cvt((4, 5), Y) + swaps(0) + swaps(1) + cvt((6, 7), Y) + swaps(2) + swaps(3)}
            return {}
        def cyc(n):
            if self.stamps and o.get("fine"):
                self.a("s_memtime s[4:5]"); self.a(f"s_add_u32 m0, s{s_it}, {16+n}"); self.a("s_waitcnt lgkmcnt(0)"); self.a(f"v_writelane_b32 v{vST}, s4, m0")
        def trip():
            a = self.a
            ui = u_items()
            st = [store(x, s_yp) for x in range(4)]
            block(0, lace(reads(1), h_loads(4, s_h+1) + h_loads(5, s_h+1) + [ctouch] + st[:2], 2, 5), prev_out(0, s_yp))
            block(1, lace(reads(2), st[2:] + h_loads(6, s_h+1) + h_loads(7, s_h+1), 2, 5), {20: h_valu(0)})
            block(2, lace(reads(3), h_writes(0) + ui[:3], 2, 4), {20: h_valu(1)})
            nx = [f"s_add_u32 s{s_um}, s{s_um}, {ASZ}", f"s_cmp_eq_u32 s{s_it}, 0", f"s_cselect_b32 s{s_um}, s{s_um}, s{s_so}",
                  f"s_cselect_b32 s{s_t0}, 64, s{s_pf}", f"s_add_u32 s{s_us}, s{s_us}, s{s_t0}"]
            ot = [(f"buffer_load_dword v{vDUM}, v{vPF}, {srd(sWOUT)}, s{s_pfs} offen", "pf")] if o.get("opf", 2) == 2 else []
            block(3, lace(reads(4), h_writes(1) + ui[3:] + ot, 2, 4), {16: h_valu(2)})
            block(4, lace(reads(5), h_writes(2) + h_loads(0, s_h+2), 2, 5), {4: nx, 20: h_valu(3)})
            block(5, lace(reads(6), h_writes(3) + h_loads(1, s_h+2), 2, 5), {8: h_valu(4) + h_valu(5)})
            gup = lambda k: [f"v_xor_b32 v{vG+k}, s{s_x+1}, v{vG+k}", f"v_add_u32 v{vG+k}, s{s_g+1}, v{vG+k}"]
            upd = [f"v_add_u32 v{vF}, s{s_f+1}, v{vF}"] + gup(3)
            block(6, lace(reads(7), h_writes(4) + h_writes(5), 2, 4) + h_loads(2, s_h+2), {0: gup(0) + gup(1), 4: h_valu(6) + h_valu(7) + gup(2), 34: upd})
            a.wait(vm="u")
            a("s_barrier")
            w = h_writes(6) + h_writes(7); G = rdG(0); l7 = []
            for z in range(8): l7 += [w[z], G[z]]
            rot = [f"s_mov_b32 s{s_yp}, s{s_y}"]
            for base in (s_y, s_g, s_f, s_x):
                rot += [f"s_mov_b32 s{base+k}, s{base+k+1}" for k in range(0 if base == s_y else 1, 3)]
            fin = [f"s_mov_b32 s{s_h+1}, s{s_h+2}", f"s_add_u32 s{s_it}, s{s_it}, 1", f"s_cmp_lt_u32 s{s_it}, 3"]
            block(7, l7 + rdF(0) + h_loads(3, s_h+2), {1: rot[:8], 16: cvt((0, 1, 2, 3), Y) + rot[8:] + fin,
                                                       34: [f"s_mov_b32 s{s_h+2}, s{s_h+3}", f"s_mov_b32 s{s_h+3}, 0x7fff0000"]})
        emit(reads(0))
        a("s_waitcnt lgkmcnt(0)")
        import copy
        real = self.a
        self.a = copy.deepcopy(real); trip(); vm1, lg1 = list(self.a.vm), list(self.a.lg)
        self.a = real
        pre = [t for t in a.vm]; assert pre == vm1[len(vm1)-len(pre):], (pre, vm1)
        a.vm, a.lg = list(vm1), list(lg1)
        a("L_conv:")
        cyc(0)
        if self.stamps and o.get("fine"): a.lg = list(lg1)
        trip()
        assert (a.vm, a.lg) == (vm1, lg1)
        a("s_cbranch_scc1 L_conv")
        cyc(0)
        st = [store(x, s_yp) for x in range(4)]
        block(0, lace(reads(1), st[:2], 24, 5), prev_out(0, s_yp))
        block(1, lace(reads(2), st[2:], 2, 5), {})
        block(2, reads(3), {})
        block(3, [], {})
        cyc(1)
        SEND, KEEP = 128, 144
        for r in range(16): a(f"v_cndmask_b32 v{SEND+r}, v{Y+16+r}, v{Y+r}, vcc")
        for x in range(4): a(f"ds_write_b128 v{vEXW}, v[{SEND+4*x}:{SEND+4*x+3}] offset:{1024*x}")
        for r in range(16): a(f"v_cndmask_b32 v{KEEP+r}, v{Y+r}, v{Y+16+r}, vcc")
        a("s_waitcnt lgkmcnt(0)")
        a("s_barrier")
        for x in range(4): a(f"ds_read_b128 v[{SEND+4*x}:{SEND+4*x+3}], v{vEXR} offset:{1024*x}")
        a("s_waitcnt lgkmcnt(0)")
        for p in range(8): a(f"v_pk_add_f32 v[{SEND+2*p}:{SEND+2*p+1}], v[{SEND+2*p}:{SEND+2*p+1}], v[{KEEP+2*p}:{KEEP+2*p+1}]")
        emit(cvt((0, 1, 2, 3), SEND) + swaps(0) + swaps(1) + [store(0, s_y), store(1, s_y)])
        a("s_waitcnt vmcnt(0)")
        a("s_barrier")
        a(f"v_lshlrev_b32 v{vDUM}, 2, v1")
        self.flag(s_fy, vDUM, vTAG)
        self.stamp("conv_done")
        self.dump_stamps()
        a(f"s_lshl_b32 s{s_t2}, s{s_hh}, 2")
        a(f"s_add_u32 s{s_t2}, s{s_t2}, s{s_w}")
        a(f"s_cmp_lg_u32 s{s_t2}, 0")
        a("s_cbranch_scc1 L_end")
        a(f"v_mul_u32_u24 v{t0}, {FS}, v1")
        loads = []
        for q in range(4):
            a(f"s_mov_b32 s{80+q}, {WS_FKV + 64*FS*q}")
            loads.append(f"buffer_load_dword v{96+q}, v{t0}, {srd(sWS)}, s{80+q} offen sc1")
        self.poll(loads, list(range(96, 100)), t1)
        a(f"s_mov_b32 s{s_t2}, {WS_EPOCH}")
        self.flag(s_t2, vDUM, vTAG)
        a("L_end:")
        a("s_endpgm")
        a("L_codeend:")
        self.helper_names = self.names

    def build(self):
        a = self.a
        ref = open("gated_mix__ssm_conv_h3__mixer_gmlp__prompt.s.ref").read().split("\n")
        for l in ref:
            if l.startswith(";") and "@launch" not in l: a.raw(l)
            elif not l.startswith(";"): break
        a.raw(header(["@launch grid=(256,1,1) block=(256,1,1) lds=163840"]))
        a.raw(".p2align 12")
        a.raw(kstart(NAME))
        self.prologue()
        self.gemm_wg()
        self.helper_wg()
        a.raw(kdesc(NAME, 512, 256))
        return self.place_pads(a.lines)

    def place_pads(self, lines):
        if not self.pads: return "\n".join(lines) + "\n"
        import subprocess, tempfile, os
        isins = lambda l: l.startswith("    ") and l.strip() and not l.strip().startswith((".", ";"))
        probe = "\n".join(l for l in lines if l != ".p2align 12").replace("L_codeend:", "L_codeend:\n" + "".join(f"L_pad{k}:\n" for k in self.pads))
        with tempfile.TemporaryDirectory() as d:
            open(d + "/p.s", "w").write(probe + "\n")
            subprocess.run(["clang", "-x", "assembler", "-target", "amdgcn-amd-amdhsa", "-mcpu=gfx950", "-c", d + "/p.s", "-o", d + "/p.o"], check=True)
            dis = subprocess.run(["llvm-objdump", "-d", "--mcpu=gfx950", d + "/p.o"], capture_output=True, text=True).stdout
        addrs = [int(l.split("//")[1].split(":")[0], 16) for l in dis.split("\n") if "//" in l]
        assert len(addrs) == sum(map(bool, map(isins, lines)))
        out = []; n = 0; todo = sorted(self.pads); shift = ENTRY_OFF; masked = False
        for l in lines:
            if isins(l):
                if todo and not masked and addrs[n] + shift >= 4096 * todo[0] + (self.o.get("padoff", 0) if todo[0] < 8 else 0):
                    k = todo.pop(0)
                    out += [f"L_pad{k}:", f"    s_cbranch_execz {self.pads[k]}"]; shift += 4
                if "exec" in l.split(",")[0]: masked = "-1" not in l
                n += 1
            out.append(l)
            if l == ".p2align 12" and n: shift += (-(addrs[n] + shift)) % 4096
        assert not todo, todo
        return "\n".join(out) + "\n"

if __name__ == "__main__":
    import argparse
    ap = argparse.ArgumentParser()
    ap.add_argument("-o", default="gated_mix__ssm_conv_h3__mixer_gmlp__prompt.s")
    ap.add_argument("--stamps", action="store_true")
    ap.add_argument("--npre", type=int, default=16)
    ap.add_argument("--opt", action="append", default=[])
    args = ap.parse_args()
    g = Gen(stamps=args.stamps, npre=args.npre, opts={o.split("=")[0]: int(o.split("=")[1]) for o in args.opt})
    t = g.build()
    open(args.o, "w").write(t)
    print("lines", t.count("\n"), "pad states", g.a.npad, "max vm", g.a.maxvm, g.info)
```
